```python
import torch

def _softmax(x, axis=-1):
    return torch.softmax(x, dim=axis)
def _gelu(x):
    return torch.nn.functional.gelu(x, approximate="tanh")
def _silu(x):
    return torch.nn.functional.silu(x)
def _sigmoid(x):
    return torch.sigmoid(x)
def _layernorm(x, axis=-1, eps=1e-5):
    m = x.mean(dim=axis, keepdim=True)
    v = x.var(dim=axis, keepdim=True, unbiased=False)
    return (x - m) / torch.sqrt(v + eps)
def _scatter_add(tgt, idx, src, axis=0):
    return tgt.clone().index_add_(axis, idx, src)
def _segment_sum(src, seg, n):
    out = torch.zeros((n,) + src.shape[1:], dtype=src.dtype)
    return out.index_add_(0, seg, src)
def _pad(x, pw):
    flat = tuple(v for pair in reversed(pw) for v in pair)
    return torch.nn.functional.pad(x, flat)

kernel_name = 'concat_heads__linear_attn_block__spectral_gfnet__prompt'

def setup_inputs():

    _w = (lambda a: (lambda t: t.to(torch.bfloat16) if t.is_floating_point() else t)(torch.as_tensor(a)))
    def _A_setup():
        B, S, D = 1, 2048, 512
        return {
            "x": _w((lambda *s: torch.randn(*s, dtype=torch.bfloat16) * 0.05)(B, S, D)),
            "wqkv": _w((lambda *s: torch.randn(*s, dtype=torch.bfloat16) * 0.4)(D, 3 * D)),
            "wo": _w((lambda *s: torch.randn(*s, dtype=torch.bfloat16) * 0.05)(D, D)),
        }
    _A_in = _A_setup()

    def _B_setup():
        B, S, D = 1, 2048, 512
        Df = D // 2 + 1
        return {
            "x": _w((lambda *s: torch.randn(*s, dtype=torch.bfloat16) * 0.05)(B, S, D)),
            "w_r": _w((lambda *s: torch.randn(*s, dtype=torch.bfloat16) * 1.6)(S, Df) * 0.02),
            "w_i": _w((lambda *s: torch.randn(*s, dtype=torch.bfloat16) * 1.6)(S, Df) * 0.02),
        }
    _B_in = _B_setup()

    return {
        "A_x": _A_in["x"],
        "A_wqkv": _A_in["wqkv"],
        "A_wo": _A_in["wo"],
        "B_x": _B_in["x"],
        "B_w_r": _B_in["w_r"],
        "B_w_i": _B_in["w_i"],
    }

def reference(A_x, A_wqkv, A_wo, B_x, B_w_r, B_w_i):
    def _A_ref(x, wqkv, wo):
        B, S, D = x.shape
        H = 32; Dh = D // H
        qkv = (lambda x, *d: x.permute(*d))((x @ wqkv).reshape(B, S, 3, H, Dh), 2, 0, 3, 1, 4)
        q, k, v = qkv[0], qkv[1], qkv[2]
        phi = lambda t: torch.where(t > 0, t + 1, torch.exp(t)) + 1e-6
        pq, pk = phi(q), phi(k)
        kv = torch.einsum("bhsd,bhse->bhde", pk, v)
        z = torch.einsum("bhsd->bhd", pk)
        num = torch.einsum("bhqd,bhde->bhqe", pq, kv)
        den = torch.einsum("bhqd,bhd->bhq", pq, z)[..., None] + 1e-6
        o = num / den
        return (lambda x, *d: x.permute(*d))(o, 0, 2, 1, 3).reshape(B, S, D) @ wo

    def _B_ref(x, w_r, w_i):
        B, S, D = x.shape
        X = (lambda x, axes=(-2,-1): torch.fft.rfft2(x.float(), dim=axes))(x, axes=(-2, -1))
        W = w_r + 1j * w_i
        X = X * W
        y = (lambda x, s, axes=(-2,-1): torch.fft.irfft2(x, s=s, dim=axes).to(torch.bfloat16))(X, (S, D), axes=(-2, -1))
        return y

    a = _A_ref(A_x, A_wqkv, A_wo)
    b = _B_ref(B_x, B_w_r, B_w_i)
    return torch.concatenate([a, b], axis=-1)
```

```python
import re

TRANS = ("v_exp_f32", "v_log_f32", "v_rcp_f32", "v_rsq_f32", "v_sqrt_f32", "v_sin_f32", "v_cos_f32")

def _regs(op):
    op = op.strip()
    op = op.lstrip("-")
    if op.startswith("abs(") or op.startswith("neg("): op = op[4:-1]
    op = op.strip("|")
    m = re.fullmatch(r"([vas])(\d+)", op)
    if m: return {(m.group(1), int(m.group(2)))}
    m = re.fullmatch(r"([vas])\[(\d+):(\d+)\]", op)
    if m: return {(m.group(1), i) for i in range(int(m.group(2)), int(m.group(3)) + 1)}
    if op in ("vcc", "vcc_lo", "vcc_hi"): return {("s", "vcc")}
    if op == "m0": return {("s", "m0")}
    if op == "exec": return {("s", "exec")}
    return set()

class Ins:
    def __init__(self, text):
        self.text = text
        t = text.split(";")[0].strip()
        self.label = t.endswith(":")
        self.directive = t.startswith(".") and not self.label
        parts = t.split(None, 1)
        self.mn = parts[0] if parts else ""
        rest = parts[1] if len(parts) > 1 else ""
        ops = [o.strip() for o in re.split(r",(?![^\[]*\])", rest)] if rest else []
        mods = ""
        if ops:
            last = ops[-1].split(None, 1)
            ops[-1] = last[0]
            mods = last[1] if len(last) > 1 else ""
        self.ops = ops; self.mods = mods
        mn = self.mn
        self.mfma = mn.startswith("v_mfma")
        self.valu = mn.startswith("v_") and not self.mfma
        self.trans = any(mn.startswith(x) for x in TRANS)
        self.vmem = mn.startswith("buffer_") or mn.startswith("global_")
        self.ds = mn.startswith("ds_")
        self.salu = mn.startswith("s_")
        self.dpp = "row_" in mods or "quad_perm" in mods or "_dpp" in mn
        self.w = set(); self.r = set()
        R = [_regs(o) for o in ops]
        def allr(lst):
            s = set()
            for x in lst: s |= x
            return s
        self.ws = 1
        if self.label or self.directive or not mn: self.ws = 0
        if mn == "s_nop": self.ws = int(ops[0], 0) + 1
        if self.mfma:
            self.w = R[0]; self.A = R[1]; self.B = R[2]; self.C = R[3]; self.r = R[1] | R[2] | R[3]
            self.passes = 8 if "32x32" in mn else 4
        elif self.valu:
            if "permlane" in mn and "swap" in mn:
                self.w = R[0] | R[1]; self.r = R[0] | R[1]
            elif mn.startswith("v_add_co") or mn.startswith("v_sub_co") or mn.startswith("v_addc_co"):
                self.w = R[0] | R[1]; self.r = allr(R[2:])
            else:
                self.w = R[0]; self.r = allr(R[1:])
                if mn.startswith("v_fmac") or mn.startswith("v_pk_fmac") or self.dpp or mn.startswith("v_writelane"): self.r |= R[0]
                if mn.startswith("v_cndmask") and len(ops) == 3: self.r |= {("s", "vcc")}
        elif self.vmem:
            self.lds = bool(re.search(r"\blds\b", mods)) or "load_lds" in mn
            if "store" in mn or "atomic" in mn or self.lds:
                self.r = allr(R)
                self.store_data = R[0] if ("store" in mn and mn.startswith("buffer_")) else (R[1] if "store" in mn else set())
                self.wide = mn.endswith("x4") or mn.endswith("x3")
            else:
                self.w = R[0]; self.r = allr(R[1:])
        elif self.ds:
            if mn.startswith("ds_read") or "permute" in mn or "swizzle" in mn:
                self.w = R[0]; self.r = allr(R[1:])
            else: self.r = allr(R)
        elif self.salu and ops and not mn.startswith("s_cmp") and not mn.startswith("s_cbranch") and mn not in ("s_waitcnt", "s_nop", "s_branch", "s_barrier", "s_setprio", "s_sleep"):
            self.w = R[0]; self.r = allr(R[1:])

def need(p, c):
    n = 0
    vw = {x for x in p.w if x[0] in "va"}; sw = {x for x in p.w if x[0] == "s"}
    if p.valu:
        if c.mfma and vw & c.r: n = max(n, 2)
        if p.trans and c.valu and vw & c.r: n = max(n, 1)
        if c.valu and sw & c.r: n = max(n, 4 if ("readlane" in c.mn or "writelane" in c.mn) else 2)
        if c.vmem and sw & c.r: n = max(n, 5)
        if c.valu and ("readlane" in c.mn or "readfirstlane" in c.mn) and vw & c.r: n = max(n, 1)
        if c.valu and "permlane" in c.mn and vw & c.r: n = max(n, 2)
        if c.valu and c.dpp and vw & c.r: n = max(n, 2)
        if c.salu and sw & c.r: n = max(n, 1)
    if p.mfma:
        big = p.passes + 4
        if c.mfma:
            if p.w & (c.A | c.B): n = max(n, big)
            if p.w & c.C:
                if not (p.w == c.C and p.passes == c.passes): n = max(n, p.passes + 2)
            elif p.w & c.w: n = max(n, p.passes + 2)
        elif c.valu:
            if p.w & (c.r | c.w): n = max(n, big)
            if p.C & c.w: n = max(n, p.passes - 1)
        elif c.vmem or c.ds:
            if p.w & (c.r | c.w): n = max(n, big)
    if p.vmem and getattr(p, "store_data", None) and p.wide and (p.store_data & c.w):
        n = max(n, 2 if c.valu else 1)
    if p.salu and ("s", "m0") in p.w and c.vmem and getattr(c, "lds", False): n = max(n, 1)
    return n

class Asm:
    def __init__(self): self.lines = []
    def __call__(self, text):
        for l in text.split("\n"):
            l = l.strip()
            if l: self.lines.append(l)
    def finalize(self):
        out = []; hist = []
        pos = 0
        for l in self.lines:
            ins = Ins(l)
            if ins.label or ins.directive or not ins.mn:
                out.append(l); continue
            req = 0
            for p, ppos in hist[-24:]:
                d = pos - ppos - p.ws
                k = need(p, ins) - d
                if k > req: req = k
            while req > 0:
                k = min(req, 16)
                nop = Ins("s_nop %d" % (k - 1)); out.append("    " + nop.text); hist.append((nop, pos)); pos += k; req -= k
            out.append("    " + l); hist.append((ins, pos)); pos += ins.ws
            if ins.mn in ("s_endpgm", "s_branch"): hist = []
        return "\n".join(out) + "\n"
```

```python
import sys, struct
from asm import Asm

T_OFF = 0; ROW = 8320; U_OFF = 0x240000; PQ_OFF = 0x480000; KVP_OFF = 0x680000; ZP_OFF = 0x780000
O_OFF = 0x800000; WS_SIZE = 0xA00000; DBG_OFF = 0xA00000
STAMP = False
ZERO_D16 = True

def fhex(x): return "0x%08x" % struct.unpack("<I", struct.pack("<f", x))[0]
def q(b): return "v[%d:%d]" % (b, b + 3)
def d(b): return "v[%d:%d]" % (b, b + 1)
MF = "v_mfma_f32_16x16x32_bf16"

def srd(a, r, lo, size):
    a(f"s_mov_b32 s{r}, s{lo}\ns_mov_b32 s{r+1}, s{lo+1}\ns_mov_b32 s{r+2}, {size}\ns_mov_b32 s{r+3}, 0x20000")

def begin(a, name):
    a(f".globl {name}\n.p2align 8\n.type {name},@function\n{name}:")

def desc(name, vgpr, sgpr=96):
    acc = (vgpr + 3) // 4 * 4
    return f'''.section .rodata,"a"
.p2align 6
.amdhsa_kernel {name}
  .amdhsa_next_free_vgpr {vgpr}
  .amdhsa_next_free_sgpr {sgpr}
  .amdhsa_accum_offset {acc}
  .amdhsa_group_segment_fixed_size 0
  .amdhsa_kernarg_size 72
  .amdhsa_user_sgpr_count 2
  .amdhsa_user_sgpr_kernarg_segment_ptr 1
  .amdhsa_system_sgpr_workgroup_id_x 1
.end_amdhsa_kernel
.text
'''

class Stamps:
    def __init__(self, a, kidx): self.a = a; self.k = kidx; self.n = 0
    def start(self):
        if STAMP: self.a("s_memtime s[64:65]\ns_memrealtime s[62:63]")
    def reset(self): self.n = 0
    def mark(self):
        if STAMP and self.n < 14:
            self.n += 1
            self.a(f"s_memtime s[{64+2*self.n}:{65+2*self.n}]")
    def dump(self, wsrd):
        if not STAMP: return
        a = self.a
        a("s_memrealtime s[60:61]")
        a("s_waitcnt vmcnt(0) lgkmcnt(0)")
        a("s_mov_b64 exec, 1")
        for i in range(14):
            if i < self.n: a(f"s_sub_u32 s59, s{66+2*i}, s64\nv_mov_b32 v{16+i}, s59")
            else: a(f"v_mov_b32 v{16+i}, 0")
        a("v_mov_b32 v30, s62\nv_mov_b32 v31, s60")
        a(f"s_lshl_b32 s59, s2, 3\ns_add_u32 s59, s59, s3\ns_lshl_b32 s59, s59, 6\ns_add_u32 s59, s59, {DBG_OFF + self.k*0x40000}")
        a("v_mov_b32 v15, s59")
        for j in range(4): a(f"buffer_store_dwordx4 {q(16+4*j)}, v15, s[{wsrd}:{wsrd+3}], 0 offen offset:{16*j}")

def wsz(): return WS_SIZE + (0x100000 if STAMP else 0)

def gen_k1(a):
    name = "k1_kernel"
    begin(a, name)
    st = Stamps(a, 0); st.start()
    BX = 131072
    a("""s_cmp_ge_u32 s2, 256
    s_cbranch_scc1 K1_END
    s_load_dwordx4 s[4:7], s[0:1], 0
    s_load_dwordx2 s[8:9], s[0:1], 24
    s_load_dwordx2 s[10:11], s[0:1], 64
    s_load_dwordx4 s[12:15], s[0:1], 32
    v_lshrrev_b32 v1, 6, v0
    v_and_b32 v0, 63, v0
    v_readfirstlane_b32 s3, v1
    s_and_b32 s28, s2, 7
    s_lshr_b32 s29, s2, 3
    s_and_b32 s30, s29, 7
    s_lshr_b32 s31, s29, 3
    s_lshr_b32 s32, s28, 1
    s_lshl_b32 s32, s32, 3
    s_add_u32 s32, s32, s30
    s_and_b32 s33, s28, 1
    s_lshl_b32 s33, s33, 2
    s_add_u32 s33, s33, s31
    s_cmp_ge_u32 s3, 4
    s_cbranch_scc0 K1_COMPUTE""")
    a("""s_sub_u32 s34, s3, 4
    s_lshl_b32 s35, s31, 1
    s_add_u32 s35, s35, s30
    s_and_b32 s35, s35, 7
    v_lshrrev_b32 v2, 3, v0
    v_and_b32 v3, 7, v0
    v_and_b32 v4, 6, v2
    v_xor_b32 v3, v3, v4
    v_lshlrev_b32 v3, 4, v3
    v_lshl_add_u32 v5, v2, 10, v3
    v_and_b32 v4, 3, v2
    v_lshrrev_b32 v6, 2, v2
    v_lshl_add_u32 v4, v6, 3, v4
    v_mul_u32_u24 v4, 3072, v4
    v_add_u32 v6, v4, v3
    v_lshlrev_b32 v7, 4, v0
    s_lshl_b32 s36, s32, 16
    s_lshl_b32 s37, s34, 14
    s_add_u32 s36, s36, s37
    s_lshl_b32 s37, s33, 7
    s_mul_i32 s38, s34, 49152
    s_add_u32 s37, s37, s38
    s_lshl_b32 s38, s34, 11
    s_mul_i32 s39, s34, 6144
    s_add_u32 s39, s39, 8192
    s_lshl_b32 s40, s34, 19
    s_lshl_b32 s41, s2, 10
    s_add_u32 s40, s40, s41
    s_mov_b32 s42, 0
    s_waitcnt lgkmcnt(0)""")
    srd(a, 16, 4, 0x200000); srd(a, 20, 6, 0x180000); srd(a, 24, 8, 0x200000)
    a(f"""s_add_u32 m0, s38, {BX}
    s_add_u32 s41, s40, 0x40000
    buffer_load_dwordx4 v7, s[24:27], s40 offen lds
    s_add_u32 m0, s38, {BX+1024}
    s_nop 0
    buffer_load_dwordx4 v7, s[24:27], s41 offen lds""")
    def issue():
        a("""s_lshl_b32 s43, s35, 7
        s_add_u32 s43, s43, s36
        s_add_u32 m0, s42, s38
        s_mul_i32 s44, s35, 196608
        buffer_load_dwordx4 v5, s[16:19], s43 offen lds
        s_add_u32 s43, s43, 7168
        s_add_u32 s44, s44, s37
        buffer_load_dwordx4 v5, s[16:19], s43 offen offset:1024 lds
        s_add_u32 m0, s42, s39
        s_add_u32 s35, s35, 1
        buffer_load_dwordx4 v6, s[20:23], s44 offen lds
        buffer_load_dwordx4 v6, s[20:23], s44 offen offset:1024 lds
        buffer_load_dwordx4 v6, s[20:23], s44 offen offset:2048 lds
        s_add_u32 m0, m0, 3072
        s_add_u32 s44, s44, 12288
        buffer_load_dwordx4 v6, s[20:23], s44 offen lds
        buffer_load_dwordx4 v6, s[20:23], s44 offen offset:1024 lds
        buffer_load_dwordx4 v6, s[20:23], s44 offen offset:2048 lds
        s_and_b32 s35, s35, 7
        s_add_u32 s42, s42, 32768
        s_and_b32 s42, s42, 0x1ffff""")
    issue()
    a("s_waitcnt vmcnt(8)\ns_barrier")
    st.mark()
    issue()
    a("s_mov_b32 s45, 0\nK1_LLOOP:\ns_waitcnt vmcnt(8)\ns_barrier")
    issue()
    a("s_add_u32 s45, s45, 1\ns_cmp_lt_u32 s45, 6\ns_cbranch_scc1 K1_LLOOP")
    st.mark()
    a("s_waitcnt vmcnt(8)\ns_barrier\ns_waitcnt vmcnt(0)\ns_barrier")
    st.mark()
    if STAMP: srd(a, 24, 10, wsz())
    st.dump(24)
    a("s_endpgm")
    st.reset()
    a("K1_COMPUTE:")
    C1, C2, TWC, TWS, C3A, C3B, DAT, AC1, OP2, AC2 = 16, 48, 64, 80, 96, 104, 112, 144, 160, 168
    OP3, TMP, AC3, ACE, OUT = 112, 128, 144, 160, 168
    ACC = 200
    a("""v_and_b32 v2, 15, v0
    v_lshrrev_b32 v3, 4, v0
    v_cvt_f32_u32 v8, v2
    v_cvt_f32_u32 v9, v3""")
    a("""s_lshl_b32 s34, s3, 8
    s_mul_i32 s35, s2, s3
    s_add_u32 s37, s35, 512
    s_cmp_eq_u32 s3, 0
    s_cselect_b32 s36, 1024, s34
    s_cselect_b32 s37, 0, s37
    s_cselect_b32 s38, s2, 0
    s_cselect_b32 s39, 0, 0xbe800000
    s_cselect_b64 s[40:41], -1, 0
    v_lshrrev_b32 v10, 5, v0
    v_mov_b32 v11, s35
    v_mov_b32 v12, s37
    v_mad_u32_u24 v11, v10, s34, v11
    v_mad_u32_u24 v12, v10, s36, v12
    v_cvt_f32_u32 v11, v11
    v_cvt_f32_u32 v12, v12
    v_cvt_f32_u32 v13, s34
    v_cvt_f32_u32 v14, s36""")
    a(f"""v_mul_f32 v11, {fhex(1/2048)}, v11
    v_mul_f32 v12, {fhex(1/2048)}, v12
    v_mul_f32 v13, {fhex(2/2048)}, v13
    v_mul_f32 v14, {fhex(2/2048)}, v14""")
    a("""v_and_b32 v15, 1, v0
    v_cmp_eq_u32 vcc, 1, v15
    v_mov_b32 v4, 0xffff
    v_mov_b32 v5, 0xffff0000
    v_cndmask_b32 v15, v4, v5, vcc
    v_lshrrev_b32 v4, 1, v0
    v_lshrrev_b32 v5, 2, v0
    v_and_b32 v5, 4, v5
    v_xor_b32 v4, v4, v5
    v_and_b32 v1, 7, v4""")
    for r in range(4):
        a(f"v_cmp_eq_u32 vcc, {r}, v1\nv_cndmask_b32 v{4+r}, 0, v15, vcc")
    for t in range(4):
        for c in range(2):
            b = C1 + (t*2 + c)*4
            a(f"v_cos_f32 v{b+3}, v{11+c}")
            if t < 3: a(f"v_add_f32 v{11+c}, v{11+c}, v{13+c}")
            a(f"v_cvt_pk_bf16_f32 v{b+3}, v{b+3}, v{b+3}")
            for r in range(4): a(f"v_and_b32 v{b+r}, v{b+3}, v{4+r}")
    a(f"""v_mul_f32 v10, {fhex(1/32)}, v8
    v_mul_f32 v11, 4.0, v9
    v_mul_f32 v12, v11, v10""")
    for i in range(4):
        a(f"v_cos_f32 v{TMP+i}, v12\nv_sin_f32 v{TMP+4+i}, v12")
        if i < 3: a("v_add_f32 v12, v12, v10")
    a("v_lshlrev_b32 v13, 31, v0\nv_lshrrev_b32 v14, 16, v13\nv_or_b32 v13, v13, v14")
    a(f"""v_cvt_pk_bf16_f32 v{C2}, v{TMP}, v{TMP+1}
    v_cvt_pk_bf16_f32 v{C2+1}, v{TMP+2}, v{TMP+3}
    v_cvt_pk_bf16_f32 v{C2+4}, -v{TMP+4}, -v{TMP+5}
    v_cvt_pk_bf16_f32 v{C2+5}, -v{TMP+6}, -v{TMP+7}""")
    for c in range(2):
        b = C2 + 4*c
        a(f"v_xor_b32 v{b+2}, v{b}, v13\nv_xor_b32 v{b+3}, v{b+1}, v13")
        for r in range(4): a(f"v_xor_b32 v{b+8+r}, 0x80000000, v{b+r}")
    a("v_add_f32 v10, v10, v10\nv_mul_f32 v12, v11, v10")
    a("""v_cmp_gt_u32 vcc, 8, v2
    s_andn2_b64 s[42:43], s[40:41], vcc
    s_and_b64 s[44:45], s[40:41], vcc
    v_cndmask_b32 v13, -1, 0, s[42:43]
    v_cndmask_b32 v14, -1, 0, s[44:45]""")
    for i in range(4):
        a(f"""v_cos_f32 v{TMP}, v12
        v_sin_f32 v{TMP+1}, v12
        v_add_f32 v15, s39, v12
        v_cos_f32 v{TMP+2}, v15
        v_sin_f32 v{TMP+3}, v15""")
        if i < 3: a("v_add_f32 v12, v12, v10")
        a(f"""v_cvt_pk_bf16_f32 v{C3A+i}, v{TMP}, v{TMP+1}
        v_cvt_pk_bf16_f32 v{C3A+4+i}, -v{TMP+1}, v{TMP}
        v_cvt_pk_bf16_f32 v{C3B+i}, v{TMP+2}, v{TMP+3}
        v_cvt_pk_bf16_f32 v{C3B+4+i}, -v{TMP+3}, v{TMP+2}""")
    for r in range(8): a(f"v_and_b32 v{C3A+r}, v{C3A+r}, v13\nv_and_b32 v{C3B+r}, v{C3B+r}, v14")
    a(f"v_cvt_f32_u32 v14, s38\nv_mul_f32 v14, {fhex(1/512)}, v14")
    for tau in range(2):
        a(f"v_mul_f32 v10, {fhex(1/512)}, v8")
        if tau: a(f"v_add_f32 v10, {fhex(16/512)}, v10")
        a("v_mul_f32 v12, v11, v10")
        for i in range(4):
            k0 = tau*4 + i; k1 = 8 + k0
            a(f"""v_cos_f32 v{TWC+k0}, v12
            v_sin_f32 v{TWS+k0}, v12
            v_add_f32 v15, v12, v14
            v_cos_f32 v{TWC+k1}, v15
            v_sin_f32 v{TWS+k1}, v15""")
            if i < 3: a("v_add_f32 v12, v12, v10")
    for r in range(48): a(f"v_mov_b32 v{ACC+r}, 0")
    a(f"""v_lshrrev_b32 v10, 5, v0
    v_lshlrev_b32 v10, 10, v10
    v_lshl_add_u32 v10, v2, 5, v10
    v_and_b32 v12, 16, v0
    v_add3_u32 v10, v10, v12, 0
    v_add_u32 v10, {BX}, v10
    v_lshlrev_b32 v11, 6, v2
    v_lshl_add_u32 v11, v3, 4, v11
    v_and_b32 v12, 6, v2
    v_xor_b32 v12, v12, v3
    v_lshlrev_b32 v12, 4, v12
    v_lshl_add_u32 v4, v2, 7, v12
    v_xor_b32 v5, 64, v4
    v_bfe_u32 v12, v0, 2, 3
    v_bfe_u32 v13, v0, 1, 1
    s_lshl_b32 s46, s3, 1
    v_add_u32 v13, s46, v13
    v_and_b32 v14, 6, v12
    v_xor_b32 v13, v13, v14
    v_lshlrev_b32 v13, 4, v13
    v_lshl_add_u32 v13, v12, 7, v13
    v_and_b32 v14, 1, v0
    v_lshl_add_u32 v13, v14, 3, v13
    v_lshrrev_b32 v14, 5, v0
    v_mul_u32_u24 v14, 6144, v14
    v_add3_u32 v6, v13, v14, 0
    v_add_u32 v6, 8192, v6
    s_mul_i32 s47, s2, {ROW}
    s_lshl_b32 s48, s3, 11
    s_add_u32 s48, s48, s47
    s_waitcnt lgkmcnt(0)""")
    srd(a, 24, 10, wsz())
    st.mark()
    a("s_barrier")
    st.mark()
    for u in range(2):
        for t in range(4):
            a(f"ds_read_b128 {q(DAT+(u*4+t)*4)}, v10 offset:{t*2048+u*512}")
    for u in range(2):
        for t in range(4):
            a(f"s_waitcnt lgkmcnt({7-(u*4+t)})")
            for c in range(2):
                acc = AC1 + (u*2+c)*4
                a(f"{MF} {q(acc)}, {q(DAT+(u*4+t)*4)}, {q(C1+(t*2+c)*4)}, {q(acc) if t else 0}")
    for rho in range(2):
        for u in range(2):
            s = AC1 + (u*2+rho)*4
            a(f"v_cvt_pk_bf16_f32 v{OP2+rho*4+u*2}, v{s}, v{s+1}\nv_cvt_pk_bf16_f32 v{OP2+rho*4+u*2+1}, v{s+2}, v{s+3}")
    for rho in range(2):
        for tau in range(2):
            for c in range(2):
                a(f"{MF} {q(AC2+((rho*2+tau)*2+c)*4)}, {q(OP2+rho*4)}, {q(C2+(tau*2+c)*4)}, 0")
    for rho in range(2):
        for tau in range(2):
            xr = AC2 + ((rho*2+tau)*2)*4; xi = xr + 4; k = rho*8 + tau*4
            t0 = TMP + ((rho*2+tau) & 1)*8
            for h in (0, 2):
                a(f"v_pk_mul_f32 {d(t0+h)}, {d(xr+h)}, {d(TWC+k+h)}")
                a(f"v_pk_mul_f32 {d(t0+4+h)}, {d(xi+h)}, {d(TWC+k+h)}")
            for h in (0, 2):
                a(f"v_pk_fma_f32 {d(t0+h)}, {d(xi+h)}, {d(TWS+k+h)}, {d(t0+h)}")
                a(f"v_pk_fma_f32 {d(t0+4+h)}, {d(xr+h)}, {d(TWS+k+h)}, {d(t0+4+h)} neg_lo:[1,0,0] neg_hi:[1,0,0]")
            for i in range(4): a(f"v_cvt_pk_bf16_f32 v{OP3+(rho*2+tau)*4+i}, v{t0+i}, v{t0+4+i}")
    for rho in range(2):
        for tau in range(2):
            for c in range(2):
                acc = AC3 + (tau*2+c)*4
                a(f"{MF} {q(acc)}, {q(OP3+(rho*2+tau)*4)}, {q((C3B if rho else C3A)+4*c)}, {q(acc) if rho else 0}")
    for rho in range(2):
        for c in range(2):
            acc = ACE + 4*c
            a(f"{MF} {q(acc)}, {q(OP3+(rho*2)*4)}, {q((C3A if rho else C3B)+4*c)}, {q(acc) if rho else 0}")
    for tau in range(2):
        for i in range(4): a(f"v_cvt_pk_bf16_f32 v{OUT+tau*4+i}, v{AC3+tau*8+i}, v{AC3+tau*8+4+i}")
        a(f"buffer_store_dwordx4 {q(OUT+tau*4)}, v11, s[24:27], s48 offen offset:{tau*1024}")
    a(f"""s_cmp_eq_u32 s3, 0
    s_cbranch_scc0 K1_NOE
    v_cvt_pk_bf16_f32 v12, v{ACE}, v{ACE+4}
    v_lshrrev_b32 v13, 1, v0
    v_xor_b32 v13, 4, v13
    v_add_u32 v13, 8192, v13
    s_mov_b64 exec, 0x101
    buffer_store_dword v12, v13, s[24:27], s47 offen
    s_mov_b64 exec, -1
    K1_NOE:""")
    st.mark()
    XF = lambda ks, R: 16 + (ks*4 + R)*4
    WF = lambda ks, p: 48 + (ks*3 + p)*4
    def reads(ks):
        L = []
        def w(p):
            for eta in range(2): L.append(f"ds_read_b64_tr_b16 {d(WF(ks,p)+2*eta)}, v6 offset:{(4*ks+eta)*3072 + p*1024}")
        w(0)
        for R in range(4): L.append(f"ds_read_b128 {q(XF(ks,R))}, v{4+ks} offset:{R*2048}")
        w(1); w(2)
        return L
    def mfmas(ks):
        L = []
        for p in range(3):
            for R in range(4):
                acc = ACC + (p*4 + R)*4
                if p == 0: L.append(f"{MF} {q(acc)}, {q(WF(ks,p))}, {q(XF(ks,R))}, {q(acc)}")
                else: L.append(f"{MF} {q(acc)}, {q(XF(ks,R))}, {q(WF(ks,p))}, {q(acc)}")
        return L
    def inter(M, Rd):
        for i, m in enumerate(M):
            a(m)
            if i < len(Rd): a(Rd[i])
    a("s_mov_b32 s45, 0\ns_barrier")
    st.mark()
    for r in reads(0): a(r)
    a("s_branch K1_MID\nK1_LOOP:\ns_barrier")
    inter(mfmas(1), reads(0))
    a("K1_MID:\ns_waitcnt lgkmcnt(0)")
    inter(mfmas(0), reads(1))
    for r in (4, 5, 6): a(f"v_add_u32 v{r}, 0x8000, v{r}\nv_and_b32 v{r}, 0x1ffff, v{r}")
    a("s_add_u32 s45, s45, 1\ns_cmp_lt_u32 s45, 8\ns_waitcnt lgkmcnt(0)\ns_cbranch_scc1 K1_LOOP")
    st.mark()
    M = mfmas(1)
    for m in M[4:] + M[:4]: a(m)
    AQ, AK, AV = ACC, ACC + 16, ACC + 32
    a(f"s_mov_b32 s50, {fhex(1.4426950408889634)}\ns_mov_b32 s51, s50\ns_mov_b32 s52, {fhex(1e-6)}")
    a(f"""s_lshl_b32 s53, s33, 2
    s_add_u32 s53, s53, s3
    s_lshl_b32 s54, s53, 15
    s_lshl_b32 s55, s32, 10
    s_add_u32 s54, s54, s55
    s_add_u32 s54, s54, {KVP_OFF}
    s_lshl_b32 s55, s53, 11
    s_lshr_b32 s56, s32, 4
    s_lshl_b32 s56, s56, 10
    s_add_u32 s55, s55, s56
    s_and_b32 s56, s32, 15
    s_lshl_b32 s56, s56, 4
    s_add_u32 s55, s55, s56
    s_add_u32 s55, s55, {ZP_OFF}
    s_lshl_b32 s56, s32, 5
    s_add_u32 s56, s56, s53
    s_lshl_b32 s56, s56, 11
    s_add_u32 s56, s56, {PQ_OFF}
    v_lshlrev_b32 v7, 4, v0
    v_mov_b32 v72, 0x3f803f80
    v_mov_b32 v73, 0x3f803f80
    v_mov_b32 v74, 0x3f803f80
    v_mov_b32 v75, 0x3f803f80""")
    def phi(src, dst, tmp):
        for h in range(0, 16, 2): a(f"v_pk_mul_f32 {d(tmp+h)}, {d(src+h)}, s[50:51]")
        for h in range(16): a(f"v_exp_f32 v{tmp+h}, v{tmp+h} clamp\nv_max_f32 v{src+h}, s52, v{src+h}")
        for h in range(0, 16, 2): a(f"v_pk_add_f32 {d(src+h)}, {d(src+h)}, {d(tmp+h)}")
        for h in range(8): a(f"v_cvt_pk_bf16_f32 v{dst+h}, v{src+2*h}, v{src+2*h+1}")
    KP, VP, QP, KV, ZZ = 80, 88, 96, 104, 108
    phi(AK, KP, 112)
    for h in range(8): a(f"v_cvt_pk_bf16_f32 v{VP+h}, v{AV+2*h}, v{AV+2*h+1}")
    a(f"""{MF} {q(KV)}, {q(KP)}, {q(VP)}, 0
    {MF} {q(ZZ)}, {q(KP)}, v[72:75], 0
    {MF} {q(KV)}, {q(KP+4)}, {q(VP+4)}, {q(KV)}
    {MF} {q(ZZ)}, {q(KP+4)}, v[72:75], {q(ZZ)}""")
    for h in range(0, 16, 2): a(f"v_pk_mul_f32 {d(128+h)}, {d(AQ+h)}, s[50:51]")
    a(f"""buffer_store_dwordx4 {q(KV)}, v7, s[24:27], s54 offen
    s_mov_b32 exec_lo, 0x10001\n    s_mov_b32 exec_hi, 0x10001
    buffer_store_dwordx4 {q(ZZ)}, v7, s[24:27], s55 offen
    s_mov_b64 exec, -1""")
    for h in range(16): a(f"v_exp_f32 v{128+h}, v{128+h} clamp\nv_max_f32 v{AQ+h}, s52, v{AQ+h}")
    for h in range(0, 16, 2): a(f"v_pk_add_f32 {d(AQ+h)}, {d(AQ+h)}, {d(128+h)}")
    for h in range(8):
        a(f"v_cvt_pk_bf16_f32 v{QP+h}, v{AQ+2*h}, v{AQ+2*h+1}")
        if h % 4 == 3: a(f"buffer_store_dwordx4 {q(QP+h-3)}, v7, s[24:27], s56 offen offset:{(h//4)*1024}")
    st.mark()
    st.dump(24)
    a("K1_END:\ns_endpgm")
    return name, desc(name, 248)

def gen_k2(a):
    name = "k2_kernel"
    begin(a, name)
    st = Stamps(a, 1); st.start()
    a("""s_cmp_gt_u32 s2, 256
    s_cbranch_scc1 K2_END
    s_load_dwordx2 s[10:11], s[0:1], 64
    s_load_dwordx4 s[12:15], s[0:1], 32
    s_load_dwordx2 s[8:9], s[0:1], 16
    v_lshrrev_b32 v1, 6, v0
    v_and_b32 v0, 63, v0
    v_readfirstlane_b32 s3, v1
    v_and_b32 v2, 15, v0
    v_lshrrev_b32 v3, 4, v0
    s_and_b32 s28, s2, 7
    s_bitcmp1_b32 s2, 7
    s_cbranch_scc1 K2_A""")
    a("""s_bfe_u32 s29, s2, 0x10003
    s_lshl_b32 s30, s28, 1
    s_add_u32 s30, s30, s29
    s_and_b32 s31, s2, 0x70
    s_add_u32 s31, s31, s30
    s_lshr_b32 s29, s2, 1
    s_and_b32 s29, s29, 0x80
    s_add_u32 s31, s31, s29
    s_bfe_u32 s32, s2, 0x20005
    s_bfe_u32 s33, s2, 0x10004
    s_lshl_b32 s34, s30, 5
    s_lshl_b32 s33, s33, 4
    s_add_u32 s34, s34, s33""")
    a(f"""v_mul_u32_u24 v4, {64*ROW}, v3
    v_lshl_add_u32 v4, v2, 2, v4
    s_lshl_b32 s35, s31, 6
    s_mul_i32 s36, s3, {2*ROW}
    s_add_u32 s35, s35, s36""")
    for j in range(2):
        for r in range(4): a(f"s_add_u32 s{40+j*4+r}, s35, {(16*r+j)*ROW}")
    a("s_waitcnt lgkmcnt(0)")
    srd(a, 24, 10, wsz())
    DT = 16
    for j in range(2):
        for r in range(4): a(f"buffer_load_dword v{DT+j*4+r}, v4, s[24:27], s{40+j*4+r} offen")
    srd(a, 16, 12, 2048*257*2); srd(a, 20, 14, 2048*257*2)
    a("""s_cmp_ge_u32 s34, 256
    s_cselect_b32 s37, 4, 0
    s_cselect_b32 s38, 0x80000000, 0
    s_cmp_eq_u32 s32, 0
    s_cselect_b32 s36, s37, s32
    s_lshl_b32 s39, s3, 4
    s_add_u32 s36, s36, s39
    v_lshlrev_b32 v5, 9, v3
    v_add_u32 v5, s36, v5
    v_add_u32 v6, s34, v2
    s_cmp_eq_u32 s2, 256
    s_cbranch_scc0 K2_NOX
    v_cmp_eq_u32 vcc, 0, v2
    v_mov_b32 v7, 0x100
    v_cndmask_b32 v6, 0, v7, vcc
    v_cndmask_b32 v7, 4, 0, vcc
    v_add_u32 v5, v5, v7
    K2_NOX:
    v_sub_u32 v7, 1656, v5
    v_sub_u32 v8, 512, v6
    v_and_b32 v8, 0x1ff, v8
    v_mul_u32_u24 v5, 514, v5
    v_mul_u32_u24 v7, 514, v7
    v_lshl_add_u32 v5, v6, 1, v5
    v_lshl_add_u32 v7, v8, 1, v7
    s_cmp_lg_u32 s38, 0
    s_cselect_b64 vcc, -1, 0""")
    a(f"s_cselect_b32 s48, {392*514}, 0\ns_mov_b32 s57, {8*514}\ns_cmov_b32 s57, {-8*514}\ns_lshl_b32 s58, s57, 4")
    for i in range(1, 4): a(f"s_add_u32 s{48+i}, s{47+i}, s58")
    for i in range(4): a(f"s_add_u32 s{52+i}, s{48+i}, s57")
    a("v_cndmask_b32 v9, v5, v7, vcc\nv_cndmask_b32 v10, v7, v5, vcc")
    WR, WI = 24, 32
    if ZERO_D16:
        for k in range(16): a(f"v_mov_b32 v{WR+k}, 0")
    for k in range(8):
        a(f"buffer_load_short_d16_hi v{WR+k}, v9, s[16:19], s{48+k} offen")
        a(f"buffer_load_short_d16_hi v{WI+k}, v9, s[20:23], s{48+k} offen")
    SR, SI = 112, 120
    a("""s_and_b32 s56, s34, 0xff
    s_lshr_b32 s57, s2, 8
    s_or_b32 s56, s56, s57
    s_cmp_eq_u32 s56, 0
    s_cbranch_scc0 K2_NOSEC""")
    for k in range(16): a(f"v_mov_b32 v{SR+k}, 0")
    a("s_cmp_eq_u32 s32, 0\ns_cbranch_scc1 K2_NOSEC")
    for k in range(8):
        a(f"s_sub_u32 s57, {392*514}, s{48+k}")
        a(f"buffer_load_short_d16_hi v{SR+k}, v10, s[16:19], s57 offen")
        a(f"buffer_load_short_d16_hi v{SI+k}, v10, s[20:23], s57 offen")
    a("K2_NOSEC:")
    CA, CB = 40, 56
    a(f"""v_cvt_f32_u32 v11, v2
    v_cvt_f32_u32 v12, v3
    s_lshl_b32 s57, s3, 1
    v_cvt_f32_u32 v13, s57
    v_mul_f32 v11, {fhex(1/16)}, v11
    v_mul_f32 v12, 4.0, v12
    v_mul_f32 v12, v12, v11
    v_mul_f32 v14, {fhex(1/16)}, v11
    v_mul_f32 v13, v13, v14""")
    for r in range(4):
        a(f"""v_add_f32 v15, v12, v13
        v_cos_f32 v64, v15
        v_sin_f32 v65, v15
        v_add_f32 v15, v15, v14
        v_cos_f32 v66, v15
        v_sin_f32 v67, v15
        v_cos_f32 v68, v12
        v_sin_f32 v69, v12
        v_cvt_pk_bf16_f32 v{CA+r}, v64, v65
        v_cvt_pk_bf16_f32 v{CA+4+r}, -v65, v64
        v_cvt_pk_bf16_f32 v{CA+8+r}, v66, v67
        v_cvt_pk_bf16_f32 v{CA+12+r}, -v67, v66
        v_cvt_pk_bf16_f32 v{CB+r}, v68, v69
        v_cvt_pk_bf16_f32 v{CB+4+r}, -v69, v68""")
        if r < 3: a("v_add_f32 v12, v12, v11")
    a("""s_lshr_b32 s57, s3, 1
    s_lshl_b32 s57, s57, 8
    s_and_b32 s58, s3, 1
    s_lshl_b32 s58, s58, 3
    s_add_u32 s57, s57, s58
    v_lshlrev_b32 v11, 12, v3
    v_lshl_add_u32 v11, v2, 4, v11
    v_add_u32 v11, s57, v11
    s_lshl_b32 s57, s3, 11
    v_lshlrev_b32 v12, 4, v0
    v_add_u32 v12, s57, v12""")
    AC, PK, OP = 64, 80, 88
    def stage(consts, ops):
        for j in range(2):
            for c in range(2): a(f"{MF} {q(AC+(j*2+c)*4)}, {q(consts(j)+4*c)}, {q(ops+4*j)}, 0")
    def exchange(buf):
        for i in range(4):
            for j in range(2): a(f"v_cvt_pk_bf16_f32 v{PK+2*i+j}, v{AC+j*8+i}, v{AC+j*8+4+i}")
            a(f"ds_write_b64 v11, {d(PK+2*i)} offset:{buf+i*1024}")
        a("s_waitcnt lgkmcnt(0)\ns_barrier")
        for j in range(2): a(f"ds_read_b128 {q(OP+4*j)}, v12 offset:{buf+j*1024}")
    st.mark()
    a("s_waitcnt vmcnt(16)")
    st.mark()
    stage(lambda j: CA + 8*j, DT)
    exchange(0)
    a("s_waitcnt vmcnt(0)")
    st.mark()
    a("s_cmp_eq_u32 s56, 0\ns_cbranch_scc0 K2_NOFIX\ns_mov_b32 exec_lo, 0x10001\n    s_mov_b32 exec_hi, 0x10001")
    for k in range(8):
        a(f"v_add_f32 v{WR+k}, v{WR+k}, v{SR+k}\nv_sub_f32 v{WI+k}, v{WI+k}, v{SI+k}")
        a(f"v_mul_f32 v{WR+k}, 0.5, v{WR+k}\nv_mul_f32 v{WI+k}, 0.5, v{WI+k}")
    a("s_mov_b64 exec, -1\nK2_NOFIX:")
    for k in range(8): a(f"v_xor_b32 v{WI+k}, s38, v{WI+k}")
    a("s_waitcnt lgkmcnt(0)")
    stage(lambda j: CB, OP)
    T0 = 96
    for j in range(2):
        xr = AC + j*8; xi = xr + 4; t = T0 + j*8
        for h in (0, 2):
            a(f"v_pk_mul_f32 {d(t+h)}, {d(xr+h)}, {d(WR+j*4+h)}")
            a(f"v_pk_mul_f32 {d(t+4+h)}, {d(xi+h)}, {d(WR+j*4+h)}")
        for h in (0, 2):
            a(f"v_pk_fma_f32 {d(t+h)}, {d(xi+h)}, {d(WI+j*4+h)}, {d(t+h)} neg_lo:[1,0,0] neg_hi:[1,0,0]")
            a(f"v_pk_fma_f32 {d(t+4+h)}, {d(xr+h)}, {d(WI+j*4+h)}, {d(t+4+h)}")
        for i in range(4): a(f"v_cvt_pk_bf16_f32 v{OP+4*j+i}, v{t+i}, -v{t+4+i}")
    stage(lambda j: CA + 8*j, OP)
    exchange(16384)
    a(f"v_add_u32 v4, {U_OFF}, v4")
    a("s_waitcnt lgkmcnt(0)")
    stage(lambda j: CB, OP)
    for j in range(2):
        for i in range(4):
            a(f"v_cvt_pk_bf16_f32 v{PK+j*4+i}, v{AC+j*8+i}, -v{AC+j*8+4+i}")
            a(f"buffer_store_dword v{PK+j*4+i}, v4, s[24:27], s{40+j*4+i} offen")
    st.mark()
    st.dump(24)
    a("s_endpgm")
    st.reset()
    a(f"""K2_A:
    s_bfe_u32 s29, s2, 0x20003
    s_lshl_b32 s30, s28, 2
    s_add_u32 s30, s30, s29
    s_bfe_u32 s31, s2, 0x20005
    s_lshl_b32 s31, s31, 3
    s_add_u32 s31, s31, s3
    s_lshl_b32 s32, s30, 15
    s_lshl_b32 s33, s3, 12
    s_add_u32 s32, s32, s33
    s_add_u32 s32, s32, {KVP_OFF}
    s_lshl_b32 s33, s30, 11
    s_add_u32 s33, s33, {ZP_OFF}
    s_lshl_b32 s34, s31, 5
    s_add_u32 s34, s34, s30
    s_lshl_b32 s34, s34, 11
    s_add_u32 s34, s34, {PQ_OFF}
    v_lshlrev_b32 v4, 4, v0
    s_waitcnt lgkmcnt(0)""")
    srd(a, 24, 10, wsz())
    for k in range(4): a(f"buffer_load_dwordx4 {q(16+4*k)}, v4, s[24:27], s32 offen offset:{k*1024}")
    for k in range(2): a(f"buffer_load_dwordx4 {q(32+4*k)}, v4, s[24:27], s33 offen offset:{k*1024}")
    for k in range(2): a(f"buffer_load_dwordx4 {q(40+4*k)}, v4, s[24:27], s34 offen offset:{k*1024}")
    a(f"""s_lshl_b32 s35, s3, 10
    v_add_u32 v5, s35, v4
    s_lshl_b32 s36, s31, 16
    s_lshr_b32 s37, s30, 1
    s_lshl_b32 s37, s37, 10
    s_add_u32 s36, s36, s37
    s_and_b32 s37, s30, 1
    s_lshl_b32 s37, s37, 3
    s_add_u32 s36, s36, s37
    s_add_u32 s36, s36, {O_OFF}
    s_mov_b32 s38, {fhex(1e-6)}
    s_waitcnt vmcnt(4)""")
    st.mark()
    a("""v_pk_add_f32 v[16:17], v[16:17], v[20:21]
    v_pk_add_f32 v[18:19], v[18:19], v[22:23]
    v_pk_add_f32 v[24:25], v[24:25], v[28:29]
    v_pk_add_f32 v[26:27], v[26:27], v[30:31]
    v_pk_add_f32 v[16:17], v[16:17], v[24:25]
    v_pk_add_f32 v[18:19], v[18:19], v[26:27]
    ds_write_b128 v5, v[16:19]
    s_waitcnt vmcnt(2)
    v_pk_add_f32 v[32:33], v[32:33], v[36:37]
    v_pk_add_f32 v[34:35], v[34:35], v[38:39]
    s_waitcnt lgkmcnt(0)
    s_barrier""")
    for k in range(8): a(f"ds_read_b128 {q(48+4*k)}, v4 offset:{k*1024}")
    for sh in (8, 4, 2, 1):
        for r in range(4): a(f"v_add_f32_dpp v{32+r}, v{32+r}, v{32+r} row_ror:{sh} row_mask:0xf bank_mask:0xf")
    a("v_cvt_pk_bf16_f32 v36, v32, v33\nv_cvt_pk_bf16_f32 v37, v34, v35")
    a("s_waitcnt vmcnt(0)")
    M16 = "v_mfma_f32_16x16x16_bf16"
    for R in range(4): a(f"{M16} {q(96+4*R)}, v[36:37], {d(40+2*R)}, 0")
    for k in range(0, 8, 2):
        a(f"s_waitcnt lgkmcnt({6-k})")
        for h in (0, 2): a(f"v_pk_add_f32 {d(48+4*k+h)}, {d(48+4*k+h)}, {d(52+4*k+h)}")
    for k in (0, 4):
        for h in (0, 2): a(f"v_pk_add_f32 {d(48+4*k+h)}, {d(48+4*k+h)}, {d(56+4*k+h)}")
    for h in (0, 2): a(f"v_pk_add_f32 {d(48+h)}, {d(48+h)}, {d(64+h)}")
    a("v_cvt_pk_bf16_f32 v38, v48, v49\nv_cvt_pk_bf16_f32 v39, v50, v51")
    for R in range(4): a(f"{M16} {q(80+4*R)}, v[38:39], {d(40+2*R)}, 0")
    for R in range(4): a(f"v_add_f32 v{96+4*R}, s38, v{96+4*R}")
    for R in range(4): a(f"v_rcp_f32 v{96+4*R}, v{96+4*R}")
    for R in range(4):
        for h in (0, 2): a(f"v_pk_mul_f32 {d(80+4*R+h)}, {d(80+4*R+h)}, {d(96+4*R)} op_sel_hi:[1,0]")
        a(f"v_cvt_pk_bf16_f32 v{112+2*R}, v{80+4*R}, v{81+4*R}\nv_cvt_pk_bf16_f32 v{113+2*R}, v{82+4*R}, v{83+4*R}")
        a(f"buffer_store_dwordx2 {d(112+2*R)}, v4, s[24:27], s36 offen")
        if R < 3: a("s_add_u32 s36, s36, 16384")
    st.mark()
    st.dump(24)
    a("K2_END:\ns_endpgm")
    return name, desc(name, 128)

def gen_k3(a):
    name = "k3_kernel"
    begin(a, name)
    st = Stamps(a, 2); st.start()
    UB = 131072
    a("""s_cmp_ge_u32 s2, 256
    s_cbranch_scc1 K3_END
    s_load_dwordx2 s[4:5], s[0:1], 16
    s_load_dwordx2 s[6:7], s[0:1], 48
    s_load_dwordx2 s[10:11], s[0:1], 64
    v_lshrrev_b32 v1, 6, v0
    v_and_b32 v0, 63, v0
    v_readfirstlane_b32 s3, v1
    s_and_b32 s28, s2, 7
    s_lshl_b32 s32, s28, 2
    s_bfe_u32 s29, s2, 0x20003
    s_add_u32 s32, s32, s29
    s_lshr_b32 s33, s2, 5
    s_cmp_ge_u32 s3, 4
    s_cbranch_scc0 K3_COMPUTE""")
    a(f"""s_sub_u32 s34, s3, 4
    s_mov_b32 s35, s33
    v_lshrrev_b32 v2, 3, v0
    v_and_b32 v3, 7, v0
    v_and_b32 v4, 6, v2
    v_xor_b32 v3, v3, v4
    v_lshlrev_b32 v3, 4, v3
    v_lshl_add_u32 v6, v2, 10, v3
    v_lshlrev_b32 v7, 4, v0
    s_lshl_b32 s36, s32, 16
    s_lshl_b32 s37, s34, 14
    s_add_u32 s36, s36, s37
    s_add_u32 s36, s36, {O_OFF}
    s_lshl_b32 s38, s33, 7
    s_add_u32 s37, s37, s38
    s_lshl_b32 s38, s34, 11
    s_mul_i32 s40, s2, {ROW}
    s_add_u32 s40, s40, s38
    s_add_u32 s40, s40, {U_OFF}
    s_waitcnt lgkmcnt(0)""")
    srd(a, 20, 4, 0x80000); srd(a, 24, 10, wsz())
    a(f"""s_add_u32 m0, s38, {UB}
    s_nop 0
    buffer_load_dwordx4 v7, s[24:27], s40 offen lds
    buffer_load_dwordx4 v7, s[24:27], s40 offen offset:1024 lds""")
    def issue():
        a("""s_lshl_b32 s43, s35, 11
        s_add_u32 s43, s43, s36
        s_mov_b32 m0, s38
        s_lshl_b32 s44, s35, 16
        buffer_load_dwordx4 v7, s[24:27], s43 offen lds
        buffer_load_dwordx4 v7, s[24:27], s43 offen offset:1024 lds
        s_add_u32 s44, s44, s37
        s_add_u32 m0, s38, 8192
        s_add_u32 s35, s35, 1
        buffer_load_dwordx4 v6, s[20:23], s44 offen lds
        s_add_u32 s44, s44, 7168
        s_and_b32 s35, s35, 7
        buffer_load_dwordx4 v6, s[20:23], s44 offen offset:1024 lds
        s_add_u32 s38, s38, 16384""")
    issue(); issue()
    a("s_waitcnt vmcnt(8)\ns_barrier")
    st.mark()
    a("s_mov_b32 s45, 0\nK3_LLOOP:")
    issue()
    a("s_add_u32 s45, s45, 1\ns_cmp_lt_u32 s45, 6\ns_cbranch_scc1 K3_LLOOP")
    st.mark()
    for c in range(4): a(f"s_waitcnt vmcnt({24-8*c})\ns_barrier")
    st.mark()
    st.dump(24)
    a("s_endpgm")
    st.reset()
    a("K3_COMPUTE:")
    C1, C2, TWC, TWS, C3, DAT, AC1, OP2, AC2, INI = 16, 40, 48, 56, 64, 80, 112, 144, 160, 192
    TMP, OP3, AC3, OUT = 80, 112, 128, 144
    a(f"""v_and_b32 v2, 15, v0
    v_lshrrev_b32 v3, 4, v0
    v_cvt_f32_u32 v8, v2
    v_cvt_f32_u32 v9, v3
    s_mul_i32 s40, s2, {ROW}
    s_add_u32 s40, s40, {U_OFF+8192}
    s_lshl_b32 s34, s3, 9
    s_add_u32 s34, s34, s2
    v_and_b32 v10, 1, v0
    v_lshlrev_b32 v10, 8, v10
    v_add_u32 v10, s34, v10
    v_cvt_f32_u32 v10, v10
    v_mul_f32 v10, {fhex(1/2048)}, v10
    v_lshrrev_b32 v11, 5, v0
    v_cvt_f32_u32 v11, v11
    s_waitcnt lgkmcnt(0)""")
    srd(a, 24, 10, wsz()); srd(a, 20, 6, 0x400000)
    a("s_buffer_load_dwordx2 s[42:43], s[24:27], s40")
    a("""v_lshrrev_b32 v4, 1, v0
    v_lshrrev_b32 v5, 2, v0
    v_and_b32 v5, 4, v5
    v_xor_b32 v4, v4, v5
    v_and_b32 v1, 7, v4""")
    for r in range(4): a(f"v_cmp_eq_u32 vcc, {r}, v1\nv_cndmask_b32 v{4+r}, 0, -1, vcc")
    a(f"""v_mul_f32 v12, v11, v10
    v_mov_b32 v13, 0xc0400000
    v_fma_f32 v13, v13, v11, 4.0
    v_mul_f32 v13, v13, v10
    v_add_f32 v14, 2.0, v11
    v_mul_f32 v14, v14, v10""")
    for k in range(3):
        b = C1 + 8*k
        a(f"""v_cos_f32 v{TMP}, v{12+k}
        v_sin_f32 v{TMP+1}, v{12+k}
        v_mul_f32 v{TMP}, {fhex(2.0**-19)}, v{TMP}
        v_mul_f32 v{TMP+1}, {fhex(2.0**-19)}, v{TMP+1}
        v_cvt_pk_bf16_f32 v{b+3}, v{TMP}, -v{TMP+1}
        v_cvt_pk_bf16_f32 v{b+7}, v{TMP+1}, v{TMP}""")
        for c in range(2):
            for r in range(4): a(f"v_and_b32 v{b+4*c+r}, v{b+4*c+3}, v{4+r}")
    a(f"""v_mul_f32 v12, {fhex(1/16)}, v8
    v_mul_f32 v13, v9, v12
    v_mul_f32 v12, 4.0, v12""")
    for v in range(4):
        a(f"""v_cos_f32 v{TMP}, v13
        v_sin_f32 v{TMP+1}, v13""")
        if v < 3: a("v_add_f32 v13, v13, v12")
        a(f"""v_cvt_pk_bf16_f32 v{C2+v}, v{TMP}, -v{TMP+1}
        v_cvt_pk_bf16_f32 v{C2+4+v}, v{TMP+1}, v{TMP}""")
    a(f"""v_bfe_u32 v12, v0, 4, 1
    v_cvt_f32_u32 v12, v12
    v_add_f32 v12, v12, v12
    v_mov_b32 v13, 0x41800000
    v_fma_f32 v12, v11, v13, v12
    v_mul_f32 v13, {fhex(1/512)}, v8
    v_mul_f32 v14, v12, v13
    v_mul_f32 v15, {fhex(3.0)}, v13""")
    for i in range(4):
        for ph in range(2):
            k = i*2 + ph
            kap = i >> 1; r = (i & 1)*2 + ph
            a(f"""v_cos_f32 v{TWC+k}, v14
            v_sin_f32 v{TWS+k}, v14
            v_mul_f32 v12, 0x41800000, v14
            v_cos_f32 v{TMP}, v12
            v_sin_f32 v{TMP+1}, v12""")
            if k < 7: a(f"v_add_f32 v14, v14, v{15 if ph else 13}")
            a(f"v_cvt_pk_bf16_f32 v{C3+kap*8+r}, v{TMP}, -v{TMP+1}")
            if ph: a(f"v_cvt_pk_bf16_f32 v{C3+kap*8+4+r}, -v{TMP}, v{TMP+1}")
            else: a(f"v_cvt_pk_bf16_f32 v{C3+kap*8+4+r}, v{TMP}, -v{TMP+1}")
    a(f"""v_cvt_f32_u32 v12, s2
    v_mul_f32 v12, {fhex(1/512)}, v12
    v_cos_f32 v13, v12
    v_sin_f32 v14, v12
    s_waitcnt lgkmcnt(0)
    s_lshl_b32 s44, s42, 16
    s_lshl_b32 s45, s43, 16
    s_and_b32 s46, s43, 0xffff0000
    v_mul_f32 v13, s45, v13
    v_mul_f32 v14, s46, v14
    v_sub_f32 v13, v13, v14
    v_mov_b32 v14, s44
    v_mul_f32 v13, {fhex(2.0**-20)}, v13
    v_mul_f32 v14, {fhex(2.0**-20)}, v14
    v_add_f32 v{INI}, v13, v14
    v_sub_f32 v{INI+1}, v13, v14
    v_add_f32 v{INI+2}, v13, v14
    v_sub_f32 v{INI+3}, v13, v14
    v_sub_f32 v{INI+4}, v14, v13
    v_sub_f32 v{INI+5}, -v13, v14
    v_sub_f32 v{INI+6}, v14, v13
    v_sub_f32 v{INI+7}, -v13, v14""")
    ACC = 200
    a(f"""v_lshlrev_b32 v10, 10, v3
    v_lshl_add_u32 v10, v2, 4, v10
    v_add_u32 v10, {UB}, v10
    v_lshlrev_b32 v11, 5, v2
    v_lshl_add_u32 v11, v3, 3, v11
    s_lshl_b32 s47, s34, 11
    s_add_u32 s47, s47, 1024
    s_add_u32 s48, s47, 0x80000
    s_lshr_b32 s49, s3, 1
    s_and_b32 s50, s3, 1
    s_lshl_b32 s51, s49, 12
    v_lshlrev_b32 v4, 4, v0
    v_add_u32 v4, s51, v4
    v_bfe_u32 v12, v0, 2, 3
    v_bfe_u32 v13, v0, 1, 1
    s_lshl_b32 s51, s50, 2
    v_add_u32 v13, s51, v13
    v_and_b32 v14, 6, v12
    v_xor_b32 v13, v13, v14
    v_lshlrev_b32 v13, 4, v13
    v_lshl_add_u32 v13, v12, 7, v13
    v_and_b32 v14, 1, v0
    v_lshl_add_u32 v13, v14, 3, v13
    v_lshrrev_b32 v14, 5, v0
    v_lshl_add_u32 v5, v14, 10, v13
    v_add_u32 v5, 8192, v5
    v_xor_b32 v6, 32, v5
    v_lshlrev_b32 v7, 11, v2
    v_and_b32 v12, 1, v3
    v_lshl_add_u32 v7, v12, 5, v7
    v_lshrrev_b32 v12, 1, v3
    v_lshl_add_u32 v7, v12, 4, v7
    s_lshl_b32 s52, s32, 17
    s_lshl_b32 s53, s49, 16
    s_add_u32 s52, s52, s53
    s_lshl_b32 s53, s33, 7
    s_add_u32 s52, s52, s53
    s_lshl_b32 s53, s50, 6
    s_add_u32 s52, s52, s53
    s_add_u32 s53, s52, 0x8000""")
    for r in range(16): a(f"v_mov_b32 v{ACC+r}, 0")
    st.mark()
    a("s_barrier")
    st.mark()
    for v in range(4):
        for t in range(2): a(f"ds_read_b128 {q(DAT+(v*2+t)*4)}, v10 offset:{t*4096+v*256}")
    for v in range(4):
        for t in range(2):
            a(f"s_waitcnt lgkmcnt({7-(v*2+t)})")
            cs = C1 + (16 if t else 8*(v >> 1))
            for c in range(2):
                acc = AC1 + (v*2+c)*4
                a(f"{MF} {q(acc)}, {q(DAT+(v*2+t)*4)}, {q(cs+4*c)}, {q(acc) if t else 0}")
    for v in range(4):
        for i in range(4): a(f"v_cvt_pk_bf16_f32 v{OP2+i*4+v}, v{AC1+v*8+i}, v{AC1+v*8+4+i}")
    for i in range(4):
        for c in range(2): a(f"{MF} {q(AC2+(i*2+c)*4)}, {q(OP2+i*4)}, {q(C2+4*c)}, 0")
    for i in range(4):
        xr = AC2 + i*8; xi = xr + 4; t0 = TMP + (i & 1)*8
        for ph in range(2):
            sel = "op_sel:[0,1] op_sel_hi:[1,1]" if ph else "op_sel_hi:[1,0]"
            a(f"v_pk_mul_f32 {d(t0+2*ph)}, {d(xr+2*ph)}, {d(TWC+2*i)} {sel}")
            a(f"v_pk_mul_f32 {d(t0+4+2*ph)}, {d(xi+2*ph)}, {d(TWC+2*i)} {sel}")
        for ph in range(2):
            sel = "op_sel:[0,1,0] op_sel_hi:[1,1,1]" if ph else "op_sel_hi:[1,0,1]"
            a(f"v_pk_fma_f32 {d(t0+2*ph)}, {d(xi+2*ph)}, {d(TWS+2*i)}, {d(t0+2*ph)} {sel} neg_lo:[1,0,0] neg_hi:[1,0,0]")
            a(f"v_pk_fma_f32 {d(t0+4+2*ph)}, {d(xr+2*ph)}, {d(TWS+2*i)}, {d(t0+4+2*ph)} {sel}")
        for ph in range(2):
            for rho in range(2):
                a(f"v_cvt_pk_bf16_f32 v{OP3+(rho*2+(i>>1))*4+(i&1)*2+ph}, v{t0+2*ph+rho}, v{t0+4+2*ph+rho}")
    for kap in range(2):
        for rho in range(2):
            for th in range(2):
                acc = AC3 + (rho*2+th)*4
                a(f"{MF} {q(acc)}, {q(OP3+(rho*2+kap)*4)}, {q(C3+kap*8+th*4)}, {q(acc) if kap else q(INI+4*rho)}")
    for rho in range(2):
        for th in range(2):
            acc = AC3 + (rho*2+th)*4; o = OUT + (rho*2+th)*2
            a(f"v_cvt_pk_bf16_f32 v{o}, v{acc}, v{acc+1}\nv_cvt_pk_bf16_f32 v{o+1}, v{acc+2}, v{acc+3}")
            a(f"buffer_store_dwordx2 {d(o)}, v11, s[20:23], s{47+rho} offen offset:{th*512}")
    st.mark()
    OF = lambda s, R: 16 + (s*2 + R)*4
    WF = lambda s, t: 48 + (s*2 + t)*4
    def reads(s):
        ch, ks = s >> 1, s & 1
        L = []
        for t in range(2):
            for eta in range(2):
                L.append(f"ds_read_b64_tr_b16 {d(WF(s,t)+2*eta)}, v{5+t} offset:{ch*16384 + (4*ks+2*eta)*1024}")
            L.append(f"ds_read_b128 {q(OF(s,t))}, v4 offset:{ch*16384 + t*2048 + ks*1024}")
        return L
    def mfmas(s):
        return [f"{MF} {q(ACC+(R*2+t)*4)}, {q(WF(s,t))}, {q(OF(s,R))}, {q(ACC+(R*2+t)*4)}" for (R, t) in ((0,0),(1,0),(0,1),(1,1))]
    a("s_mov_b32 s45, 0\nK3_LOOP:\ns_barrier")
    for r in reads(0) + reads(1): a(r)
    a("s_waitcnt lgkmcnt(6)")
    R2 = reads(2); R3 = reads(3)
    M = mfmas(0)
    a(M[0]); a(R2[0]); a(R2[1]); a(M[1]); a(R2[2]); a(R2[3]); a(M[2]); a(R2[4]); a(R2[5]); a(M[3])
    a("s_waitcnt lgkmcnt(6)")
    M = mfmas(1)
    a(M[0]); a(R3[0]); a(R3[1]); a(M[1]); a(R3[2]); a(R3[3]); a(M[2]); a(R3[4]); a(R3[5]); a(M[3])
    a("s_waitcnt lgkmcnt(6)")
    for m in mfmas(2): a(m)
    for r in (4, 5, 6): a(f"v_add_u32 v{r}, 0x8000, v{r}")
    a("s_add_u32 s45, s45, 1\ns_cmp_lt_u32 s45, 4\ns_waitcnt lgkmcnt(0)")
    for m in mfmas(3): a(m)
    a("s_cbranch_scc1 K3_LOOP")
    st.mark()
    for R in range(2):
        o = 80 + R*4
        for t in range(2):
            acc = ACC + (R*2+t)*4
            a(f"v_cvt_pk_bf16_f32 v{o+2*t}, v{acc}, v{acc+1}\nv_cvt_pk_bf16_f32 v{o+2*t+1}, v{acc+2}, v{acc+3}")
        a(f"v_permlane16_swap_b32 v{o}, v{o+2}\nv_permlane16_swap_b32 v{o+1}, v{o+3}")
        a(f"buffer_store_dwordx4 {q(o)}, v7, s[20:23], s{52+R} offen")
    st.mark()
    st.dump(24)
    a("K3_END:\ns_endpgm")
    return name, desc(name, 216)

HEADER = open("concat_heads__linear_attn_block__spectral_gfnet__prompt.s.ref").read().split("; Override")[0]

def main(out):
    parts = []; descs = []
    for g in (gen_k1, gen_k2, gen_k3):
        a = Asm(); n, ds = g(a); parts.append(a.finalize()); descs.append(ds)
    hdr = HEADER + """; @launch kernel=k1_kernel grid=(256,1,1) block=(512,1,1) lds=139264
; @launch kernel=k2_kernel grid=(264,1,1) block=(512,1,1) lds=32768
; @launch kernel=k3_kernel grid=(256,1,1) block=(512,1,1) lds=139264
.amdgcn_target "amdgcn-amd-amdhsa--gfx950"
.text
"""
    open(out, "w").write(hdr + "".join(parts) + "".join(descs))

if __name__ == "__main__":
    if len(sys.argv) > 2 and sys.argv[2] == "stamp": STAMP = True
    main(sys.argv[1])
```

```python
import sys, struct
from asm import Asm

T_OFF = 0; ROW = 8320; U_OFF = 0x240000; PQ_OFF = 0x480000; KVP_OFF = 0x680000; ZP_OFF = 0x780000
O_OFF = 0x800000; WS_SIZE = 0xA00000; DBG_OFF = 0xA00000
STAMP = False
DBGMODE = False
LBL = 0
ZERO_D16 = True

def fhex(x): return "0x%08x" % struct.unpack("<I", struct.pack("<f", x))[0]
def q(b): return "v[%d:%d]" % (b, b + 3)
def d(b): return "v[%d:%d]" % (b, b + 1)
MF = "v_mfma_f32_16x16x32_bf16"

def srd(a, r, lo, size):
    a(f"s_mov_b32 s{r}, s{lo}\ns_mov_b32 s{r+1}, s{lo+1}\ns_mov_b32 s{r+2}, {size}\ns_mov_b32 s{r+3}, 0x20000")

def begin(a, name):
    a(f".globl {name}\n.p2align 8\n.type {name},@function\n{name}:")

def desc(name, vgpr, sgpr=96):
    acc = (vgpr + 3) // 4 * 4
    return f'''.section .rodata,"a"
.p2align 6
.amdhsa_kernel {name}
  .amdhsa_next_free_vgpr {vgpr}
  .amdhsa_next_free_sgpr {sgpr}
  .amdhsa_accum_offset {acc}
  .amdhsa_group_segment_fixed_size 0
  .amdhsa_kernarg_size 72
  .amdhsa_user_sgpr_count 2
  .amdhsa_user_sgpr_kernarg_segment_ptr 1
  .amdhsa_system_sgpr_workgroup_id_x 1
.end_amdhsa_kernel
.text
'''

class Stamps:
    def __init__(self, a, kidx): self.a = a; self.k = kidx; self.n = 0
    def start(self):
        if STAMP: self.a("s_memtime s[64:65]\ns_memrealtime s[62:63]")
    def reset(self): self.n = 0
    def mark(self):
        if STAMP and self.n < 14:
            self.n += 1
            self.a(f"s_memtime s[{64+2*self.n}:{65+2*self.n}]")
    def dump(self, wsrd, sel=None):
        if not STAMP: return
        a = self.a
        a("s_memrealtime s[60:61]")
        if DBGMODE:
            global LBL
            LBL += 1
            a("s_load_dwordx2 s[56:57], s[0:1], 56")
            a("s_waitcnt vmcnt(0) lgkmcnt(0)")
            a(f"s_and_b32 s59, s2, 31\ns_cmp_eq_u32 s59, 0\ns_cbranch_scc0 DBG_SKIP{LBL}")
            a(f"s_add_u32 s56, s56, {512*(2-self.k)}\ns_addc_u32 s57, s57, 0\ns_mov_b32 s58, 256\ns_mov_b32 s59, 0x20000")
            a("s_mov_b64 exec, 1\nv_mov_b32 v15, 0")
            a(f"s_not_b32 s62, s62\nv_mov_b32 v16, s62\nbuffer_atomic_umax v16, v15, s[56:59], 0 offen offset:{self.k*8}")
            a(f"v_mov_b32 v17, s60\nbuffer_atomic_umax v17, v15, s[56:59], 0 offen offset:{self.k*8+4}")
            for i, (mk, slot) in enumerate(sel or []):
                a(f"s_sub_u32 s55, s{64+2*mk}, s64\nv_mov_b32 v{18+i}, s55\nbuffer_atomic_umax v{18+i}, v15, s[56:59], 0 offen offset:{slot*4}")
            a(f"DBG_SKIP{LBL}:")
            return
        a("s_waitcnt vmcnt(0) lgkmcnt(0)")
        a("s_mov_b64 exec, 1")
        for i in range(14):
            if i < self.n: a(f"s_sub_u32 s59, s{66+2*i}, s64\nv_mov_b32 v{16+i}, s59")
            else: a(f"v_mov_b32 v{16+i}, 0")
        a("v_mov_b32 v30, s62\nv_mov_b32 v31, s60")
        a(f"s_lshl_b32 s59, s2, 3\ns_add_u32 s59, s59, s3\ns_lshl_b32 s59, s59, 6\ns_add_u32 s59, s59, {DBG_OFF + self.k*0x40000}")
        a("v_mov_b32 v15, s59")
        for j in range(4): a(f"buffer_store_dwordx4 {q(16+4*j)}, v15, s[{wsrd}:{wsrd+3}], 0 offen offset:{16*j}")

def wsz(): return WS_SIZE + (0x100000 if STAMP else 0)

def gen_k1(a):
    name = "k1_kernel"
    begin(a, name)
    st = Stamps(a, 0); st.start()
    BX = 131072
    a("""s_cmp_ge_u32 s2, 256
    s_cbranch_scc1 K1_END
    s_load_dwordx4 s[4:7], s[0:1], 0
    s_load_dwordx2 s[8:9], s[0:1], 24
    s_load_dwordx2 s[10:11], s[0:1], 64
    s_load_dwordx4 s[12:15], s[0:1], 32
    v_lshrrev_b32 v1, 6, v0
    v_and_b32 v0, 63, v0
    v_readfirstlane_b32 s3, v1
    s_and_b32 s28, s2, 7
    s_lshr_b32 s29, s2, 3
    s_and_b32 s30, s29, 7
    s_lshr_b32 s31, s29, 3
    s_lshr_b32 s32, s28, 1
    s_lshl_b32 s32, s32, 3
    s_add_u32 s32, s32, s30
    s_and_b32 s33, s28, 1
    s_lshl_b32 s33, s33, 2
    s_add_u32 s33, s33, s31
    s_cmp_ge_u32 s3, 4
    s_cbranch_scc0 K1_COMPUTE""")
    a("""s_sub_u32 s34, s3, 4
    s_lshl_b32 s35, s31, 1
    s_add_u32 s35, s35, s30
    s_and_b32 s35, s35, 7
    v_lshrrev_b32 v2, 3, v0
    v_and_b32 v3, 7, v0
    v_and_b32 v4, 6, v2
    v_xor_b32 v3, v3, v4
    v_lshlrev_b32 v3, 4, v3
    v_lshl_add_u32 v5, v2, 10, v3
    v_and_b32 v4, 3, v2
    v_lshrrev_b32 v6, 2, v2
    v_lshl_add_u32 v4, v6, 3, v4
    v_mul_u32_u24 v4, 3072, v4
    v_add_u32 v6, v4, v3
    v_lshlrev_b32 v7, 4, v0
    s_lshl_b32 s36, s32, 16
    s_lshl_b32 s37, s34, 14
    s_add_u32 s36, s36, s37
    s_lshl_b32 s37, s33, 7
    s_mul_i32 s38, s34, 49152
    s_add_u32 s37, s37, s38
    s_lshl_b32 s38, s34, 11
    s_mul_i32 s39, s34, 6144
    s_add_u32 s39, s39, 8192
    s_lshl_b32 s40, s34, 19
    s_lshl_b32 s41, s2, 10
    s_add_u32 s40, s40, s41
    s_mov_b32 s42, 0
    s_waitcnt lgkmcnt(0)""")
    srd(a, 16, 4, 0x200000); srd(a, 20, 6, 0x180000); srd(a, 24, 8, 0x200000)
    a(f"""s_add_u32 m0, s38, {BX}
    s_add_u32 s41, s40, 0x40000
    buffer_load_dwordx4 v7, s[24:27], s40 offen lds
    s_add_u32 m0, s38, {BX+1024}
    s_nop 0
    buffer_load_dwordx4 v7, s[24:27], s41 offen lds""")
    def issue():
        a("""s_lshl_b32 s43, s35, 7
        s_add_u32 s43, s43, s36
        s_add_u32 m0, s42, s38
        s_mul_i32 s44, s35, 196608
        buffer_load_dwordx4 v5, s[16:19], s43 offen lds
        s_add_u32 s43, s43, 7168
        s_add_u32 s44, s44, s37
        buffer_load_dwordx4 v5, s[16:19], s43 offen offset:1024 lds
        s_add_u32 m0, s42, s39
        s_add_u32 s35, s35, 1
        buffer_load_dwordx4 v6, s[20:23], s44 offen lds
        buffer_load_dwordx4 v6, s[20:23], s44 offen offset:1024 lds
        buffer_load_dwordx4 v6, s[20:23], s44 offen offset:2048 lds
        s_add_u32 m0, m0, 3072
        s_add_u32 s44, s44, 12288
        buffer_load_dwordx4 v6, s[20:23], s44 offen lds
        buffer_load_dwordx4 v6, s[20:23], s44 offen offset:1024 lds
        buffer_load_dwordx4 v6, s[20:23], s44 offen offset:2048 lds
        s_and_b32 s35, s35, 7
        s_add_u32 s42, s42, 32768
        s_and_b32 s42, s42, 0x1ffff""")
    issue()
    a("s_waitcnt vmcnt(8)\ns_barrier")
    st.mark()
    issue()
    a("s_mov_b32 s45, 0\nK1_LLOOP:\ns_waitcnt vmcnt(8)\ns_barrier")
    issue()
    a("s_add_u32 s45, s45, 1\ns_cmp_lt_u32 s45, 6\ns_cbranch_scc1 K1_LLOOP")
    st.mark()
    a("s_waitcnt vmcnt(8)\ns_barrier\ns_waitcnt vmcnt(0)\ns_barrier")
    st.mark()
    if STAMP: srd(a, 24, 10, wsz())
    st.dump(24, None)
    a("s_endpgm")
    st.reset()
    a("K1_COMPUTE:")
    C1, C2, TWC, TWS, C3A, C3B, DAT, AC1, OP2, AC2 = 16, 48, 64, 80, 96, 104, 112, 144, 160, 168
    OP3, TMP, AC3, ACE, OUT = 112, 128, 144, 160, 168
    ACC = 200
    a("""v_and_b32 v2, 15, v0
    v_lshrrev_b32 v3, 4, v0
    v_cvt_f32_u32 v8, v2
    v_cvt_f32_u32 v9, v3""")
    a("""s_lshl_b32 s34, s3, 8
    s_mul_i32 s35, s2, s3
    s_add_u32 s37, s35, 512
    s_cmp_eq_u32 s3, 0
    s_cselect_b32 s36, 1024, s34
    s_cselect_b32 s37, 0, s37
    s_cselect_b32 s38, s2, 0
    s_cselect_b32 s39, 0, 0xbe800000
    s_cselect_b64 s[40:41], -1, 0
    v_lshrrev_b32 v10, 5, v0
    v_mov_b32 v11, s35
    v_mov_b32 v12, s37
    v_mad_u32_u24 v11, v10, s34, v11
    v_mad_u32_u24 v12, v10, s36, v12
    v_cvt_f32_u32 v11, v11
    v_cvt_f32_u32 v12, v12
    v_cvt_f32_u32 v13, s34
    v_cvt_f32_u32 v14, s36""")
    a(f"""v_mul_f32 v11, {fhex(1/2048)}, v11
    v_mul_f32 v12, {fhex(1/2048)}, v12
    v_mul_f32 v13, {fhex(2/2048)}, v13
    v_mul_f32 v14, {fhex(2/2048)}, v14""")
    a("""v_and_b32 v15, 1, v0
    v_cmp_eq_u32 vcc, 1, v15
    v_mov_b32 v4, 0xffff
    v_mov_b32 v5, 0xffff0000
    v_cndmask_b32 v15, v4, v5, vcc
    v_lshrrev_b32 v4, 1, v0
    v_lshrrev_b32 v5, 2, v0
    v_and_b32 v5, 4, v5
    v_xor_b32 v4, v4, v5
    v_and_b32 v1, 7, v4""")
    for r in range(4):
        a(f"v_cmp_eq_u32 vcc, {r}, v1\nv_cndmask_b32 v{4+r}, 0, v15, vcc")
    for t in range(4):
        for c in range(2):
            b = C1 + (t*2 + c)*4
            a(f"v_cos_f32 v{b+3}, v{11+c}")
            if t < 3: a(f"v_add_f32 v{11+c}, v{11+c}, v{13+c}")
            a(f"v_cvt_pk_bf16_f32 v{b+3}, v{b+3}, v{b+3}")
            for r in range(4): a(f"v_and_b32 v{b+r}, v{b+3}, v{4+r}")
    a(f"""v_mul_f32 v10, {fhex(1/32)}, v8
    v_mul_f32 v11, 4.0, v9
    v_mul_f32 v12, v11, v10""")
    for i in range(4):
        a(f"v_cos_f32 v{TMP+i}, v12\nv_sin_f32 v{TMP+4+i}, v12")
        if i < 3: a("v_add_f32 v12, v12, v10")
    a("v_lshlrev_b32 v13, 31, v0\nv_lshrrev_b32 v14, 16, v13\nv_or_b32 v13, v13, v14")
    a(f"""v_cvt_pk_bf16_f32 v{C2}, v{TMP}, v{TMP+1}
    v_cvt_pk_bf16_f32 v{C2+1}, v{TMP+2}, v{TMP+3}
    v_cvt_pk_bf16_f32 v{C2+4}, -v{TMP+4}, -v{TMP+5}
    v_cvt_pk_bf16_f32 v{C2+5}, -v{TMP+6}, -v{TMP+7}""")
    for c in range(2):
        b = C2 + 4*c
        a(f"v_xor_b32 v{b+2}, v{b}, v13\nv_xor_b32 v{b+3}, v{b+1}, v13")
        for r in range(4): a(f"v_xor_b32 v{b+8+r}, 0x80000000, v{b+r}")
    a("v_add_f32 v10, v10, v10\nv_mul_f32 v12, v11, v10")
    a("""v_cmp_gt_u32 vcc, 8, v2
    s_andn2_b64 s[42:43], s[40:41], vcc
    s_and_b64 s[44:45], s[40:41], vcc
    v_cndmask_b32 v13, -1, 0, s[42:43]
    v_cndmask_b32 v14, -1, 0, s[44:45]""")
    for i in range(4):
        a(f"""v_cos_f32 v{TMP}, v12
        v_sin_f32 v{TMP+1}, v12
        v_add_f32 v15, s39, v12
        v_cos_f32 v{TMP+2}, v15
        v_sin_f32 v{TMP+3}, v15""")
        if i < 3: a("v_add_f32 v12, v12, v10")
        a(f"""v_cvt_pk_bf16_f32 v{C3A+i}, v{TMP}, v{TMP+1}
        v_cvt_pk_bf16_f32 v{C3A+4+i}, -v{TMP+1}, v{TMP}
        v_cvt_pk_bf16_f32 v{C3B+i}, v{TMP+2}, v{TMP+3}
        v_cvt_pk_bf16_f32 v{C3B+4+i}, -v{TMP+3}, v{TMP+2}""")
    for r in range(8): a(f"v_and_b32 v{C3A+r}, v{C3A+r}, v13\nv_and_b32 v{C3B+r}, v{C3B+r}, v14")
    a(f"v_cvt_f32_u32 v14, s38\nv_mul_f32 v14, {fhex(1/512)}, v14")
    for tau in range(2):
        a(f"v_mul_f32 v10, {fhex(1/512)}, v8")
        if tau: a(f"v_add_f32 v10, {fhex(16/512)}, v10")
        a("v_mul_f32 v12, v11, v10")
        for i in range(4):
            k0 = tau*4 + i; k1 = 8 + k0
            a(f"""v_cos_f32 v{TWC+k0}, v12
            v_sin_f32 v{TWS+k0}, v12
            v_add_f32 v15, v12, v14
            v_cos_f32 v{TWC+k1}, v15
            v_sin_f32 v{TWS+k1}, v15""")
            if i < 3: a("v_add_f32 v12, v12, v10")
    for r in range(48): a(f"v_mov_b32 v{ACC+r}, 0")
    a(f"""v_lshrrev_b32 v10, 5, v0
    v_lshlrev_b32 v10, 10, v10
    v_lshl_add_u32 v10, v2, 5, v10
    v_and_b32 v12, 16, v0
    v_add3_u32 v10, v10, v12, 0
    v_add_u32 v10, {BX}, v10
    v_lshlrev_b32 v11, 6, v2
    v_lshl_add_u32 v11, v3, 4, v11
    v_and_b32 v12, 6, v2
    v_xor_b32 v12, v12, v3
    v_lshlrev_b32 v12, 4, v12
    v_lshl_add_u32 v4, v2, 7, v12
    v_xor_b32 v5, 64, v4
    v_bfe_u32 v12, v0, 2, 3
    v_bfe_u32 v13, v0, 1, 1
    s_lshl_b32 s46, s3, 1
    v_add_u32 v13, s46, v13
    v_and_b32 v14, 6, v12
    v_xor_b32 v13, v13, v14
    v_lshlrev_b32 v13, 4, v13
    v_lshl_add_u32 v13, v12, 7, v13
    v_and_b32 v14, 1, v0
    v_lshl_add_u32 v13, v14, 3, v13
    v_lshrrev_b32 v14, 5, v0
    v_mul_u32_u24 v14, 6144, v14
    v_add3_u32 v6, v13, v14, 0
    v_add_u32 v6, 8192, v6
    s_mul_i32 s47, s2, {ROW}
    s_lshl_b32 s48, s3, 11
    s_add_u32 s48, s48, s47
    s_waitcnt lgkmcnt(0)""")
    srd(a, 24, 10, wsz())
    st.mark()
    a("s_barrier")
    st.mark()
    for u in range(2):
        for t in range(4):
            a(f"ds_read_b128 {q(DAT+(u*4+t)*4)}, v10 offset:{t*2048+u*512}")
    for u in range(2):
        for t in range(4):
            a(f"s_waitcnt lgkmcnt({7-(u*4+t)})")
            for c in range(2):
                acc = AC1 + (u*2+c)*4
                a(f"{MF} {q(acc)}, {q(DAT+(u*4+t)*4)}, {q(C1+(t*2+c)*4)}, {q(acc) if t else 0}")
    for rho in range(2):
        for u in range(2):
            s = AC1 + (u*2+rho)*4
            a(f"v_cvt_pk_bf16_f32 v{OP2+rho*4+u*2}, v{s}, v{s+1}\nv_cvt_pk_bf16_f32 v{OP2+rho*4+u*2+1}, v{s+2}, v{s+3}")
    for rho in range(2):
        for tau in range(2):
            for c in range(2):
                a(f"{MF} {q(AC2+((rho*2+tau)*2+c)*4)}, {q(OP2+rho*4)}, {q(C2+(tau*2+c)*4)}, 0")
    for rho in range(2):
        for tau in range(2):
            xr = AC2 + ((rho*2+tau)*2)*4; xi = xr + 4; k = rho*8 + tau*4
            t0 = TMP + ((rho*2+tau) & 1)*8
            for h in (0, 2):
                a(f"v_pk_mul_f32 {d(t0+h)}, {d(xr+h)}, {d(TWC+k+h)}")
                a(f"v_pk_mul_f32 {d(t0+4+h)}, {d(xi+h)}, {d(TWC+k+h)}")
            for h in (0, 2):
                a(f"v_pk_fma_f32 {d(t0+h)}, {d(xi+h)}, {d(TWS+k+h)}, {d(t0+h)}")
                a(f"v_pk_fma_f32 {d(t0+4+h)}, {d(xr+h)}, {d(TWS+k+h)}, {d(t0+4+h)} neg_lo:[1,0,0] neg_hi:[1,0,0]")
            for i in range(4): a(f"v_cvt_pk_bf16_f32 v{OP3+(rho*2+tau)*4+i}, v{t0+i}, v{t0+4+i}")
    for rho in range(2):
        for tau in range(2):
            for c in range(2):
                acc = AC3 + (tau*2+c)*4
                a(f"{MF} {q(acc)}, {q(OP3+(rho*2+tau)*4)}, {q((C3B if rho else C3A)+4*c)}, {q(acc) if rho else 0}")
    for rho in range(2):
        for c in range(2):
            acc = ACE + 4*c
            a(f"{MF} {q(acc)}, {q(OP3+(rho*2)*4)}, {q((C3A if rho else C3B)+4*c)}, {q(acc) if rho else 0}")
    for tau in range(2):
        for i in range(4): a(f"v_cvt_pk_bf16_f32 v{OUT+tau*4+i}, v{AC3+tau*8+i}, v{AC3+tau*8+4+i}")
        a(f"buffer_store_dwordx4 {q(OUT+tau*4)}, v11, s[24:27], s48 offen offset:{tau*1024}")
    a(f"""s_cmp_eq_u32 s3, 0
    s_cbranch_scc0 K1_NOE
    v_cvt_pk_bf16_f32 v12, v{ACE}, v{ACE+4}
    v_lshrrev_b32 v13, 1, v0
    v_xor_b32 v13, 4, v13
    v_add_u32 v13, 8192, v13
    s_mov_b64 exec, 0x101
    buffer_store_dword v12, v13, s[24:27], s47 offen
    s_mov_b64 exec, -1
    K1_NOE:""")
    st.mark()
    XF = lambda ks, R: 16 + (ks*4 + R)*4
    WF = lambda ks, p: 48 + (ks*3 + p)*4
    def reads(ks):
        L = []
        def w(p):
            for eta in range(2): L.append(f"ds_read_b64_tr_b16 {d(WF(ks,p)+2*eta)}, v6 offset:{(4*ks+eta)*3072 + p*1024}")
        w(0)
        for R in range(4): L.append(f"ds_read_b128 {q(XF(ks,R))}, v{4+ks} offset:{R*2048}")
        w(1); w(2)
        return L
    def mfmas(ks):
        L = []
        for p in range(3):
            for R in range(4):
                acc = ACC + (p*4 + R)*4
                if p == 0: L.append(f"{MF} {q(acc)}, {q(WF(ks,p))}, {q(XF(ks,R))}, {q(acc)}")
                else: L.append(f"{MF} {q(acc)}, {q(XF(ks,R))}, {q(WF(ks,p))}, {q(acc)}")
        return L
    def inter(M, Rd):
        for i, m in enumerate(M):
            a(m)
            if i < len(Rd): a(Rd[i])
    a("s_mov_b32 s45, 0\ns_barrier")
    st.mark()
    for r in reads(0): a(r)
    a("s_branch K1_MID\nK1_LOOP:\ns_barrier")
    inter(mfmas(1), reads(0))
    a("K1_MID:\ns_waitcnt lgkmcnt(0)")
    inter(mfmas(0), reads(1))
    for r in (4, 5, 6): a(f"v_add_u32 v{r}, 0x8000, v{r}\nv_and_b32 v{r}, 0x1ffff, v{r}")
    a("s_add_u32 s45, s45, 1\ns_cmp_lt_u32 s45, 8\ns_waitcnt lgkmcnt(0)\ns_cbranch_scc1 K1_LOOP")
    st.mark()
    M = mfmas(1)
    for m in M[4:] + M[:4]: a(m)
    AQ, AK, AV = ACC, ACC + 16, ACC + 32
    a(f"s_mov_b32 s50, {fhex(1.4426950408889634)}\ns_mov_b32 s51, s50\ns_mov_b32 s52, {fhex(1e-6)}")
    a(f"""s_lshl_b32 s53, s33, 2
    s_add_u32 s53, s53, s3
    s_lshl_b32 s54, s53, 15
    s_lshl_b32 s55, s32, 10
    s_add_u32 s54, s54, s55
    s_add_u32 s54, s54, {KVP_OFF}
    s_lshl_b32 s55, s53, 11
    s_lshr_b32 s56, s32, 4
    s_lshl_b32 s56, s56, 10
    s_add_u32 s55, s55, s56
    s_and_b32 s56, s32, 15
    s_lshl_b32 s56, s56, 4
    s_add_u32 s55, s55, s56
    s_add_u32 s55, s55, {ZP_OFF}
    s_lshl_b32 s56, s32, 5
    s_add_u32 s56, s56, s53
    s_lshl_b32 s56, s56, 11
    s_add_u32 s56, s56, {PQ_OFF}
    v_lshlrev_b32 v7, 4, v0
    v_mov_b32 v72, 0x3f803f80
    v_mov_b32 v73, 0x3f803f80
    v_mov_b32 v74, 0x3f803f80
    v_mov_b32 v75, 0x3f803f80""")
    def phi(src, dst, tmp):
        for h in range(0, 16, 2): a(f"v_pk_mul_f32 {d(tmp+h)}, {d(src+h)}, s[50:51]")
        for h in range(16): a(f"v_exp_f32 v{tmp+h}, v{tmp+h} clamp\nv_max_f32 v{src+h}, s52, v{src+h}")
        for h in range(0, 16, 2): a(f"v_pk_add_f32 {d(src+h)}, {d(src+h)}, {d(tmp+h)}")
        for h in range(8): a(f"v_cvt_pk_bf16_f32 v{dst+h}, v{src+2*h}, v{src+2*h+1}")
    KP, VP, QP, KV, ZZ = 80, 88, 96, 104, 108
    phi(AK, KP, 112)
    for h in range(8): a(f"v_cvt_pk_bf16_f32 v{VP+h}, v{AV+2*h}, v{AV+2*h+1}")
    a(f"""{MF} {q(KV)}, {q(KP)}, {q(VP)}, 0
    {MF} {q(ZZ)}, {q(KP)}, v[72:75], 0
    {MF} {q(KV)}, {q(KP+4)}, {q(VP+4)}, {q(KV)}
    {MF} {q(ZZ)}, {q(KP+4)}, v[72:75], {q(ZZ)}""")
    for h in range(0, 16, 2): a(f"v_pk_mul_f32 {d(128+h)}, {d(AQ+h)}, s[50:51]")
    a(f"""buffer_store_dwordx4 {q(KV)}, v7, s[24:27], s54 offen
    s_mov_b32 exec_lo, 0x10001\n    s_mov_b32 exec_hi, 0x10001
    buffer_store_dwordx4 {q(ZZ)}, v7, s[24:27], s55 offen
    s_mov_b64 exec, -1""")
    for h in range(16): a(f"v_exp_f32 v{128+h}, v{128+h} clamp\nv_max_f32 v{AQ+h}, s52, v{AQ+h}")
    for h in range(0, 16, 2): a(f"v_pk_add_f32 {d(AQ+h)}, {d(AQ+h)}, {d(128+h)}")
    for h in range(8):
        a(f"v_cvt_pk_bf16_f32 v{QP+h}, v{AQ+2*h}, v{AQ+2*h+1}")
        if h % 4 == 3: a(f"buffer_store_dwordx4 {q(QP+h-3)}, v7, s[24:27], s56 offen offset:{(h//4)*1024}")
    st.mark()
    st.dump(24, [(1,6),(4,7),(5,8),(6,9)])
    a("K1_END:\ns_endpgm")
    return name, desc(name, 248)

def gen_k2(a):
    name = "k2_kernel"
    begin(a, name)
    st = Stamps(a, 1); st.start()
    a("""s_cmp_gt_u32 s2, 256
    s_cbranch_scc1 K2_END
    s_load_dwordx2 s[10:11], s[0:1], 64
    s_load_dwordx4 s[12:15], s[0:1], 32
    s_load_dwordx2 s[8:9], s[0:1], 16
    v_lshrrev_b32 v1, 6, v0
    v_and_b32 v0, 63, v0
    v_readfirstlane_b32 s3, v1
    v_and_b32 v2, 15, v0
    v_lshrrev_b32 v3, 4, v0
    s_and_b32 s28, s2, 7
    s_bitcmp1_b32 s2, 7
    s_cbranch_scc1 K2_A""")
    a("""s_bfe_u32 s29, s2, 0x10003
    s_lshl_b32 s30, s28, 1
    s_add_u32 s30, s30, s29
    s_and_b32 s31, s2, 0x70
    s_add_u32 s31, s31, s30
    s_lshr_b32 s29, s2, 1
    s_and_b32 s29, s29, 0x80
    s_add_u32 s31, s31, s29
    s_bfe_u32 s32, s2, 0x20005
    s_bfe_u32 s33, s2, 0x10004
    s_lshl_b32 s34, s30, 5
    s_lshl_b32 s33, s33, 4
    s_add_u32 s34, s34, s33""")
    a(f"""v_mul_u32_u24 v4, {64*ROW}, v3
    v_lshl_add_u32 v4, v2, 2, v4
    s_lshl_b32 s35, s31, 6
    s_mul_i32 s36, s3, {2*ROW}
    s_add_u32 s35, s35, s36""")
    for j in range(2):
        for r in range(4): a(f"s_add_u32 s{40+j*4+r}, s35, {(16*r+j)*ROW}")
    a("s_waitcnt lgkmcnt(0)")
    srd(a, 24, 10, wsz())
    DT = 16
    for j in range(2):
        for r in range(4): a(f"buffer_load_dword v{DT+j*4+r}, v4, s[24:27], s{40+j*4+r} offen")
    srd(a, 16, 12, 2048*257*2); srd(a, 20, 14, 2048*257*2)
    a("""s_cmp_ge_u32 s34, 256
    s_cselect_b32 s37, 4, 0
    s_cselect_b32 s38, 0x80000000, 0
    s_cmp_eq_u32 s32, 0
    s_cselect_b32 s36, s37, s32
    s_lshl_b32 s39, s3, 4
    s_add_u32 s36, s36, s39
    v_lshlrev_b32 v5, 9, v3
    v_add_u32 v5, s36, v5
    v_add_u32 v6, s34, v2
    s_cmp_eq_u32 s2, 256
    s_cbranch_scc0 K2_NOX
    v_cmp_eq_u32 vcc, 0, v2
    v_mov_b32 v7, 0x100
    v_cndmask_b32 v6, 0, v7, vcc
    v_cndmask_b32 v7, 4, 0, vcc
    v_add_u32 v5, v5, v7
    K2_NOX:
    v_sub_u32 v7, 1656, v5
    v_sub_u32 v8, 512, v6
    v_and_b32 v8, 0x1ff, v8
    v_mul_u32_u24 v5, 514, v5
    v_mul_u32_u24 v7, 514, v7
    v_lshl_add_u32 v5, v6, 1, v5
    v_lshl_add_u32 v7, v8, 1, v7
    s_cmp_lg_u32 s38, 0
    s_cselect_b64 vcc, -1, 0""")
    a(f"s_cselect_b32 s48, {392*514}, 0\ns_mov_b32 s57, {8*514}\ns_cmov_b32 s57, {-8*514}\ns_lshl_b32 s58, s57, 4")
    for i in range(1, 4): a(f"s_add_u32 s{48+i}, s{47+i}, s58")
    for i in range(4): a(f"s_add_u32 s{52+i}, s{48+i}, s57")
    a("v_cndmask_b32 v9, v5, v7, vcc\nv_cndmask_b32 v10, v7, v5, vcc")
    WR, WI = 24, 32
    if ZERO_D16:
        for k in range(16): a(f"v_mov_b32 v{WR+k}, 0")
    for k in range(8):
        a(f"buffer_load_short_d16_hi v{WR+k}, v9, s[16:19], s{48+k} offen")
        a(f"buffer_load_short_d16_hi v{WI+k}, v9, s[20:23], s{48+k} offen")
    SR, SI = 112, 120
    a("""s_and_b32 s56, s34, 0xff
    s_lshr_b32 s57, s2, 8
    s_or_b32 s56, s56, s57
    s_cmp_eq_u32 s56, 0
    s_cbranch_scc0 K2_NOSEC""")
    for k in range(16): a(f"v_mov_b32 v{SR+k}, 0")
    a("s_cmp_eq_u32 s32, 0\ns_cbranch_scc1 K2_NOSEC")
    for k in range(8):
        a(f"s_sub_u32 s57, {392*514}, s{48+k}")
        a(f"buffer_load_short_d16_hi v{SR+k}, v10, s[16:19], s57 offen")
        a(f"buffer_load_short_d16_hi v{SI+k}, v10, s[20:23], s57 offen")
    a("K2_NOSEC:")
    CA, CB = 40, 56
    a(f"""v_cvt_f32_u32 v11, v2
    v_cvt_f32_u32 v12, v3
    s_lshl_b32 s57, s3, 1
    v_cvt_f32_u32 v13, s57
    v_mul_f32 v11, {fhex(1/16)}, v11
    v_mul_f32 v12, 4.0, v12
    v_mul_f32 v12, v12, v11
    v_mul_f32 v14, {fhex(1/16)}, v11
    v_mul_f32 v13, v13, v14""")
    for r in range(4):
        a(f"""v_add_f32 v15, v12, v13
        v_cos_f32 v64, v15
        v_sin_f32 v65, v15
        v_add_f32 v15, v15, v14
        v_cos_f32 v66, v15
        v_sin_f32 v67, v15
        v_cos_f32 v68, v12
        v_sin_f32 v69, v12
        v_cvt_pk_bf16_f32 v{CA+r}, v64, v65
        v_cvt_pk_bf16_f32 v{CA+4+r}, -v65, v64
        v_cvt_pk_bf16_f32 v{CA+8+r}, v66, v67
        v_cvt_pk_bf16_f32 v{CA+12+r}, -v67, v66
        v_cvt_pk_bf16_f32 v{CB+r}, v68, v69
        v_cvt_pk_bf16_f32 v{CB+4+r}, -v69, v68""")
        if r < 3: a("v_add_f32 v12, v12, v11")
    a("""s_lshr_b32 s57, s3, 1
    s_lshl_b32 s57, s57, 8
    s_and_b32 s58, s3, 1
    s_lshl_b32 s58, s58, 3
    s_add_u32 s57, s57, s58
    v_lshlrev_b32 v11, 12, v3
    v_lshl_add_u32 v11, v2, 4, v11
    v_add_u32 v11, s57, v11
    s_lshl_b32 s57, s3, 11
    v_lshlrev_b32 v12, 4, v0
    v_add_u32 v12, s57, v12""")
    AC, PK, OP = 64, 80, 88
    def stage(consts, ops):
        for j in range(2):
            for c in range(2): a(f"{MF} {q(AC+(j*2+c)*4)}, {q(consts(j)+4*c)}, {q(ops+4*j)}, 0")
    def exchange(buf):
        for i in range(4):
            for j in range(2): a(f"v_cvt_pk_bf16_f32 v{PK+2*i+j}, v{AC+j*8+i}, v{AC+j*8+4+i}")
            a(f"ds_write_b64 v11, {d(PK+2*i)} offset:{buf+i*1024}")
        a("s_waitcnt lgkmcnt(0)\ns_barrier")
        for j in range(2): a(f"ds_read_b128 {q(OP+4*j)}, v12 offset:{buf+j*1024}")
    st.mark()
    a("s_waitcnt vmcnt(16)")
    st.mark()
    stage(lambda j: CA + 8*j, DT)
    exchange(0)
    a("s_waitcnt vmcnt(0)")
    st.mark()
    a("s_cmp_eq_u32 s56, 0\ns_cbranch_scc0 K2_NOFIX\ns_mov_b32 exec_lo, 0x10001\n    s_mov_b32 exec_hi, 0x10001")
    for k in range(8):
        a(f"v_add_f32 v{WR+k}, v{WR+k}, v{SR+k}\nv_sub_f32 v{WI+k}, v{WI+k}, v{SI+k}")
        a(f"v_mul_f32 v{WR+k}, 0.5, v{WR+k}\nv_mul_f32 v{WI+k}, 0.5, v{WI+k}")
    a("s_mov_b64 exec, -1\nK2_NOFIX:")
    for k in range(8): a(f"v_xor_b32 v{WI+k}, s38, v{WI+k}")
    a("s_waitcnt lgkmcnt(0)")
    stage(lambda j: CB, OP)
    T0 = 96
    for j in range(2):
        xr = AC + j*8; xi = xr + 4; t = T0 + j*8
        for h in (0, 2):
            a(f"v_pk_mul_f32 {d(t+h)}, {d(xr+h)}, {d(WR+j*4+h)}")
            a(f"v_pk_mul_f32 {d(t+4+h)}, {d(xi+h)}, {d(WR+j*4+h)}")
        for h in (0, 2):
            a(f"v_pk_fma_f32 {d(t+h)}, {d(xi+h)}, {d(WI+j*4+h)}, {d(t+h)} neg_lo:[1,0,0] neg_hi:[1,0,0]")
            a(f"v_pk_fma_f32 {d(t+4+h)}, {d(xr+h)}, {d(WI+j*4+h)}, {d(t+4+h)}")
        for i in range(4): a(f"v_cvt_pk_bf16_f32 v{OP+4*j+i}, v{t+i}, -v{t+4+i}")
    stage(lambda j: CA + 8*j, OP)
    exchange(16384)
    a(f"v_add_u32 v4, {U_OFF}, v4")
    a("s_waitcnt lgkmcnt(0)")
    stage(lambda j: CB, OP)
    for j in range(2):
        for i in range(4):
            a(f"v_cvt_pk_bf16_f32 v{PK+j*4+i}, v{AC+j*8+i}, -v{AC+j*8+4+i}")
            a(f"buffer_store_dword v{PK+j*4+i}, v4, s[24:27], s{40+j*4+i} offen")
    st.mark()
    st.dump(24, [(1,10),(4,11)])
    a("s_endpgm")
    st.reset()
    a(f"""K2_A:
    s_bfe_u32 s29, s2, 0x20003
    s_lshl_b32 s30, s28, 2
    s_add_u32 s30, s30, s29
    s_bfe_u32 s31, s2, 0x20005
    s_lshl_b32 s31, s31, 3
    s_add_u32 s31, s31, s3
    s_lshl_b32 s32, s30, 15
    s_lshl_b32 s33, s3, 12
    s_add_u32 s32, s32, s33
    s_add_u32 s32, s32, {KVP_OFF}
    s_lshl_b32 s33, s30, 11
    s_add_u32 s33, s33, {ZP_OFF}
    s_lshl_b32 s34, s31, 5
    s_add_u32 s34, s34, s30
    s_lshl_b32 s34, s34, 11
    s_add_u32 s34, s34, {PQ_OFF}
    v_lshlrev_b32 v4, 4, v0
    s_waitcnt lgkmcnt(0)""")
    srd(a, 24, 10, wsz())
    for k in range(4): a(f"buffer_load_dwordx4 {q(16+4*k)}, v4, s[24:27], s32 offen offset:{k*1024}")
    for k in range(2): a(f"buffer_load_dwordx4 {q(32+4*k)}, v4, s[24:27], s33 offen offset:{k*1024}")
    for k in range(2): a(f"buffer_load_dwordx4 {q(40+4*k)}, v4, s[24:27], s34 offen offset:{k*1024}")
    a(f"""s_lshl_b32 s35, s3, 10
    v_add_u32 v5, s35, v4
    s_lshl_b32 s36, s31, 16
    s_lshr_b32 s37, s30, 1
    s_lshl_b32 s37, s37, 10
    s_add_u32 s36, s36, s37
    s_and_b32 s37, s30, 1
    s_lshl_b32 s37, s37, 3
    s_add_u32 s36, s36, s37
    s_add_u32 s36, s36, {O_OFF}
    s_mov_b32 s38, {fhex(1e-6)}
    s_waitcnt vmcnt(4)""")
    st.mark()
    a("""v_pk_add_f32 v[16:17], v[16:17], v[20:21]
    v_pk_add_f32 v[18:19], v[18:19], v[22:23]
    v_pk_add_f32 v[24:25], v[24:25], v[28:29]
    v_pk_add_f32 v[26:27], v[26:27], v[30:31]
    v_pk_add_f32 v[16:17], v[16:17], v[24:25]
    v_pk_add_f32 v[18:19], v[18:19], v[26:27]
    ds_write_b128 v5, v[16:19]
    s_waitcnt vmcnt(2)
    v_pk_add_f32 v[32:33], v[32:33], v[36:37]
    v_pk_add_f32 v[34:35], v[34:35], v[38:39]
    s_waitcnt lgkmcnt(0)
    s_barrier""")
    for k in range(8): a(f"ds_read_b128 {q(48+4*k)}, v4 offset:{k*1024}")
    for sh in (8, 4, 2, 1):
        for r in range(4): a(f"v_add_f32_dpp v{32+r}, v{32+r}, v{32+r} row_ror:{sh} row_mask:0xf bank_mask:0xf")
    a("v_cvt_pk_bf16_f32 v36, v32, v33\nv_cvt_pk_bf16_f32 v37, v34, v35")
    a("s_waitcnt vmcnt(0)")
    M16 = "v_mfma_f32_16x16x16_bf16"
    for R in range(4): a(f"{M16} {q(96+4*R)}, v[36:37], {d(40+2*R)}, 0")
    for k in range(0, 8, 2):
        a(f"s_waitcnt lgkmcnt({6-k})")
        for h in (0, 2): a(f"v_pk_add_f32 {d(48+4*k+h)}, {d(48+4*k+h)}, {d(52+4*k+h)}")
    for k in (0, 4):
        for h in (0, 2): a(f"v_pk_add_f32 {d(48+4*k+h)}, {d(48+4*k+h)}, {d(56+4*k+h)}")
    for h in (0, 2): a(f"v_pk_add_f32 {d(48+h)}, {d(48+h)}, {d(64+h)}")
    a("v_cvt_pk_bf16_f32 v38, v48, v49\nv_cvt_pk_bf16_f32 v39, v50, v51")
    for R in range(4): a(f"{M16} {q(80+4*R)}, v[38:39], {d(40+2*R)}, 0")
    for R in range(4): a(f"v_add_f32 v{96+4*R}, s38, v{96+4*R}")
    for R in range(4): a(f"v_rcp_f32 v{96+4*R}, v{96+4*R}")
    for R in range(4):
        for h in (0, 2): a(f"v_pk_mul_f32 {d(80+4*R+h)}, {d(80+4*R+h)}, {d(96+4*R)} op_sel_hi:[1,0]")
        a(f"v_cvt_pk_bf16_f32 v{112+2*R}, v{80+4*R}, v{81+4*R}\nv_cvt_pk_bf16_f32 v{113+2*R}, v{82+4*R}, v{83+4*R}")
        a(f"buffer_store_dwordx2 {d(112+2*R)}, v4, s[24:27], s36 offen")
        if R < 3: a("s_add_u32 s36, s36, 16384")
    st.mark()
    st.dump(24, [(2,12)])
    a("K2_END:\ns_endpgm")
    return name, desc(name, 128)

def gen_k3(a):
    name = "k3_kernel"
    begin(a, name)
    st = Stamps(a, 2); st.start()
    UB = 131072
    a("""s_cmp_ge_u32 s2, 256
    s_cbranch_scc1 K3_END
    s_load_dwordx2 s[4:5], s[0:1], 16
    s_load_dwordx2 s[6:7], s[0:1], 48
    s_load_dwordx2 s[10:11], s[0:1], 64
    v_lshrrev_b32 v1, 6, v0
    v_and_b32 v0, 63, v0
    v_readfirstlane_b32 s3, v1
    s_and_b32 s28, s2, 7
    s_lshl_b32 s32, s28, 2
    s_bfe_u32 s29, s2, 0x20003
    s_add_u32 s32, s32, s29
    s_lshr_b32 s33, s2, 5
    s_cmp_ge_u32 s3, 4
    s_cbranch_scc0 K3_COMPUTE""")
    a(f"""s_sub_u32 s34, s3, 4
    s_mov_b32 s35, s33
    v_lshrrev_b32 v2, 3, v0
    v_and_b32 v3, 7, v0
    v_and_b32 v4, 6, v2
    v_xor_b32 v3, v3, v4
    v_lshlrev_b32 v3, 4, v3
    v_lshl_add_u32 v6, v2, 10, v3
    v_lshlrev_b32 v7, 4, v0
    s_lshl_b32 s36, s32, 16
    s_lshl_b32 s37, s34, 14
    s_add_u32 s36, s36, s37
    s_add_u32 s36, s36, {O_OFF}
    s_lshl_b32 s38, s33, 7
    s_add_u32 s37, s37, s38
    s_lshl_b32 s38, s34, 11
    s_mul_i32 s40, s2, {ROW}
    s_add_u32 s40, s40, s38
    s_add_u32 s40, s40, {U_OFF}
    s_waitcnt lgkmcnt(0)""")
    srd(a, 20, 4, 0x80000); srd(a, 24, 10, wsz())
    a(f"""s_add_u32 m0, s38, {UB}
    s_nop 0
    buffer_load_dwordx4 v7, s[24:27], s40 offen lds
    buffer_load_dwordx4 v7, s[24:27], s40 offen offset:1024 lds""")
    def issue():
        a("""s_lshl_b32 s43, s35, 11
        s_add_u32 s43, s43, s36
        s_mov_b32 m0, s38
        s_lshl_b32 s44, s35, 16
        buffer_load_dwordx4 v7, s[24:27], s43 offen lds
        buffer_load_dwordx4 v7, s[24:27], s43 offen offset:1024 lds
        s_add_u32 s44, s44, s37
        s_add_u32 m0, s38, 8192
        s_add_u32 s35, s35, 1
        buffer_load_dwordx4 v6, s[20:23], s44 offen lds
        s_add_u32 s44, s44, 7168
        s_and_b32 s35, s35, 7
        buffer_load_dwordx4 v6, s[20:23], s44 offen offset:1024 lds
        s_add_u32 s38, s38, 16384""")
    issue(); issue()
    a("s_waitcnt vmcnt(8)\ns_barrier")
    st.mark()
    a("s_mov_b32 s45, 0\nK3_LLOOP:")
    issue()
    a("s_add_u32 s45, s45, 1\ns_cmp_lt_u32 s45, 6\ns_cbranch_scc1 K3_LLOOP")
    st.mark()
    for c in range(4): a(f"s_waitcnt vmcnt({24-8*c})\ns_barrier")
    st.mark()
    st.dump(24, None)
    a("s_endpgm")
    st.reset()
    a("K3_COMPUTE:")
    C1, C2, TWC, TWS, C3, DAT, AC1, OP2, AC2, INI = 16, 40, 48, 56, 64, 80, 112, 144, 160, 192
    TMP, OP3, AC3, OUT = 80, 112, 128, 144
    a(f"""v_and_b32 v2, 15, v0
    v_lshrrev_b32 v3, 4, v0
    v_cvt_f32_u32 v8, v2
    v_cvt_f32_u32 v9, v3
    s_mul_i32 s40, s2, {ROW}
    s_add_u32 s40, s40, {U_OFF+8192}
    s_lshl_b32 s34, s3, 9
    s_add_u32 s34, s34, s2
    v_and_b32 v10, 1, v0
    v_lshlrev_b32 v10, 8, v10
    v_add_u32 v10, s34, v10
    v_cvt_f32_u32 v10, v10
    v_mul_f32 v10, {fhex(1/2048)}, v10
    v_lshrrev_b32 v11, 5, v0
    v_cvt_f32_u32 v11, v11
    s_waitcnt lgkmcnt(0)""")
    srd(a, 24, 10, wsz()); srd(a, 20, 6, 0x400000)
    a("s_buffer_load_dwordx2 s[42:43], s[24:27], s40")
    a("""v_lshrrev_b32 v4, 1, v0
    v_lshrrev_b32 v5, 2, v0
    v_and_b32 v5, 4, v5
    v_xor_b32 v4, v4, v5
    v_and_b32 v1, 7, v4""")
    for r in range(4): a(f"v_cmp_eq_u32 vcc, {r}, v1\nv_cndmask_b32 v{4+r}, 0, -1, vcc")
    a(f"""v_mul_f32 v12, v11, v10
    v_mov_b32 v13, 0xc0400000
    v_fma_f32 v13, v13, v11, 4.0
    v_mul_f32 v13, v13, v10
    v_add_f32 v14, 2.0, v11
    v_mul_f32 v14, v14, v10""")
    for k in range(3):
        b = C1 + 8*k
        a(f"""v_cos_f32 v{TMP}, v{12+k}
        v_sin_f32 v{TMP+1}, v{12+k}
        v_mul_f32 v{TMP}, {fhex(2.0**-19)}, v{TMP}
        v_mul_f32 v{TMP+1}, {fhex(2.0**-19)}, v{TMP+1}
        v_cvt_pk_bf16_f32 v{b+3}, v{TMP}, -v{TMP+1}
        v_cvt_pk_bf16_f32 v{b+7}, v{TMP+1}, v{TMP}""")
        for c in range(2):
            for r in range(4): a(f"v_and_b32 v{b+4*c+r}, v{b+4*c+3}, v{4+r}")
    a(f"""v_mul_f32 v12, {fhex(1/16)}, v8
    v_mul_f32 v13, v9, v12
    v_mul_f32 v12, 4.0, v12""")
    for v in range(4):
        a(f"""v_cos_f32 v{TMP}, v13
        v_sin_f32 v{TMP+1}, v13""")
        if v < 3: a("v_add_f32 v13, v13, v12")
        a(f"""v_cvt_pk_bf16_f32 v{C2+v}, v{TMP}, -v{TMP+1}
        v_cvt_pk_bf16_f32 v{C2+4+v}, v{TMP+1}, v{TMP}""")
    a(f"""v_bfe_u32 v12, v0, 4, 1
    v_cvt_f32_u32 v12, v12
    v_add_f32 v12, v12, v12
    v_mov_b32 v13, 0x41800000
    v_fma_f32 v12, v11, v13, v12
    v_mul_f32 v13, {fhex(1/512)}, v8
    v_mul_f32 v14, v12, v13
    v_mul_f32 v15, {fhex(3.0)}, v13""")
    for i in range(4):
        for ph in range(2):
            k = i*2 + ph
            kap = i >> 1; r = (i & 1)*2 + ph
            a(f"""v_cos_f32 v{TWC+k}, v14
            v_sin_f32 v{TWS+k}, v14
            v_mul_f32 v12, 0x41800000, v14
            v_cos_f32 v{TMP}, v12
            v_sin_f32 v{TMP+1}, v12""")
            if k < 7: a(f"v_add_f32 v14, v14, v{15 if ph else 13}")
            a(f"v_cvt_pk_bf16_f32 v{C3+kap*8+r}, v{TMP}, -v{TMP+1}")
            if ph: a(f"v_cvt_pk_bf16_f32 v{C3+kap*8+4+r}, -v{TMP}, v{TMP+1}")
            else: a(f"v_cvt_pk_bf16_f32 v{C3+kap*8+4+r}, v{TMP}, -v{TMP+1}")
    a(f"""v_cvt_f32_u32 v12, s2
    v_mul_f32 v12, {fhex(1/512)}, v12
    v_cos_f32 v13, v12
    v_sin_f32 v14, v12
    s_waitcnt lgkmcnt(0)
    s_lshl_b32 s44, s42, 16
    s_lshl_b32 s45, s43, 16
    s_and_b32 s46, s43, 0xffff0000
    v_mul_f32 v13, s45, v13
    v_mul_f32 v14, s46, v14
    v_sub_f32 v13, v13, v14
    v_mov_b32 v14, s44
    v_mul_f32 v13, {fhex(2.0**-20)}, v13
    v_mul_f32 v14, {fhex(2.0**-20)}, v14
    v_add_f32 v{INI}, v13, v14
    v_sub_f32 v{INI+1}, v13, v14
    v_add_f32 v{INI+2}, v13, v14
    v_sub_f32 v{INI+3}, v13, v14
    v_sub_f32 v{INI+4}, v14, v13
    v_sub_f32 v{INI+5}, -v13, v14
    v_sub_f32 v{INI+6}, v14, v13
    v_sub_f32 v{INI+7}, -v13, v14""")
    ACC = 200
    a(f"""v_lshlrev_b32 v10, 10, v3
    v_lshl_add_u32 v10, v2, 4, v10
    v_add_u32 v10, {UB}, v10
    v_lshlrev_b32 v11, 5, v2
    v_lshl_add_u32 v11, v3, 3, v11
    s_lshl_b32 s47, s34, 11
    s_add_u32 s47, s47, 1024
    s_add_u32 s48, s47, 0x80000
    s_lshr_b32 s49, s3, 1
    s_and_b32 s50, s3, 1
    s_lshl_b32 s51, s49, 12
    v_lshlrev_b32 v4, 4, v0
    v_add_u32 v4, s51, v4
    v_bfe_u32 v12, v0, 2, 3
    v_bfe_u32 v13, v0, 1, 1
    s_lshl_b32 s51, s50, 2
    v_add_u32 v13, s51, v13
    v_and_b32 v14, 6, v12
    v_xor_b32 v13, v13, v14
    v_lshlrev_b32 v13, 4, v13
    v_lshl_add_u32 v13, v12, 7, v13
    v_and_b32 v14, 1, v0
    v_lshl_add_u32 v13, v14, 3, v13
    v_lshrrev_b32 v14, 5, v0
    v_lshl_add_u32 v5, v14, 10, v13
    v_add_u32 v5, 8192, v5
    v_xor_b32 v6, 32, v5
    v_lshlrev_b32 v7, 11, v2
    v_and_b32 v12, 1, v3
    v_lshl_add_u32 v7, v12, 5, v7
    v_lshrrev_b32 v12, 1, v3
    v_lshl_add_u32 v7, v12, 4, v7
    s_lshl_b32 s52, s32, 17
    s_lshl_b32 s53, s49, 16
    s_add_u32 s52, s52, s53
    s_lshl_b32 s53, s33, 7
    s_add_u32 s52, s52, s53
    s_lshl_b32 s53, s50, 6
    s_add_u32 s52, s52, s53
    s_add_u32 s53, s52, 0x8000""")
    for r in range(16): a(f"v_mov_b32 v{ACC+r}, 0")
    st.mark()
    a("s_barrier")
    st.mark()
    for v in range(4):
        for t in range(2): a(f"ds_read_b128 {q(DAT+(v*2+t)*4)}, v10 offset:{t*4096+v*256}")
    for v in range(4):
        for t in range(2):
            a(f"s_waitcnt lgkmcnt({7-(v*2+t)})")
            cs = C1 + (16 if t else 8*(v >> 1))
            for c in range(2):
                acc = AC1 + (v*2+c)*4
                a(f"{MF} {q(acc)}, {q(DAT+(v*2+t)*4)}, {q(cs+4*c)}, {q(acc) if t else 0}")
    for v in range(4):
        for i in range(4): a(f"v_cvt_pk_bf16_f32 v{OP2+i*4+v}, v{AC1+v*8+i}, v{AC1+v*8+4+i}")
    for i in range(4):
        for c in range(2): a(f"{MF} {q(AC2+(i*2+c)*4)}, {q(OP2+i*4)}, {q(C2+4*c)}, 0")
    for i in range(4):
        xr = AC2 + i*8; xi = xr + 4; t0 = TMP + (i & 1)*8
        for ph in range(2):
            sel = "op_sel:[0,1] op_sel_hi:[1,1]" if ph else "op_sel_hi:[1,0]"
            a(f"v_pk_mul_f32 {d(t0+2*ph)}, {d(xr+2*ph)}, {d(TWC+2*i)} {sel}")
            a(f"v_pk_mul_f32 {d(t0+4+2*ph)}, {d(xi+2*ph)}, {d(TWC+2*i)} {sel}")
        for ph in range(2):
            sel = "op_sel:[0,1,0] op_sel_hi:[1,1,1]" if ph else "op_sel_hi:[1,0,1]"
            a(f"v_pk_fma_f32 {d(t0+2*ph)}, {d(xi+2*ph)}, {d(TWS+2*i)}, {d(t0+2*ph)} {sel} neg_lo:[1,0,0] neg_hi:[1,0,0]")
            a(f"v_pk_fma_f32 {d(t0+4+2*ph)}, {d(xr+2*ph)}, {d(TWS+2*i)}, {d(t0+4+2*ph)} {sel}")
        for ph in range(2):
            for rho in range(2):
                a(f"v_cvt_pk_bf16_f32 v{OP3+(rho*2+(i>>1))*4+(i&1)*2+ph}, v{t0+2*ph+rho}, v{t0+4+2*ph+rho}")
    for kap in range(2):
        for rho in range(2):
            for th in range(2):
                acc = AC3 + (rho*2+th)*4
                a(f"{MF} {q(acc)}, {q(OP3+(rho*2+kap)*4)}, {q(C3+kap*8+th*4)}, {q(acc) if kap else q(INI+4*rho)}")
    for rho in range(2):
        for th in range(2):
            acc = AC3 + (rho*2+th)*4; o = OUT + (rho*2+th)*2
            a(f"v_cvt_pk_bf16_f32 v{o}, v{acc}, v{acc+1}\nv_cvt_pk_bf16_f32 v{o+1}, v{acc+2}, v{acc+3}")
            a(f"buffer_store_dwordx2 {d(o)}, v11, s[20:23], s{47+rho} offen offset:{th*512}")
    st.mark()
    OF = lambda s, R: 16 + (s*2 + R)*4
    WF = lambda s, t: 48 + (s*2 + t)*4
    def reads(s):
        ch, ks = s >> 1, s & 1
        L = []
        for t in range(2):
            for eta in range(2):
                L.append(f"ds_read_b64_tr_b16 {d(WF(s,t)+2*eta)}, v{5+t} offset:{ch*16384 + (4*ks+2*eta)*1024}")
            L.append(f"ds_read_b128 {q(OF(s,t))}, v4 offset:{ch*16384 + t*2048 + ks*1024}")
        return L
    def mfmas(s):
        return [f"{MF} {q(ACC+(R*2+t)*4)}, {q(WF(s,t))}, {q(OF(s,R))}, {q(ACC+(R*2+t)*4)}" for (R, t) in ((0,0),(1,0),(0,1),(1,1))]
    a("s_mov_b32 s45, 0\nK3_LOOP:\ns_barrier")
    for r in reads(0) + reads(1): a(r)
    a("s_waitcnt lgkmcnt(6)")
    R2 = reads(2); R3 = reads(3)
    M = mfmas(0)
    a(M[0]); a(R2[0]); a(R2[1]); a(M[1]); a(R2[2]); a(R2[3]); a(M[2]); a(R2[4]); a(R2[5]); a(M[3])
    a("s_waitcnt lgkmcnt(6)")
    M = mfmas(1)
    a(M[0]); a(R3[0]); a(R3[1]); a(M[1]); a(R3[2]); a(R3[3]); a(M[2]); a(R3[4]); a(R3[5]); a(M[3])
    a("s_waitcnt lgkmcnt(6)")
    for m in mfmas(2): a(m)
    for r in (4, 5, 6): a(f"v_add_u32 v{r}, 0x8000, v{r}")
    a("s_add_u32 s45, s45, 1\ns_cmp_lt_u32 s45, 4\ns_waitcnt lgkmcnt(0)")
    for m in mfmas(3): a(m)
    a("s_cbranch_scc1 K3_LOOP")
    st.mark()
    for R in range(2):
        o = 80 + R*4
        for t in range(2):
            acc = ACC + (R*2+t)*4
            a(f"v_cvt_pk_bf16_f32 v{o+2*t}, v{acc}, v{acc+1}\nv_cvt_pk_bf16_f32 v{o+2*t+1}, v{acc+2}, v{acc+3}")
        a(f"v_permlane16_swap_b32 v{o}, v{o+2}\nv_permlane16_swap_b32 v{o+1}, v{o+3}")
        a(f"buffer_store_dwordx4 {q(o)}, v7, s[20:23], s{52+R} offen")
    st.mark()
    st.dump(24, [(2,13),(4,14),(5,15)])
    a("K3_END:\ns_endpgm")
    return name, desc(name, 216)

HEADER = open("concat_heads__linear_attn_block__spectral_gfnet__prompt.s.ref").read().split("; Override")[0]

def main(out):
    parts = []; descs = []
    for g in (gen_k1, gen_k2, gen_k3):
        a = Asm(); n, ds = g(a); parts.append(a.finalize()); descs.append(ds)
    hdr = HEADER + """; @launch kernel=k1_kernel grid=(256,1,1) block=(512,1,1) lds=139264
; @launch kernel=k2_kernel grid=(264,1,1) block=(512,1,1) lds=32768
; @launch kernel=k3_kernel grid=(256,1,1) block=(512,1,1) lds=139264
.amdgcn_target "amdgcn-amd-amdhsa--gfx950"
.text
"""
    open(out, "w").write(hdr + "".join(parts) + "".join(descs))

if __name__ == "__main__":
    if len(sys.argv) > 2 and sys.argv[2] in ("stamp", "dbg"): STAMP = True
    if len(sys.argv) > 2 and sys.argv[2] == "dbg": DBGMODE = True
    main(sys.argv[1])
```

```python
import sys, struct
from asm import Asm

T_OFF = 0; ROW = 8320; U_OFF = 0x240000; WP_OFF = 0x480000; KVP_OFF = 0x6C0000; ZP_OFF = 0x740000
F0_OFF = 0x750000; O_OFF = 0x800000; WS_SIZE = 0xA00000; DBG_OFF = 0xA00000
XB = 65536; BXB = 131072; CNT = 147456; WRB = 147456 + 256; LDS_SIZE = WRB + 16*576
H1_OFF = 2048; OF_OFF = 4096; H2_OFF = 8192
STAMP = False
NAME = "concat_heads__linear_attn_block__spectral_gfnet__prompt_kernel"
SPIN = 0x40000
L_EARLY = 4; GPOS = 1; SIG0 = 5; SIG1 = 5; TPOS = 1; QPF = 0; OEXP = 0; PSLEEP = 2; OFL = "sc1"; CPRIO = 2; UTHR = 16; NPRE = 10; NWO = 9; PSPLIT = 8; FORCESLOW = 0; OUTFL = ""; USLEEP = 32; RESLEEP = 2; TFL = "sc1"; UFL = "sc1"; GRP = 4
MC = "cconst,cbx,cst,cf0,t0,cp2,cz,co,cof,cg0,cg"; ML = "lw,lf0,lf7,lq3,lh1,lt,lb2,lack,lul,luok,lend"

def fhex(x): return "0x%08x" % struct.unpack("<I", struct.pack("<f", x))[0]
def q(b): return "v[%d:%d]" % (b, b + 3)
def d(b): return "v[%d:%d]" % (b, b + 1)
MF = "v_mfma_f32_16x16x32_bf16"
M16 = "v_mfma_f32_16x16x16_bf16"
WS = "s[24:27]"

def srd_ptr(a, r, lo): a(f"s_mov_b32 s{r}, s{lo}\ns_mov_b32 s{r+1}, s{lo+1}")
def srd_const(a, r, size): a(f"s_mov_b32 s{r+2}, {size}\ns_mov_b32 s{r+3}, 0x20000")
def wsz(): return WS_SIZE + (0x100000 if STAMP else 0)

class Stamps:
    def __init__(self, a): self.a = a
    def start(self):
        if STAMP:
            self.a("s_memtime s[76:77]\ns_memrealtime s[78:79]")
            for i in range(11): self.a(f"s_mov_b32 s{80+2*i}, 0")
    def mark(self, name):
        if not STAMP: return
        for lst in (MC.split(","), ML.split(",")):
            if name in lst:
                i = lst.index(name); self.a(f"s_memtime s[{80+2*i}:{81+2*i}]"); return
    def dump(self):
        if not STAMP: return
        a = self.a
        a("v_mov_b32 v28, s75\ns_memrealtime s[74:75]\ns_waitcnt vmcnt(0) lgkmcnt(0)\ns_mov_b64 exec, 1")
        for i in range(11): a(f"s_sub_u32 s73, s{80+2*i}, s76\ns_cmp_eq_u32 s{80+2*i}, 0\ns_cselect_b32 s73, 0, s73\nv_mov_b32 v{16+i}, s73")
        a(f"s_sub_u32 s73, {SPIN}, s72\nv_mov_b32 v27, s73\nv_mov_b32 v29, 0\nv_mov_b32 v30, s78\nv_mov_b32 v31, s74")
        a(f"s_lshl_b32 s73, s2, 3\ns_add_u32 s73, s73, s3\ns_lshl_b32 s73, s73, 6\ns_add_u32 s73, s73, {DBG_OFF}\nv_mov_b32 v15, s73")
        for j in range(4): a(f"buffer_store_dwordx4 {q(16+4*j)}, v15, {WS}, 0 offen offset:{16*j}")

def spin_check(a):
    a("s_sub_u32 s72, s72, 1\ns_cbranch_scc1 L_END")
    if RESLEEP: a(f"s_sleep {RESLEEP}")

def lds_signal(a, k): a(f"s_mov_b64 exec, 1\nds_add_u32 v254, v255 offset:{4*k}\ns_mov_b64 exec, -1")
def lds_wait(a, k, lbl, slp=0):
    a(f"""{lbl}:
    {"s_sleep %d" % slp if slp else ""}
    ds_read_b32 v253, v254 offset:{4*k}
    s_sub_u32 s74, s74, 1
    s_cbranch_scc1 L_END
    s_waitcnt lgkmcnt(0)
    v_cmp_ne_u32 vcc, 4, v253
    s_cbranch_vccnz {lbl}""")

def entry(a, st):
    a(f".globl {NAME}\n.p2align 8\n.type {NAME},@function\n{NAME}:")
    st.start()
    a(f"""s_cmp_ge_u32 s2, 256
    s_cbranch_scc1 L_END
    s_load_dwordx16 s[4:19], s[0:1], 0
    s_load_dwordx2 s[20:21], s[0:1], 64
    s_lshr_b32 s49, s2, 3
    v_cmp_gt_u32 vcc, 20, v0
    s_and_saveexec_b64 s[22:23], vcc
    s_cbranch_execz L_NOPF
    s_getpc_b64 s[60:61]
    L_PC:
    s_mul_i32 s62, s49, 768
    v_min_u32 v1, 5, v0
    v_lshlrev_b32 v1, 7, v1
    v_add_u32 v1, s62, v1
    v_min_u32 v1, L_END-L_PC, v1
    global_load_dword v1, v1, s[60:61]
    v_lshlrev_b32 v2, 2, v0
    v_add_u32 v2, {CNT}, v2
    v_mov_b32 v3, 0
    ds_write_b32 v2, v3
    L_NOPF:
    s_mov_b64 exec, s[22:23]
    v_lshrrev_b32 v4, 6, v0
    v_and_b32 v0, 63, v0
    v_readfirstlane_b32 s3, v4
    s_and_b32 s48, s2, 7
    s_and_b32 s56, s49, 7
    s_lshr_b32 s57, s49, 3
    s_and_b32 s55, s49, 3
    s_lshl_b32 s50, s48, 2
    s_add_u32 s50, s50, s55
    s_lshr_b32 s51, s49, 2
    v_lshlrev_b32 v7, 4, v0""")
    srd_const(a, 28, 0x200000)
    a("s_cmp_ge_u32 s3, 4\ns_cbranch_scc1 L_START")

def common_setup(a):
    srd_ptr(a, 40, 16); srd_const(a, 40, 0x400000); srd_ptr(a, 44, 18); srd_const(a, 44, 256)
    a(f"""s_mov_b32 s72, {SPIN}
    s_mov_b32 s74, {SPIN*16}
    v_mov_b32 v254, {CNT}
    v_mov_b32 v255, 1
    v_cvt_f32_u32 v8, v2
    v_cvt_f32_u32 v9, v3
    v_lshrrev_b32 v12, 1, v0
    v_lshrrev_b32 v13, 2, v0
    v_and_b32 v13, 4, v13
    v_xor_b32 v12, v12, v13
    v_and_b32 v15, 7, v12""")

def issue1w(a, c):
    a(f"""s_mul_i32 s66, s52, 196608
    s_add_u32 m0, s64, {(c & 3)*16384}
    s_add_u32 s66, s66, s61
    s_lshl_b32 s65, s52, 7
    buffer_load_dwordx4 v6, s[32:35], s66 offen lds
    buffer_load_dwordx4 v6, s[32:35], s66 offen offset:1024 lds
    s_add_u32 s66, s66, 10240
    s_add_u32 s65, s65, s60
    buffer_load_dwordx4 v6, s[32:35], s66 offen offset:2048 lds
    buffer_load_dwordx4 v6, s[32:35], s66 offen offset:3072 lds""")
def issue1x(a, c):
    a(f"""s_add_u32 m0, s62, {XB + c*8192}
    s_add_u32 s52, s52, 1
    buffer_load_dwordx4 v5, s[28:31], s65 offen lds
    s_add_u32 s65, s65, 7168
    s_and_b32 s52, s52, 7
    buffer_load_dwordx4 v5, s[28:31], s65 offen offset:1024 lds""")
def issue2(a, gam):
    for k2 in range(2):
        a(f"""s_mul_i32 s66, s52, 196608
        s_add_u32 m0, s62, {gam*16384 + k2*8192}
        s_add_u32 s66, s66, s61
        s_add_u32 s52, s52, 1
        buffer_load_dwordx4 v6, s[32:35], s66 offen lds
        s_add_u32 s66, s66, 11264
        s_and_b32 s52, s52, 7
        buffer_load_dwordx4 v6, s[32:35], s66 offen offset:1024 lds""")

def l_main(a, st):
    C1, C2, TWC, TWS, C3, DAT, AC1, OP2, AC2, INI = 16, 40, 48, 56, 64, 80, 112, 144, 160, 192
    TMP, OP3, AC3, OUT = 80, 112, 128, 144
    RWR, RWI, SPC = 88, 96, 104
    CA, CB = 208, 240
    OP, WPK, AC, PK, WRI, T0 = 80, 96, 112, 144, 160, 176
    a(f"""L_START:
    s_sub_u32 s58, s3, 4
    s_lshl_b32 s52, s55, 1
    s_add_u32 s52, s52, s51
    s_and_b32 s52, s52, 7
    v_lshrrev_b32 v8, 3, v0
    v_and_b32 v9, 7, v0
    v_and_b32 v10, 6, v8
    v_xor_b32 v9, v9, v10
    v_lshlrev_b32 v9, 4, v9
    v_lshl_add_u32 v5, v8, 10, v9
    v_and_b32 v10, 3, v8
    v_lshrrev_b32 v11, 2, v8
    v_lshl_add_u32 v10, v11, 3, v10
    v_lshl_add_u32 v4, v10, 10, v9
    v_mul_u32_u24 v10, 3072, v10
    v_add_u32 v6, v10, v9
    s_lshl_b32 s60, s50, 16
    s_lshl_b32 s61, s58, 14
    s_add_u32 s60, s60, s61
    s_lshl_b32 s61, s51, 7
    s_mul_i32 s62, s58, 49152
    s_add_u32 s61, s61, s62
    s_add_u32 s61, s61, 1024
    s_lshl_b32 s62, s58, 11
    s_lshl_b32 s64, s58, 12""")
    a(f"""s_and_b32 s75, s48, 3
    s_cmp_eq_u32 s48, 4
    s_cselect_b32 s68, 4, s75
    s_lshl_b32 s22, s56, 4
    s_add_u32 s68, s68, s22
    s_lshl_b32 s22, s57, 9
    s_add_u32 s68, s68, s22
    s_sub_u32 s22, 2048, s68
    s_cmp_ge_u32 s48, 4
    s_cselect_b32 s68, s22, s68
    s_cselect_b32 s59, 0x80000000, 0
    s_mov_b32 s67, {8*514}
    s_cmov_b32 s67, {-8*514}
    s_mul_i32 s68, s68, 514
    s_lshl_b32 s22, s58, 4
    s_mul_i32 s22, s22, s67
    s_add_u32 s22, s22, s68
    s_and_b32 s22, s22, -16
    s_add_u32 s23, s22, s67
    s_mul_i32 s73, s58, {4*576}
    s_add_u32 m0, s73, {WRB}""")
    srd_const(a, 32, 0x180000); srd_const(a, 36, 2048*514); srd_const(a, 40, 2048*514)
    a("s_waitcnt lgkmcnt(0)")
    srd_ptr(a, 36, 12); srd_ptr(a, 40, 14); srd_ptr(a, 28, 4); srd_ptr(a, 32, 6)
    a(f"""s_barrier
    s_mov_b32 exec_hi, 3
    buffer_load_dwordx4 v7, s[36:39], s22 offen lds
    s_add_u32 m0, s73, {WRB+576}
    s_nop 0
    buffer_load_dwordx4 v7, s[40:43], s22 offen lds
    s_add_u32 m0, s73, {WRB+2*576}
    s_nop 0
    buffer_load_dwordx4 v7, s[36:39], s23 offen lds
    s_add_u32 m0, s73, {WRB+3*576}
    s_nop 0
    buffer_load_dwordx4 v7, s[40:43], s23 offen lds
    s_mov_b32 exec_hi, -1
    s_cmp_eq_u32 s58, 0
    s_cbranch_scc0 L_NOSP
    v_and_b32 v109, 3, v0
    v_lshlrev_b32 v109, 4, v109
    v_bfe_u32 v110, v0, 4, 1
    v_add_u32 v109, v109, v110
    v_mul_i32_i24 v109, s67, v109
    v_add_u32 v109, s68, v109
    v_sub_u32 v110, {2048*514}, v109
    s_lshr_b32 s23, s59, 22
    s_sub_u32 s22, 512, s23
    s_cmp_eq_u32 s75, 0
    s_cselect_b64 vcc, -1, 0
    s_cselect_b32 s22, s22, s23
    v_cndmask_b32 v110, v110, v109, vcc
    s_mov_b32 exec_hi, 0
    buffer_load_ushort v{SPC+2}, v110, s[36:39], s22 offen
    buffer_load_ushort v{SPC+3}, v110, s[40:43], s22 offen
    s_mov_b32 exec_hi, -1
    L_NOSP:""")
    issue1w(a, 0); issue1x(a, 0)
    seq = ["w"]*4 + ["F0"]*6
    st.mark("iss")
    a("v_and_b32 v2, 15, v0\nv_lshrrev_b32 v3, 4, v0")
    srd_ptr(a, 24, 20); srd_const(a, 24, wsz())
    common_setup(a)
    srd_ptr(a, 36, 8); srd_const(a, 36, 0x80000)
    a(f"""s_mov_b32 s12, s75
    s_mov_b32 s13, s59
    s_mov_b32 s16, s68
    s_lshl_b32 s23, s58, 6
    v_add_u32 v111, s23, v0
    v_sub_u32 v110, 0x100, v111
    s_cmp_ge_u32 s48, 4
    s_cselect_b64 vcc, -1, 0
    v_cndmask_b32 v111, v111, v110, vcc
    v_lshlrev_b32 v111, 1, v111""")
    CT = 194
    def b3_consts_a():
        a(f"""s_lshl_b32 s67, s58, 9
        s_add_u32 s67, s67, s2
        v_and_b32 v10, 1, v0
        v_lshlrev_b32 v10, 8, v10
        v_add_u32 v10, s67, v10
        v_cvt_f32_u32 v10, v10
        v_mul_f32 v10, {fhex(1/2048)}, v10
        v_lshrrev_b32 v11, 5, v0
        v_cvt_f32_u32 v11, v11""")
        MK = 196
        for r in range(4): a(f"v_cmp_eq_u32 vcc, {r}, v15\nv_cndmask_b32 v{MK+r}, 0, -1, vcc")
        a(f"""v_mul_f32 v12, v11, v10
        v_mov_b32 v13, 0xc0400000
        v_fma_f32 v13, v13, v11, 4.0
        v_mul_f32 v13, v13, v10
        v_add_f32 v14, 2.0, v11
        v_mul_f32 v14, v14, v10""")
        for k in range(3):
            b = C1 + 8*k
            a(f"""v_cos_f32 v{CT}, v{12+k}
            v_sin_f32 v{CT+1}, v{12+k}
            v_mul_f32 v{CT}, {fhex(2.0**-19)}, v{CT}
            v_mul_f32 v{CT+1}, {fhex(2.0**-19)}, v{CT+1}
            v_cvt_pk_bf16_f32 v{b+3}, v{CT}, -v{CT+1}
            v_cvt_pk_bf16_f32 v{b+7}, v{CT+1}, v{CT}""")
            for c in range(2):
                for r in range(4): a(f"v_and_b32 v{b+4*c+r}, v{b+4*c+3}, v{MK+r}")
        a(f"v_mul_f32 v12, {fhex(1/16)}, v8\nv_mul_f32 v13, v9, v12\nv_mul_f32 v12, 4.0, v12")
        for v in range(4):
            a(f"v_cos_f32 v{CT}, v13\nv_sin_f32 v{CT+1}, v13")
            if v < 3: a("v_add_f32 v13, v13, v12")
            a(f"v_cvt_pk_bf16_f32 v{C2+v}, v{CT}, -v{CT+1}\nv_cvt_pk_bf16_f32 v{C2+4+v}, v{CT+1}, v{CT}")
    def b3_consts_b():
        a(f"""v_bfe_u32 v12, v0, 4, 1
        v_cvt_f32_u32 v12, v12
        v_add_f32 v12, v12, v12
        v_mov_b32 v13, 0x41800000
        v_fma_f32 v12, v11, v13, v12
        v_mul_f32 v13, {fhex(1/512)}, v8
        v_mul_f32 v14, v12, v13
        v_mul_f32 v15, {fhex(3.0)}, v13""")
        for i in range(4):
            for ph in range(2):
                k = i*2 + ph; kap = i >> 1; r = (i & 1)*2 + ph
                a(f"""v_cos_f32 v{TWC+k}, v14
                v_sin_f32 v{TWS+k}, v14
                v_mul_f32 v12, 0x41800000, v14
                v_cos_f32 v{CT}, v12
                v_sin_f32 v{CT+1}, v12""")
                if k < 7: a(f"v_add_f32 v14, v14, v{15 if ph else 13}")
                a(f"v_cvt_pk_bf16_f32 v{C3+kap*8+r}, v{CT}, -v{CT+1}")
                if ph: a(f"v_cvt_pk_bf16_f32 v{C3+kap*8+4+r}, -v{CT}, v{CT+1}")
                else: a(f"v_cvt_pk_bf16_f32 v{C3+kap*8+4+r}, v{CT}, -v{CT+1}")
        a(f"""v_cvt_f32_u32 v12, s2
        v_mul_f32 v12, {fhex(1/512)}, v12
        v_cos_f32 v13, v12
        v_sin_f32 v14, v12
        v_lshlrev_b32 v10, 10, v3
        v_lshl_add_u32 v10, v2, 4, v10
        v_mul_f32 v13, {fhex(2.0**-20)}, v13
        v_mul_f32 v14, {fhex(2.0**-20)}, v14
        v_lshlrev_b32 v11, 5, v2
        v_lshl_add_u32 v11, v3, 3, v11
        v_mov_b32 v15, 0""")
    def b2_consts():
        a(f"""s_cmp_gt_u32 s2, 128
        s_cbranch_scc1 L_CB2D
        s_lshl_b32 s22, s58, 2
        v_cvt_f32_u32 v146, s22
        v_mul_f32 v144, {fhex(1/16)}, v8
        v_mul_f32 v145, 4.0, v9
        v_mul_f32 v145, v145, v144
        v_mul_f32 v147, {fhex(1/16)}, v144
        v_mul_f32 v146, v146, v147""")
        for r in range(4):
            a(f"""v_cos_f32 v154, v145
            v_sin_f32 v155, v145
            v_add_f32 v148, v145, v146
            v_cvt_pk_bf16_f32 v{CB+r}, v154, v155
            v_cvt_pk_bf16_f32 v{CB+4+r}, -v155, v154""")
            for j in range(4):
                t = 150 + 2*(j & 1)
                a(f"v_cos_f32 v{t}, v148\nv_sin_f32 v{t+1}, v148")
                if j < 3: a("v_add_f32 v148, v148, v147")
                elif r < 3: a("v_add_f32 v145, v145, v144")
                a(f"v_cvt_pk_bf16_f32 v{CA+8*j+r}, v{t}, v{t+1}\nv_cvt_pk_bf16_f32 v{CA+8*j+4+r}, -v{t+1}, v{t}")
        a("L_CB2D:")
    def repack_addr():
        a(f"""v_and_b32 v109, 1, v3
        v_lshlrev_b32 v109, 18, v109
        v_lshrrev_b32 v110, 5, v0
        v_lshl_add_u32 v109, v110, 14, v109
        v_lshl_add_u32 v109, v2, 4, v109
        s_lshl_b32 s18, s56, 11
        s_lshl_b32 s22, s57, 8
        s_add_u32 s18, s18, s22
        s_add_u32 s18, s18, {WP_OFF}
        s_lshl_b32 s17, s12, 19
        s_lshr_b32 s22, s13, 14
        s_add_u32 s17, s17, s22
        s_lshl_b32 s22, s58, 15
        s_add_u32 s17, s17, s22
        s_add_u32 s17, s17, s18
        s_mul_i32 s53, s2, {ROW}
        s_add_u32 s53, s53, {U_OFF}
        s_and_b32 s19, s2, 15
        s_lshl_b32 s19, s19, 7
        s_add_u32 s19, s19, {F0_OFF}
        v_lshlrev_b32 v250, 7, v2
        v_add_u32 v250, {F0_OFF}, v250
        v_and_b32 v249, 1, v0
        v_lshlrev_b32 v249, 7, v249
        v_mov_b32 v207, 4
        s_bfe_u32 s23, s2, 0x10003
        s_lshl_b32 s54, s48, 1
        s_add_u32 s54, s54, s23
        s_and_b32 s23, s2, 0xf0
        s_add_u32 s54, s54, s23
        s_lshl_b32 s20, s54, 14
        s_add_u32 s20, s20, s64
        v_lshlrev_b32 v248, 2, v0
        s_and_b32 s22, s16, 15
        s_add_u32 s22, s22, {WRB}
        v_add_u32 v111, s22, v111
        s_lshr_b32 s23, s13, 22
        s_add_u32 s22, s22, s23
        v_and_b32 v87, 3, v0
        v_mul_u32_u24 v87, {4*576}, v87
        v_bfe_u32 v86, v0, 4, 1
        v_mul_u32_u24 v86, {2*576}, v86
        v_add3_u32 v87, v87, v86, s22
        v_lshlrev_b32 v12, 7, v0
        v_mov_b32 v206, 0
        s_lshl_b32 s22, s50, 16
        s_lshl_b32 s23, s51, 11
        s_add_u32 s22, s22, s23
        s_lshl_b32 s23, s58, 14
        s_add_u32 s22, s22, s23
        s_add_u32 s22, s22, {O_OFF}
        v_add_u32 v202, s22, v12
        s_lshl_b32 s22, s50, 7
        s_add_u32 s22, s22, {F0_OFF + OF_OFF}
        v_writelane_b32 v202, s22, 16
        s_lshl_b32 s21, s58, 14
        s_lshl_b32 s22, s51, 7
        s_add_u32 s21, s21, s22
        s_lshl_b32 s14, s55, 1""")
    def repack():
        a(f"ds_read_u16 v{SPC}, v87\nds_read_u16 v{SPC+1}, v87 offset:576")
        for j in range(2):
            for i in range(4):
                a(f"ds_read_u16 v{RWR+4*j+i}, v111 offset:{(i*4+j*2)*576}\nds_read_u16 v{RWI+4*j+i}, v111 offset:{(i*4+j*2+1)*576}")
            a("s_waitcnt lgkmcnt(0)")
        for k in range(8): a(f"v_lshl_or_b32 v{RWR+k}, v{RWI+k}, 16, v{RWR+k}\nv_xor_b32 v{RWR+k}, s13, v{RWR+k}")
        a(f"""s_cmp_eq_u32 s58, 0
        s_cbranch_scc0 L_NOSP2
        s_cmp_eq_u32 s12, 0
        s_cselect_b32 s22, 0, 1.0
        v_lshl_or_b32 v{SPC+4}, v{SPC+3}, 16, v{SPC+2}
        v_lshlrev_b32 v{SPC}, 16, v{SPC}
        v_lshlrev_b32 v{SPC+1}, 16, v{SPC+1}
        v_lshlrev_b32 v{SPC+2}, 16, v{SPC+2}
        v_lshlrev_b32 v{SPC+3}, 16, v{SPC+3}
        v_fma_f32 v{SPC}, v{SPC+2}, s22, v{SPC}
        v_fma_f32 v{SPC+1}, -v{SPC+3}, s22, v{SPC+1}
        v_mul_f32 v{SPC}, 0.5, v{SPC}
        v_mul_f32 v{SPC+1}, 0.5, v{SPC+1}
        v_cvt_pk_bf16_f32 v{SPC}, v{SPC}, v{SPC+1}
        v_xor_b32 v{SPC+4}, s13, v{SPC+4}
        v_xor_b32 v{SPC}, s13, v{SPC}
        v_lshlrev_b32 v110, 10, v3
        v_lshl_add_u32 v110, v2, 2, v110""")
        for k in range(8): a(f"v_readlane_b32 s{4+k}, v{SPC}, {16*(k>>2) + (k&3)}")
        for k in range(8): a(f"v_writelane_b32 v{RWR+k}, s{4+k}, 0")
        a("L_NOSP2:")
    def wp_stores():
        a(f"""s_or_b32 s22, s58, s12
        s_cbranch_scc1 L_NOSP3
        s_lshr_b32 s22, s13, 24
        s_sub_u32 s22, s18, s22
        s_add_u32 s22, s22, {128*16384 + 128}
        s_mov_b32 exec_hi, 0
        buffer_store_dword v{SPC+4}, v110, {WS}, s22 offen sc1
        s_mov_b32 exec_hi, -1
        L_NOSP3:
        buffer_store_dwordx4 {q(RWR)}, v109, {WS}, s17 offen sc1
        buffer_store_dwordx4 {q(RWR+4)}, v109, {WS}, s17 offen offset:1024 sc1""")
        seq.extend(["s"]*2)
    def wo_dma(poss):
        for pos in poss:
            a(f"""s_add_u32 s5, s14, {(pos+2) & 7}
            s_and_b32 s5, s5, 7
            s_lshl_b32 s5, s5, 16
            s_add_u32 m0, s62, {XB + 16384 + pos*8192}
            s_add_u32 s5, s5, s21
            buffer_load_dwordx4 v4, s[36:39], s5 offen lds
            s_add_u32 s5, s5, 3072
            buffer_load_dwordx4 v4, s[36:39], s5 offen offset:1024 lds""")
    def younger(tag): return len(seq) - 1 - max(i for i, x in enumerate(seq) if x == tag)
    repack_addr()
    b2_consts()
    st.mark("lconst")
    issue1w(a, 1); issue1x(a, 1); seq += ["F1"]*6
    st.mark("lw")
    a(f"s_waitcnt vmcnt({younger('w')})")
    lds_signal(a, 16); lds_wait(a, 16, "L_WW")
    repack()
    st.mark("lwp")
    if TPOS == 0: wp_stores()
    issue1w(a, 2); issue1x(a, 2); seq += ["F2"]*6
    for c in range(8):
        n = younger(f"F{c}")
        if c == SIG0: n = min(n, younger("g"))
        if c == SIG1 and TPOS < 6: n = min(n, younger("s"))
        a(f"s_waitcnt vmcnt({n})")
        if c == SIG0: a("s_cmp_eq_u32 s58, 0\ns_cbranch_scc0 L_GOD\ns_mov_b64 exec, 3\nL_GO:\nv_cmp_ne_u32 vcc, 37, v204\ns_cbranch_vccnz L_GORE\ns_mov_b64 exec, -1\nL_GOD:")
        a("s_barrier")
        st.mark(f"lf{c}")
        if c < 5: issue1w(a, c+3); issue1x(a, c+3); seq += [f"F{c+3}"]*6
        if c == 5: a("s_sub_u32 s61, s61, 1024")
        if c == GPOS:
            a("""s_cmp_eq_u32 s58, 0
            s_cselect_b32 s22, 0, 0x40000000
            s_mov_b64 exec, 3
            buffer_load_dword v204, v249, s[44:47], s22 offen sc1
            s_mov_b64 exec, -1"""); seq += ["g"]
        if c == TPOS and c > 0: wp_stores()
        if c == 5: issue2(a, 0); seq += ["F8"]*4
        if c == 6: wo_dma((6, 7)); seq += ["p"]*4
    h1 = f"""s_cmp_eq_u32 s58, 0
    s_cselect_b32 s22, 0, 0x40000000
    s_mov_b64 exec, 0xffff
    buffer_load_dword v205, v250, {WS}, s22 offen sc1
    s_mov_b64 exec, -1"""
    def arrive(k):
        a(f"s_waitcnt vmcnt({younger('F%d' % k)})"); lds_signal(a, k)
    a(f"s_mov_b64 exec, 0x1ffff\nbuffer_load_dword v203, v202, {WS}, 0 offen sc1\ns_mov_b64 exec, -1"); seq += ["p"]
    lds_wait(a, 5, "L_C7", 1)
    a(h1); seq += ["p"]
    arrive(8)
    issue2(a, 1); seq += ["F9"]*4
    issue2(a, 2); seq += ["F10"]*4
    issue2(a, 3); seq += ["F11"]*4
    def tloads():
        for j in range(4):
            for r in range(4): a(f"buffer_load_dword v{OP+j*4+r}, v248, {WS}, s20 offen offset:{j*1024+r*256} {TFL}")
        a(f"s_add_u32 s23, s20, {WP_OFF}")
        for j in range(4): a(f"buffer_load_dwordx4 {q(WPK+4*j)}, v7, {WS}, s23 offen offset:{j*1024} {TFL}")
    arrive(9)
    a(f"""s_cmp_eq_u32 s58, 0
    s_cbranch_scc0 L_H1D
    s_mov_b64 exec, 0xffff
    v_and_b32 v1, 0xffff, v205
    v_cmp_ne_u32 vcc, 16, v1
    s_cbranch_vccnz L_H1D
    v_cmp_ne_u32 vcc, 16, v205
    v_mov_b32 v1, vcc_lo
    s_mov_b64 exec, 1
    ds_write_b32 v254, v1 offset:24
    ds_add_u32 v254, v207 offset:28
    s_mov_b32 s58, 64
    L_H1D:
    s_mov_b64 exec, -1""")
    arrive(10); arrive(11)
    st.mark("lq3")
    a(f"""s_cmp_eq_u32 s58, 0
    s_cbranch_scc1 L_H1RE
    L_H1OK:
    s_sub_u32 s58, s3, 4
    s_cmp_gt_u32 s2, 128
    s_cbranch_scc1 L_NOB2""")
    lds_wait(a, 7, "L_H1W")
    st.mark("lh1")
    tloads()
    a(f"""s_lshl_b32 s23, s58, 8
    v_lshlrev_b32 v8, 12, v3
    v_lshl_add_u32 v8, v2, 4, v8
    v_add_u32 v8, s23, v8
    v_add_u32 v9, s64, v7
    v_add_u32 v251, {XB}, v8
    v_add_u32 v252, {XB}, v9
    v_mul_u32_u24 v12, {64*ROW}, v3
    v_lshl_add_u32 v12, v2, 2, v12
    s_lshl_b32 s23, s54, 6
    s_mul_i32 s73, s58, {4*ROW}
    s_add_u32 s23, s23, s73
    s_add_u32 s23, s23, {U_OFF}
    s_add_u32 s19, s19, s62
    s_add_u32 s19, s19, {H2_OFF}
    s_waitcnt vmcnt(4)""")
    st.mark("lt")
    def stage(consts):
        for j in range(4):
            for c in range(2): a(f"{MF} {q(AC+(j*2+c)*4)}, {q(consts(j)+4*c)}, {q(OP+4*j)}, 0")
    def exchange(vw, vr, k, lbl):
        for j in range(4):
            for i in range(4): a(f"v_cvt_pk_bf16_f32 v{PK+4*i+j}, v{AC+j*8+i}, v{AC+j*8+4+i}")
        if k == 3: lds_wait(a, 1, "L_XW")
        for i in range(4): a(f"ds_write_b128 {vw}, {q(PK+4*i)} offset:{i*1024}")
        lds_signal(a, k)
        wo_dma((0, 1, 2) if k == 3 else (3, 4, 5))
        lds_wait(a, k, lbl)
        for j in range(4): a(f"ds_read_b128 {q(OP+4*j)}, {vr} offset:{j*1024}")
    def stage_w(consts):
        for j in range(4):
            a(f"s_waitcnt lgkmcnt({3-j})")
            for c in range(2): a(f"{MF} {q(AC+(j*2+c)*4)}, {q(consts(j)+4*c)}, {q(OP+4*j)}, 0")
    stage(lambda j: CA + 8*j)
    exchange("v251", "v252", 3, "L_E1")
    st.mark("b2x1")
    stage_w(lambda j: CB)
    a("s_waitcnt vmcnt(6)")
    for j in range(4):
        xr = AC + j*8; xi = xr + 4; t = T0 + (j & 1)*8; wr = WRI + (j & 1)*8; wi = wr + 4
        for i in range(4): a(f"v_lshlrev_b32 v{wr+i}, 16, v{WPK+4*j+i}\nv_and_b32 v{wi+i}, 0xffff0000, v{WPK+4*j+i}")
        for h in (0, 2):
            a(f"v_pk_mul_f32 {d(t+h)}, {d(xr+h)}, {d(wr+h)}")
            a(f"v_pk_mul_f32 {d(t+4+h)}, {d(xi+h)}, {d(wr+h)}")
        for h in (0, 2):
            a(f"v_pk_fma_f32 {d(t+h)}, {d(xi+h)}, {d(wi+h)}, {d(t+h)} neg_lo:[1,0,0] neg_hi:[1,0,0]")
            a(f"v_pk_fma_f32 {d(t+4+h)}, {d(xr+h)}, {d(wi+h)}, {d(t+4+h)}")
        for i in range(4): a(f"v_cvt_pk_bf16_f32 v{OP+4*j+i}, v{t+i}, -v{t+4+i}")
        if j > 0:
            for c in range(2): a(f"{MF} {q(AC+((j-1)*2+c)*4)}, {q(CA+8*(j-1)+4*c)}, {q(OP+4*(j-1))}, 0")
    for c in range(2): a(f"{MF} {q(AC+(6+c)*4)}, {q(CA+24+4*c)}, {q(OP+12)}, 0")
    exchange("v8", "v9", 4, "L_E2")
    st.mark("b2x2")
    stage_w(lambda j: CB)
    for j in range(4):
        for i in range(4):
            a(f"v_cvt_pk_bf16_f32 v{PK+j*4+i}, v{AC+j*8+i}, -v{AC+j*8+4+i}")
            a(f"s_add_u32 s73, s23, {(16*i+j)*ROW}")
            a(f"buffer_store_dword v{PK+j*4+i}, v12, {WS}, s73 offen sc1")
    st.mark("lb2")
    a("s_waitcnt vmcnt(16)")
    lds_signal(a, 2)
    a("s_waitcnt vmcnt(0)")
    st.mark("lack")
    a(f"""s_mov_b64 exec, 1
    buffer_atomic_add v255, v206, {WS}, s19 offen sc1
    s_mov_b64 exec, -1
    s_branch L_B3C
    L_NOB2:""")
    lds_wait(a, 1, "L_XW2", 1)
    wo_dma((0, 1, 2, 3, 4, 5))
    a("s_waitcnt vmcnt(0)")
    lds_signal(a, 2)
    a(f"""L_B3C:
    v_cvt_f32_u32 v8, v2
    v_cvt_f32_u32 v9, v3
    s_add_u32 s61, s53, 4096
    s_add_u32 s63, s53, 8192
    s_bfe_u32 s22, s2, 0x20002
    s_lshl_b32 s22, s22, 11
    s_add_u32 s68, s22, {H2_OFF}
    v_cmp_eq_u32 vcc, 0, v2
    v_mov_b32 v249, 8
    v_addc_co_u32 v249, vcc, v249, v206, vcc""")
    b3_consts_a(); b3_consts_b()
    a("""s_lshl_b32 s65, s67, 11
    s_add_u32 s65, s65, 1024
    s_add_u32 s66, s65, 0x80000""")
    st.mark("lb3c")
    lds_wait(a, 13, "L_H2G", 2)
    a(f"""L_H2:
    s_cmp_eq_u32 s58, 0
    s_cbranch_scc0 L_H2W
    s_mov_b64 exec, 0xffff
    buffer_load_dword v9, v250, {WS}, s68 offen sc1
    s_waitcnt vmcnt(0)
    v_cmp_ne_u32 vcc, v249, v9
    s_cbranch_vccnz L_H2RE
    s_mov_b64 exec, 1
    ds_add_u32 v254, v207 offset:48
    s_mov_b64 exec, -1""")
    lds_wait(a, 12, "L_H2W", 1)
    st.mark("lul")
    a(f"""L_UL:
    buffer_load_dword v9, v15, {WS}, s63 offen sc1
    buffer_load_dword v8, v15, {WS}, s63 offen offset:32 sc1""")
    for v in range(4):
        for t in range(2): a(f"buffer_load_dwordx4 {q(DAT+(v*2+t)*4)}, v10, {WS}, s{61 if t else 53} offen offset:{v*256} {UFL}")
    a(f"""s_waitcnt vmcnt(8)
    v_lshlrev_b32 v8, 16, v8
    v_and_b32 v12, 0xffff0000, v9
    v_lshlrev_b32 v9, 16, v9
    v_mul_f32 v8, {fhex(2.0**-20)}, v8
    v_mul_f32 v9, v9, v13
    v_fma_f32 v9, -v12, v14, v9
    v_add_f32 v{INI}, v9, v8
    v_sub_f32 v{INI+1}, v9, v8
    v_add_f32 v{INI+2}, v9, v8
    v_sub_f32 v{INI+3}, v9, v8
    v_sub_f32 v{INI+4}, v8, v9
    v_sub_f32 v{INI+5}, -v9, v8
    v_sub_f32 v{INI+6}, v8, v9
    v_sub_f32 v{INI+7}, -v9, v8""")
    for v in range(4):
        for t in range(2):
            b = DAT + (v*2+t)*4
            a(f"s_waitcnt vmcnt({7-(v*2+t)})")
            cs = C1 + (16 if t else 8*(v >> 1))
            for c in range(2):
                acc = AC1 + (v*2+c)*4
                a(f"{MF} {q(acc)}, {q(b)}, {q(cs+4*c)}, {q(acc) if t else 0}")

    st.mark("luok")
    for v in range(4):
        for i in range(4): a(f"v_cvt_pk_bf16_f32 v{OP2+i*4+v}, v{AC1+v*8+i}, v{AC1+v*8+4+i}")
    for i in range(4):
        for c in range(2): a(f"{MF} {q(AC2+(i*2+c)*4)}, {q(OP2+i*4)}, {q(C2+4*c)}, 0")
    for i in range(4):
        xr = AC2 + i*8; xi = xr + 4; t0 = TMP + (i & 1)*8
        for ph in range(2):
            sel = "op_sel:[0,1] op_sel_hi:[1,1]" if ph else "op_sel_hi:[1,0]"
            a(f"v_pk_mul_f32 {d(t0+2*ph)}, {d(xr+2*ph)}, {d(TWC+2*i)} {sel}")
            a(f"v_pk_mul_f32 {d(t0+4+2*ph)}, {d(xi+2*ph)}, {d(TWC+2*i)} {sel}")
        for ph in range(2):
            sel = "op_sel:[0,1,0] op_sel_hi:[1,1,1]" if ph else "op_sel_hi:[1,0,1]"
            a(f"v_pk_fma_f32 {d(t0+2*ph)}, {d(xi+2*ph)}, {d(TWS+2*i)}, {d(t0+2*ph)} {sel} neg_lo:[1,0,0] neg_hi:[1,0,0]")
            a(f"v_pk_fma_f32 {d(t0+4+2*ph)}, {d(xr+2*ph)}, {d(TWS+2*i)}, {d(t0+4+2*ph)} {sel}")
        for ph in range(2):
            for rho in range(2):
                a(f"v_cvt_pk_bf16_f32 v{OP3+(rho*2+(i>>1))*4+(i&1)*2+ph}, v{t0+2*ph+rho}, v{t0+4+2*ph+rho}")
    for kap in range(2):
        for rho in range(2):
            for th in range(2):
                acc = AC3 + (rho*2+th)*4
                a(f"{MF} {q(acc)}, {q(OP3+(rho*2+kap)*4)}, {q(C3+kap*8+th*4)}, {q(acc) if kap else q(INI+4*rho)}")
    for rho in range(2):
        for th in range(2):
            acc = AC3 + (rho*2+th)*4; o = OUT + (rho*2+th)*2
            a(f"v_cvt_pk_bf16_f32 v{o}, v{acc}, v{acc+1}\nv_cvt_pk_bf16_f32 v{o+1}, v{acc+2}, v{acc+3}")
            a(f"buffer_store_dwordx2 {d(o)}, v11, s[40:43], s{65+rho} offen offset:{th*512} {OUTFL}")
    st.mark("lend")
    st.dump()
    a("s_endpgm")

def c_start(a, st):
    a(f"""s_lshl_b32 s69, s3, 11
    s_lshl_b32 s58, s3, 19
    s_lshl_b32 s59, s2, 10
    s_add_u32 s58, s58, s59
    s_add_u32 s59, s58, {0x40000-1024}
    s_add_u32 m0, s69, {BXB}
    v_and_b32 v2, 15, v0
    v_lshrrev_b32 v3, 4, v0
    s_cmp_ge_u32 s2, 201
    s_cselect_b32 s22, 0, -1
    v_mov_b32 v208, s22
    v_mov_b32 v209, s22
    v_mov_b32 v210, s22
    v_mov_b32 v211, s22
    s_sub_u32 s52, s2, 129
    s_lshl_b32 s65, s52, 13
    s_add_u32 s65, s65, s69
    s_add_u32 s65, s65, {KVP_OFF}""")
    srd_const(a, 24, wsz())
    a("s_waitcnt lgkmcnt(0)")
    srd_ptr(a, 28, 10); srd_ptr(a, 24, 20)
    a(f"""buffer_load_dwordx4 v7, s[28:31], s58 offen lds
    buffer_load_dwordx4 v7, s[28:31], s59 offen offset:1024 lds
    s_cmp_lt_u32 s52, 74
    s_cbranch_scc0 C_NOCLR
    buffer_store_dwordx4 v[208:211], v7, {WS}, s65 offen sc1
    buffer_store_dwordx4 v[208:211], v7, {WS}, s65 offen offset:1024 sc1
    C_NOCLR:
    s_barrier
    s_setprio {CPRIO}""")
    st.mark("iss")
    a("s_branch C_CONST")

def c_main(a, st):
    C1, C2, TWC, TWS, C3A, C3B, DAT, AC1, OP2, AC2 = 16, 48, 64, 80, 96, 104, 112, 144, 160, 168
    OP3, TMP, AC3, ACE, OUT, MSK = 112, 128, 144, 160, 200, 228
    a("C_CONST:")
    common_setup(a)
    a("""s_lshl_b32 s60, s3, 8
    s_mul_i32 s61, s2, s3
    s_add_u32 s59, s61, 512
    s_cmp_eq_u32 s3, 0
    s_cselect_b32 s62, 1024, s60
    s_cselect_b32 s59, 0, s59
    s_cselect_b32 s58, s2, 0
    s_cselect_b32 s65, 0, 0xbe800000
    s_cselect_b64 s[66:67], -1, 0
    v_and_b32 v14, 1, v0
    v_cmp_eq_u32 vcc, 1, v14
    v_mov_b32 v4, 0xffff
    v_mov_b32 v5, 0xffff0000
    v_cndmask_b32 v14, v4, v5, vcc""")
    for r in range(4): a(f"v_cmp_eq_u32 vcc, {r}, v15\nv_cndmask_b32 v{MSK+r}, 0, v14, vcc")
    a(f"""v_lshrrev_b32 v10, 5, v0
    v_mov_b32 v11, s61
    v_mov_b32 v12, s59
    v_mad_u32_u24 v11, v10, s60, v11
    v_mad_u32_u24 v12, v10, s62, v12
    v_cvt_f32_u32 v11, v11
    v_cvt_f32_u32 v12, v12
    v_cvt_f32_u32 v13, s60
    v_cvt_f32_u32 v14, s62
    v_mul_f32 v11, {fhex(1/2048)}, v11
    v_mul_f32 v12, {fhex(1/2048)}, v12
    v_mul_f32 v13, {fhex(2/2048)}, v13
    v_mul_f32 v14, {fhex(2/2048)}, v14""")
    for t in range(4):
        for c in range(2):
            b = C1 + (t*2 + c)*4
            a(f"v_cos_f32 v{b+3}, v{11+c}")
            if t < 3: a(f"v_add_f32 v{11+c}, v{11+c}, v{13+c}")
            a(f"v_cvt_pk_bf16_f32 v{b+3}, v{b+3}, v{b+3}")
            for r in range(4): a(f"v_and_b32 v{b+r}, v{b+3}, v{MSK+r}")
    a(f"v_mul_f32 v10, {fhex(1/32)}, v8\nv_mul_f32 v11, 4.0, v9\nv_mul_f32 v12, v11, v10")
    for i in range(4):
        a(f"v_cos_f32 v{TMP+i}, v12\nv_sin_f32 v{TMP+4+i}, v12")
        if i < 3: a("v_add_f32 v12, v12, v10")
    a("v_lshlrev_b32 v13, 31, v0\nv_lshrrev_b32 v14, 16, v13\nv_or_b32 v13, v13, v14")
    a(f"""v_cvt_pk_bf16_f32 v{C2}, v{TMP}, v{TMP+1}
    v_cvt_pk_bf16_f32 v{C2+1}, v{TMP+2}, v{TMP+3}
    v_cvt_pk_bf16_f32 v{C2+4}, -v{TMP+4}, -v{TMP+5}
    v_cvt_pk_bf16_f32 v{C2+5}, -v{TMP+6}, -v{TMP+7}
    s_brev_b32 s68, 1""")
    for c in range(2):
        b = C2 + 4*c
        a(f"v_xor_b32 v{b+2}, v{b}, v13\nv_xor_b32 v{b+3}, v{b+1}, v13")
        for r in range(4): a(f"v_xor_b32 v{b+8+r}, s68, v{b+r}")
    a("v_add_f32 v10, v10, v10\nv_mul_f32 v12, v11, v10")
    a("""v_cmp_gt_u32 vcc, 8, v2
    s_andn2_b64 s[22:23], s[66:67], vcc
    s_and_b64 s[66:67], s[66:67], vcc
    v_cndmask_b32 v13, -1, 0, s[22:23]
    v_cndmask_b32 v14, -1, 0, s[66:67]""")
    for i in range(4):
        a(f"""v_cos_f32 v{TMP}, v12
        v_sin_f32 v{TMP+1}, v12
        v_add_f32 v15, s65, v12
        v_cos_f32 v{TMP+2}, v15
        v_sin_f32 v{TMP+3}, v15""")
        if i < 3: a("v_add_f32 v12, v12, v10")
        a(f"""v_cvt_pk_bf16_f32 v{C3A+i}, v{TMP}, v{TMP+1}
        v_cvt_pk_bf16_f32 v{C3A+4+i}, -v{TMP+1}, v{TMP}
        v_cvt_pk_bf16_f32 v{C3B+i}, v{TMP+2}, v{TMP+3}
        v_cvt_pk_bf16_f32 v{C3B+4+i}, -v{TMP+3}, v{TMP+2}""")
    for r in range(8): a(f"v_and_b32 v{C3A+r}, v{C3A+r}, v13\nv_and_b32 v{C3B+r}, v{C3B+r}, v14")
    a(f"v_cvt_f32_u32 v14, s58\nv_mul_f32 v14, {fhex(1/512)}, v14")
    for tau in range(2):
        a(f"v_mul_f32 v10, {fhex(1/512)}, v8")
        if tau: a(f"v_add_f32 v10, {fhex(16/512)}, v10")
        a("v_mul_f32 v12, v11, v10")
        for i in range(4):
            k0 = tau*4 + i; k1 = 8 + k0
            a(f"""v_cos_f32 v{TWC+k0}, v12
            v_sin_f32 v{TWS+k0}, v12
            v_add_f32 v15, v12, v14
            v_cos_f32 v{TWC+k1}, v15
            v_sin_f32 v{TWS+k1}, v15""")
            if i < 3: a("v_add_f32 v12, v12, v10")
    a(f"""v_lshrrev_b32 v14, 5, v0
    v_lshlrev_b32 v10, 10, v14
    v_lshl_add_u32 v10, v2, 5, v10
    v_and_b32 v12, 16, v0
    v_add_u32 v10, v10, v12
    v_add_u32 v10, {BXB}, v10""")
    st.mark("cconst")
    a("s_waitcnt vmcnt(0)")
    lds_signal(a, 0)
    lds_wait(a, 0, "C_BXW")
    a("""s_cmp_eq_u32 s3, 3
    s_cselect_b32 s22, s52, -1
    s_cmp_lt_u32 s22, 74
    s_cbranch_scc0 C_NOGO
    s_and_b32 s22, s22, 1
    s_lshl_b32 s22, s22, 7
    s_mov_b64 exec, 1
    buffer_atomic_add v255, v7, s[44:47], s22 offen sc1
    s_mov_b64 exec, -1
    C_NOGO:""")
    st.mark("cbx")
    for u in range(2):
        for t in range(4): a(f"ds_read_b128 {q(DAT+(u*4+t)*4)}, v10 offset:{t*2048+u*512}")
    fill = f"""v_lshlrev_b32 v11, 16, v3
    v_lshl_add_u32 v11, v2, 2, v11
    v_and_b32 v12, 6, v2
    v_xor_b32 v12, v12, v3
    v_lshlrev_b32 v12, 4, v12
    v_lshl_add_u32 v4, v2, 7, v12
    v_add_u32 v4, {XB}, v4
    v_xor_b32 v5, 64, v4
    v_bfe_u32 v12, v0, 2, 3
    v_bfe_u32 v13, v0, 1, 1
    v_and_b32 v15, 6, v12
    v_xor_b32 v13, v13, v15
    v_lshlrev_b32 v13, 4, v13
    v_lshl_add_u32 v13, v12, 7, v13
    v_and_b32 v15, 1, v0
    v_lshl_add_u32 v13, v15, 3, v13
    s_lshl_b32 s22, s3, 5
    v_xor_b32 v13, s22, v13
    v_lshl_add_u32 v6, v14, 12, v13
    v_lshl_add_u32 v8, v14, 11, v13
    v_lshlrev_b32 v9, 8, v14
    v_lshl_add_u32 v9, v2, 4, v9
    s_and_b32 s60, s2, 15
    s_lshl_b32 s60, s60, 4
    s_bfe_u32 s61, s2, 0x20004
    s_lshl_b32 s61, s61, 2
    s_add_u32 s60, s60, s61
    s_lshr_b32 s61, s2, 6
    s_add_u32 s60, s60, s61
    s_lshl_b32 s60, s60, 6
    s_lshl_b32 s61, s3, 19
    s_add_u32 s61, s61, s60
    s_add_u32 s62, s61, 0x40000
    s_add_u32 s60, s60, {128*16384}
    s_lshl_b32 s53, s51, 2
    s_add_u32 s53, s53, s3
    s_lshl_b32 s58, s53, 14
    s_add_u32 s58, s58, {KVP_OFF}
    s_lshl_b32 s59, s53, 11
    s_add_u32 s59, s59, {ZP_OFF}
    s_lshl_b32 s63, s50, 9
    s_add_u32 s63, s63, s58
    s_lshl_b32 s64, s50, 6
    s_add_u32 s64, s64, s59
    s_and_b32 s19, s2, 15
    s_lshl_b32 s19, s19, 7
    s_add_u32 s19, s19, {F0_OFF}
    s_getreg_b32 s23, hwreg(HW_REG_XCC_ID)
    s_and_b32 s23, s23, 15
    s_cmp_eq_u32 s23, {'s48' if not FORCESLOW else '15'}
    s_cselect_b32 s23, 1, 0x10001
    v_mov_b32 v240, s23
    s_cmp_eq_u32 s3, 0
    s_cselect_b32 s18, {SIG1 if TPOS < 6 else 1}, -1
    v_lshlrev_b32 v10, 2, v2
    v_lshl_add_u32 v13, v14, 5, v10
    v_and_b32 v{MSK}, 0x3f803f80, v{MSK}
    v_and_b32 v{MSK+1}, 0x3f803f80, v{MSK+1}
    v_and_b32 v{MSK+2}, 0x3f803f80, v{MSK+2}
    v_and_b32 v{MSK+3}, 0x3f803f80, v{MSK+3}
    s_mov_b32 s66, {fhex(1.4426950408889634)}
    s_mov_b32 s67, s66
    s_mov_b32 s65, {fhex(1e-6)}
    v_mov_b32 v232, 0x3f803f80
    v_mov_b32 v233, 0x3f803f80
    v_mov_b32 v234, 0x3f803f80
    v_mov_b32 v235, 0x3f803f80""".split("\n")
    def F(n):
        for _ in range(n):
            if fill: a(fill.pop(0))
    F(8)
    for u in range(2):
        for t in range(4):
            a(f"s_waitcnt lgkmcnt({7-(u*4+t)})")
            for c in range(2):
                acc = AC1 + (u*2+c)*4
                a(f"{MF} {q(acc)}, {q(DAT+(u*4+t)*4)}, {q(C1+(t*2+c)*4)}, {q(acc) if t else 0}")
                F(1)
    for u in range(2):
        if u: F(4)
        for rho in range(2):
            s = AC1 + (u*2+rho)*4
            a(f"v_cvt_pk_bf16_f32 v{OP2+rho*4+u*2}, v{s}, v{s+1}\nv_cvt_pk_bf16_f32 v{OP2+rho*4+u*2+1}, v{s+2}, v{s+3}")
    for rho in range(2):
        for tau in range(2):
            for c in range(2): a(f"{MF} {q(AC2+((rho*2+tau)*2+c)*4)}, {q(OP2+rho*4)}, {q(C2+(tau*2+c)*4)}, 0"); F(1)
    def st3(rho, tau):
        for c in range(2):
            acc = AC3 + (tau*2+c)*4
            a(f"{MF} {q(acc)}, {q((C3B if rho else C3A)+4*c)}, {q(OP3+(rho*2+tau)*4)}, {q(acc) if rho else 0}")
        if tau == 0:
            for c in range(2):
                acc = ACE + 4*c
                a(f"{MF} {q(acc)}, {q((C3A if rho else C3B)+4*c)}, {q(OP3+(rho*2)*4)}, {q(acc) if rho else 0}")
    prev = None
    for rho in range(2):
        for tau in range(2):
            xr = AC2 + ((rho*2+tau)*2)*4; xi = xr + 4; k = rho*8 + tau*4
            t0 = TMP + ((rho*2+tau) & 1)*8
            for h in (0, 2):
                a(f"v_pk_mul_f32 {d(t0+h)}, {d(xr+h)}, {d(TWC+k+h)}")
                a(f"v_pk_mul_f32 {d(t0+4+h)}, {d(xi+h)}, {d(TWC+k+h)}")
            if prev: st3(*prev)
            for h in (0, 2):
                a(f"v_pk_fma_f32 {d(t0+h)}, {d(xi+h)}, {d(TWS+k+h)}, {d(t0+h)}")
                a(f"v_pk_fma_f32 {d(t0+4+h)}, {d(xr+h)}, {d(TWS+k+h)}, {d(t0+4+h)} neg_lo:[1,0,0] neg_hi:[1,0,0]")
            for i in range(4): a(f"v_cvt_pk_bf16_f32 v{OP3+(rho*2+tau)*4+i}, v{t0+i}, v{t0+4+i}")
            prev = (rho, tau)
    F(2)
    st3(*prev)
    F(100)
    for tau in range(2):
        for i in range(4): a(f"v_cvt_pk_bf16_f32 v{OUT+tau*4+i}, v{AC3+tau*8+i}, v{AC3+tau*8+4+i}")
    a(f"v_cvt_pk_bf16_f32 v14, v{ACE}, v{ACE+4}")
    AK, AV, AQ = 144, 160, 112
    if TPOS == 0: a("s_branch C_TST\nC_TRET:")
    for r in range(0, 32, 2): a(f"v_pk_mul_f32 {d(AK+r)}, {d(232)}, 0")
    st.mark("cst")
    XF = lambda ks, R: 16 + (ks*4 + R)*4
    WF = lambda ks, p: 48 + (ks*2 + p)*4
    def reads(ks):
        L = []
        def w(p):
            for eta in range(2): L.append(f"ds_read_b64_tr_b16 {d(WF(ks,p)+2*eta)}, v6 offset:{(4*ks+eta)*2048 + p*1024}")
        w(0)
        for R in range(4): L.append(f"ds_read_b128 {q(XF(ks,R))}, v{4+ks} offset:{R*2048}")
        w(1)
        return L
    def mf(ks, p): return [f"{MF} {q(AK+(p*4+R)*4)}, {q(XF(ks,R))}, {q(WF(ks,p))}, {q(AK+(p*4+R)*4)}" for R in range(4)]
    def mfmas(ks): return mf(ks, 0) + mf(ks, 1)
    def inter(M, Rd):
        for i, m in enumerate(M):
            a(m)
            if i < len(Rd): a(Rd[i])
    a("s_mov_b32 s68, 0\ns_barrier")
    st.mark("cf0")
    for r in reads(0): a(r)
    a("s_branch C_MID\nC_LOOP:\ns_barrier")
    inter(mfmas(1), reads(0))
    if TPOS: a(f"s_cmp_eq_u32 s68, {TPOS}\ns_cbranch_scc1 C_TST\nC_TRET:")
    if TPOS < 6: a("s_cmp_eq_u32 s68, s18\ns_cbranch_scc1 C_SIG")
    a("C_MID:\ns_waitcnt lgkmcnt(0)")
    inter(mfmas(0), reads(1))
    a(f"""v_add_u32 v4, 0x2000, v4
    v_add_u32 v5, 0x2000, v5
    v_add_u32 v6, 0x4000, v6
    v_and_b32 v6, 0xffff, v6
    s_add_u32 s68, s68, 1
    {"" if TPOS == 6 else f"s_cmp_lg_u32 s68, {SIG1}"}
    {"" if TPOS == 6 else "s_cbranch_scc1 C_NOW"}
    {"" if TPOS == 6 else "s_waitcnt vmcnt(0)"}
    C_NOW:
    s_cmp_lt_u32 s68, 7
    s_waitcnt lgkmcnt(0)
    s_cbranch_scc1 C_LOOP""")
    for m in mfmas(1): a(m)
    a("s_barrier")
    st.mark("cl1")
    R0, R1 = reads(0), reads(1)
    for r in R0[:6] + R1[:6]: a(r)
    M = mf(0, 0)
    for i in range(4): a(f"s_waitcnt lgkmcnt({9-i})"); a(M[i])
    for r in R0[6:] + R1[6:]: a(r)
    M = mf(1, 0)
    for i in range(4): a(f"s_waitcnt lgkmcnt({7-i})"); a(M[i])
    a("s_waitcnt lgkmcnt(0)")
    KP, VP, KV, ZZ, KO = 208, 216, 236, 244, 248
    MV = mf(0, 1) + mf(1, 1)
    for m in MV[:3]: a(m)
    MV = MV[3:]
    def phi_list(src, dst, tmp):
        L = []
        for g4 in range(0, 16, 4):
            L += [f"v_pk_mul_f32 {d(tmp+g4+h)}, {d(src+g4+h)}, s[66:67]" for h in (0, 2)]
        for h in range(16):
            L += [f"v_exp_f32 v{tmp+h}, v{tmp+h} clamp", f"v_max_f32 v{src+h}, s65, v{src+h}"]
        for h in range(0, 16, 2): L += [f"v_pk_add_f32 {d(src+h)}, {d(src+h)}, {d(tmp+h)}"]
        for h in range(8): L += [f"v_cvt_pk_bf16_f32 v{dst+h}, v{src+2*h}, v{src+2*h+1}"]
        return L
    P = phi_list(AK, KP, 128)
    for i, x in enumerate(P):
        a(x)
        if i % 2 == 1 and MV: a(MV.pop(0))
    for h in range(8): a(f"v_cvt_pk_bf16_f32 v{VP+h}, v{AV+2*h}, v{AV+2*h+1}")
    a(f"""{MF} {q(KV)}, {q(KP)}, {q(VP)}, 0
    {MF} {q(KV)}, {q(KP+4)}, {q(VP+4)}, {q(KV)}
    {MF} {q(ZZ)}, v[232:235], {q(KP)}, 0
    {MF} {q(ZZ)}, v[232:235], {q(KP+4)}, {q(ZZ)}
    v_subrev_u32 v4, 0xe000, v4
    v_subrev_u32 v5, 0xe000, v5
    v_lshlrev_b32 v11, 6, v2
    v_lshl_add_u32 v11, v3, 4, v11
    s_lshl_b32 s60, s55, 12
    s_mov_b32 s68, 0
    v_cvt_pk_bf16_f32 v{KO}, v{KV}, v{KV+1}
    v_cvt_pk_bf16_f32 v{KO+1}, v{KV+2}, v{KV+3}
    v_min_u32 v{KO}, -2, v{KO}
    v_mov_b32 v{KO+3}, v{KO+1}
    v_mov_b32 v{KO+2}, v{KO}
    v_min_u32 v{ZZ}, -2, v{ZZ}
    v_permlane16_swap_b32 v{KO+1}, v{KO+3}
    v_permlane16_swap_b32 v{KO}, v{KO+2}
    s_mov_b32 exec_lo, 0xffff
    s_mov_b32 exec_hi, 0xffff
    buffer_store_dwordx4 {q(KO)}, v9, {WS}, s63 offen sc1
    s_mov_b32 exec_hi, 0
    buffer_store_dword v{ZZ}, v10, {WS}, s64 offen sc1
    s_mov_b64 exec, 1
    ds_add_u32 v254, v255 offset:20
    s_mov_b64 exec, -1""")
    st.mark("t0")
    class LQ:
        def __init__(self): self.o = []
        def issue(self, txt, tag):
            if len(self.o) >= 15: self.drain(10)
            a(txt); self.o.append(tag)
        def drain(self, n):
            if len(self.o) > n: a(f"s_waitcnt lgkmcnt({n})"); self.o = self.o[len(self.o)-n:] if n else []
        def need(self, *tags):
            idx = [i for i, t in enumerate(self.o) if t in tags]
            if idx: self.drain(len(self.o) - 1 - max(idx))
    lq = LQ()
    XS = [16 + 16*k for k in range(6)] + [144 + 16*k for k in range(4)]
    xs = lambda s_: XS[s_ % NPRE]
    wq = lambda s_: (128 if (s_ >> 2) % 2 == 0 else 208) + 4*(s_ & 3)
    def xr(s_): return [(f"ds_read_b128 {q(xs(s_)+4*R)}, v{4+(s_&1)} offset:{(s_>>1)*8192 + R*2048}", f"x{s_}") for R in range(4)]
    def wr_(g_): return [(f"ds_read_b64_tr_b16 {d(wq(s_)+2*eta)}, v8 offset:{g_*16384 + ((s_>>1)&1)*8192 + (4*(s_&1)+eta)*1024}", f"w{s_}") for s_ in range(4*g_, 4*g_+4) for eta in range(2)]
    for s_ in range(NPRE):
        for t in xr(s_): lq.issue(*t)
    lds_wait(a, 8, "C_Q0"); lq.o = []
    st.mark("cq0")
    for t in wr_(0): lq.issue(*t)
    for g_ in range(4):
        pend = []
        if g_ < 3: lq.issue(f"ds_read_b32 v253, v254 offset:{4*(9+g_)}", "c")
        for s_ in range(4*g_, 4*g_+4):
            if s_ & 3 == 1 and g_ < 3:
                lq.need("c")
                a(f"v_cmp_ne_u32 vcc, 4, v253\ns_cbranch_vccnz C_QS{g_+1}\nC_QR{g_+1}:")
                pend += wr_(g_+1)
            lq.need(f"x{s_}", f"w{s_}")
            if s_ >= 1 and s_ - 1 + NPRE < 16: pend += xr(s_ - 1 + NPRE)
            for R in range(4):
                a(f"{MF} {q(AQ+R*4)}, {q(wq(s_))}, {q(xs(s_)+4*R)}, {q(AQ+R*4) if s_ else 0}")
                for _ in range(2):
                    if pend: lq.issue(*pend.pop(0))
        for t in pend: lq.issue(*t)
    assert not lq.o
    st.mark("cp2")
    QP, PP, ZL = 96, 16, 80
    def pl(p0, p1, fl):
        for p in range(p0, p1):
            if p % 2 == 0: a(f"s_add_u32 s22, s60, {p*1024}\ns_and_b32 s22, s22, 0x3fff\ns_add_u32 s22, s22, s58")
            a(f"buffer_load_dwordx4 {q(PP+4*p)}, v7, {WS}, s22 offen offset:{(p&1)*1024} {fl}")
    def zload():
        for k in range(2): a(f"buffer_load_dwordx4 {q(ZL+4*k)}, v11, {WS}, s59 offen offset:{k*1024} sc1")
    zload(); pl(0, PSPLIT, "sc1")
    for x in phi_list(AQ, QP, 128): a(x)
    pl(PSPLIT, 16, "sc1")
    lds_signal(a, 1)
    st.mark("cpi")
    DEN, NUM, KVS = 112, 128, 104
    a(f"""C_PZ:
    s_waitcnt vmcnt(16)
    v_max3_u32 v1, v{ZL}, v{ZL+1}, v{ZL+2}
    v_max3_u32 v14, v{ZL+3}, v{ZL+4}, v{ZL+5}
    v_max3_u32 v1, v1, v{ZL+6}, v{ZL+7}
    v_max_u32 v1, v1, v14
    v_cmp_eq_u32 vcc, -1, v1
    s_cbranch_vccnz C_PSZ
    v_pk_add_f32 {d(ZL)}, {d(ZL)}, {d(ZL+4)}
    v_pk_add_f32 {d(ZL+2)}, {d(ZL+2)}, {d(ZL+6)}""")
    for sh in (8, 4, 2, 1):
        for r in range(4): a(f"v_add_f32_dpp v{ZL+r}, v{ZL+r}, v{ZL+r} row_ror:{sh} row_mask:0xf bank_mask:0xf")
    a(f"v_cvt_pk_bf16_f32 v{ZL+4}, v{ZL}, v{ZL+1}\nv_cvt_pk_bf16_f32 v{ZL+5}, v{ZL+2}, v{ZL+3}")
    a(f"""v_and_b32 v12, 1, v3
    v_lshl_add_u32 v12, v12, 14, v9""")
    for R in range(4): a(f"{M16} {q(DEN+4*R)}, {d(ZL+4)}, {d(QP+2*R)}, 0")
    a(f"""s_lshl_b32 s61, s50, 16
    s_lshl_b32 s62, s53, 9
    s_add_u32 s61, s61, s62
    s_add_u32 s61, s61, {O_OFF}
    s_add_u32 s62, s61, 0x8000""")
    for R in range(4): a(f"v_add_f32 v{DEN+4*R}, s65, v{DEN+4*R}")
    for R in range(4): a(f"v_rcp_f32 v{DEN+4*R}, v{DEN+4*R}")
    st.mark("cz")
    lds_wait(a, 7, "C_MW")
    a("ds_read_b32 v239, v254 offset:24")
    a("C_PP:\nv_mov_b32 v1, 0")
    for p in range(0, 16, 2):
        a(f"""s_waitcnt vmcnt({14-p})
        {MF} {q(KVS)}, {q(MSK)}, {q(PP+4*p)}, {q(KVS) if p else 0}
        v_max3_u32 v1, v1, v{PP+4*p}, v{PP+4*p+4}
        {MF} {q(KVS)}, {q(MSK)}, {q(PP+4*p+4)}, {q(KVS)}""")
    a("v_cmp_eq_u32 vcc, -1, v1\ns_cbranch_vccnz C_PS")
    st.mark("ckv")
    a(f"v_cvt_pk_bf16_f32 v{ZL+6}, v{KVS}, v{KVS+1}\nv_cvt_pk_bf16_f32 v{ZL+7}, v{KVS+2}, v{KVS+3}")
    for R in range(4): a(f"{M16} {q(NUM+4*R)}, {d(ZL+6)}, {d(QP+2*R)}, 0")
    OO = 244
    for pr in range(2):
        for R in (2*pr, 2*pr+1):
            for h in (0, 2): a(f"v_pk_mul_f32 {d(NUM+4*R+h)}, {d(NUM+4*R+h)}, {d(DEN+4*R)} op_sel_hi:[1,0]")
            a(f"v_cvt_pk_bf16_f32 v{OO+2*R}, v{NUM+4*R}, v{NUM+4*R+1}\nv_cvt_pk_bf16_f32 v{OO+2*R+1}, v{NUM+4*R+2}, v{NUM+4*R+3}")
        o = OO + 4*pr
        a(f"v_permlane16_swap_b32 v{o}, v{o+2}\nv_permlane16_swap_b32 v{o+1}, v{o+3}")
    a(f"""s_waitcnt lgkmcnt(0)
    v_readfirstlane_b32 s75, v239
    s_lshl_b32 s6, s50, 7
    s_add_u32 s6, s6, {F0_OFF + OF_OFF}
    s_lshl_b32 s7, s53, 2
    s_add_u32 s7, s7, s6
    s_cmp_eq_u32 s75, 0
    s_cbranch_scc0 C_OSLOW
    buffer_store_dwordx4 {q(OO)}, v12, {WS}, s61 offen
    buffer_store_dwordx4 {q(OO+4)}, v12, {WS}, s62 offen
    C_OST:""")
    st.mark("co")
    a(f"""s_lshl_b32 s22, s3, 5
    v_xor_b32 v8, s22, v8
    v_add_u32 v8, {XB + 16384}, v8
    v_xor_b32 v9, 32, v8
    v_xor_b32 v10, 64, v8
    v_xor_b32 v11, 96, v8
    v_and_b32 v13, 31, v0
    v_lshlrev_b32 v13, 2, v13""")
    OF, ACC = 16, 128
    WB = [80, 96, 112, 160, 176, 192, 208, 224, 144]
    wb = lambda p: WB[p % NWO]
    def wreads(p): return [(f"ds_read_b64_tr_b16 {d(wb(p)+4*t+2*eta)}, v{8+t} offset:{p*4096 + eta*1024}", f"o{p}") for t in range(4) for eta in range(2)]
    a("s_cmp_eq_u32 s75, 0\ns_waitcnt vmcnt(0)")
    st.mark("cab")
    a(f"""s_mov_b64 exec, 1
    s_cbranch_scc0 C_FSLOW
    buffer_store_dword v255, v7, {WS}, s7 offen
    C_FST:
    s_mov_b64 exec, -1""")
    lds_wait(a, 2, "C_WW")
    st.mark("cww")
    for p in range(0, 4):
        for t in wreads(p): lq.issue(*t)
    a(f"""s_mov_b32 exec_hi, 0
    buffer_load_dword v1, v13, {WS}, s6 offen sc1
    s_mov_b32 exec_hi, -1""")
    for p in range(4, NWO):
        for t in wreads(p): lq.issue(*t)
    a(f"""s_lshl_b32 s58, s50, 16
    s_lshl_b32 s22, s3, 14
    s_add_u32 s58, s58, s22
    s_add_u32 s58, s58, {O_OFF}
    s_lshl_b32 s60, s55, 12
    s_add_u32 s60, s60, 4096
    s_mov_b32 exec_hi, 0
    C_OP:
    s_waitcnt vmcnt(0)
    v_cmp_ne_u32 vcc, 1, v1
    s_cbranch_vccnz C_OPRE
    s_mov_b64 exec, -1""")
    st.mark("cof")
    pl(0, 16, OFL)
    lq.issue("s_mov_b64 exec, 1\nds_add_u32 v254, v255 offset:52\ns_mov_b64 exec, -1", "a")
    st.mark("coi")
    a(f"""v_lshlrev_b32 v12, 11, v2
    v_and_b32 v13, 1, v3
    v_lshl_add_u32 v12, v13, 5, v12
    v_lshrrev_b32 v13, 1, v3
    v_lshl_add_u32 v12, v13, 4, v12
    s_lshl_b32 s61, s50, 17
    s_lshl_b32 s22, s3, 15
    s_add_u32 s61, s61, s22
    s_lshl_b32 s22, s51, 7
    s_add_u32 s61, s61, s22""")
    for p in range(16):
        a(f"s_waitcnt vmcnt({15-p})")
        lq.need(f"o{p}")
        if p == 0: st.mark("cg0")
        R = wreads(p-1+NWO) if p >= 1 and p-1+NWO < 16 else []
        for t in range(4):
            a(f"{MF} {q(ACC+4*t)}, {q(wb(p)+4*t)}, {q(OF+4*p)}, {q(ACC+4*t) if p else 0}")
            for r in R[2*t:2*t+2]: lq.issue(*r)
    st.mark("cg")
    for pr in range(2):
        o = 144 + pr*4
        for t in range(2):
            acc = ACC + (pr*2+t)*4
            a(f"v_cvt_pk_bf16_f32 v{o+2*t}, v{acc}, v{acc+1}\nv_cvt_pk_bf16_f32 v{o+2*t+1}, v{acc+2}, v{acc+3}")
        a(f"v_permlane16_swap_b32 v{o}, v{o+2}\nv_permlane16_swap_b32 v{o+1}, v{o+3}")
        a(f"buffer_store_dwordx4 {q(o)}, v12, s[40:43], s61 offen offset:{64*pr} {OUTFL}")
    st.dump()
    a("s_endpgm")
    a("C_PL0:")
    pl(0, 16, "sc1")
    a("s_setpc_b64 s[70:71]")
    for g_ in range(1, 4):
        lds_wait(a, 8+g_, f"C_QS{g_}")
        a(f"s_branch C_QR{g_}")
    a("C_PSZ:")
    spin_check(a)
    zload()
    a(f"""s_waitcnt vmcnt(0)
    v_max3_u32 v1, v{ZL}, v{ZL+1}, v{ZL+2}
    v_max3_u32 v14, v{ZL+3}, v{ZL+4}, v{ZL+5}
    v_max3_u32 v1, v1, v{ZL+6}, v{ZL+7}
    v_max_u32 v1, v1, v14
    v_cmp_eq_u32 vcc, -1, v1
    s_cbranch_vccnz C_PSZ
    s_call_b64 s[70:71], C_PL0
    s_branch C_PZ
    C_PS:""")
    spin_check(a)
    a("s_call_b64 s[70:71], C_PL0\ns_waitcnt vmcnt(0)\ns_branch C_PP")
    TST = "\n".join(f"buffer_store_dword v{OUT+k}, v11, {WS}, s61 offen sc1\ns_add_u32 s61, s61, {0x4000 if k != 3 else 0x40000-3*0x4000}" for k in range(8))
    a(f"""C_OSLOW:
    buffer_store_dwordx4 {q(OO)}, v12, {WS}, s61 offen sc1
    buffer_store_dwordx4 {q(OO+4)}, v12, {WS}, s62 offen sc1
    s_branch C_OST
    C_FSLOW:
    buffer_store_dword v255, v7, {WS}, s7 offen sc1
    s_branch C_FST
    C_OPRE:
    s_sub_u32 s72, s72, 1
    s_cbranch_scc1 L_END
    buffer_load_dword v1, v13, {WS}, s6 offen sc1
    s_branch C_OP
    C_SIG:
    s_mov_b64 exec, 1
    buffer_atomic_add v240, v7, {WS}, s19 offen sc1
    s_mov_b64 exec, -1
    s_branch {"C_MID" if TPOS < 6 else "C_MID2"}
    C_TST:
    {TST}
    s_cmp_eq_u32 s3, 0
    s_cbranch_scc0 C_TRET
    s_mov_b32 exec_lo, 0xff
    s_mov_b32 exec_hi, 0xff
    buffer_store_dword v14, v13, {WS}, s60 offen sc1
    s_mov_b64 exec, -1
    s_branch C_TRET
    L_H2RE:""")
    spin_check(a)
    a(f"s_sleep {PSLEEP}\ns_branch L_H2\nL_H1RE:")
    spin_check(a)
    a(f"""s_sleep {PSLEEP}
    s_mov_b64 exec, 0xffff
    buffer_load_dword v205, v250, {WS}, 0 offen sc1
    s_waitcnt vmcnt(0)
    v_and_b32 v1, 0xffff, v205
    v_cmp_ne_u32 vcc, 16, v1
    s_cbranch_vccnz L_H1RE
    v_cmp_ne_u32 vcc, 16, v205
    v_mov_b32 v1, vcc_lo
    s_mov_b64 exec, 1
    ds_write_b32 v254, v1 offset:24
    ds_add_u32 v254, v207 offset:28
    s_mov_b64 exec, -1
    s_branch L_H1OK
    L_GORE:""")
    spin_check(a)
    a("buffer_load_dword v204, v249, s[44:47], 0 offen sc1\ns_waitcnt vmcnt(0)\ns_branch L_GO\nL_END:\ns_endpgm")

HEADER = open("concat_heads__linear_attn_block__spectral_gfnet__prompt.s.ref").read().split("; Override")[0]

def main(out):
    a = Asm(); st = Stamps(a)
    entry(a, st); c_start(a, st); l_main(a, st); c_main(a, st)
    txt = HEADER + f"""; @launch grid=(256,1,1) block=(512,1,1) lds={LDS_SIZE}
.amdgcn_target "amdgcn-amd-amdhsa--gfx950"
.text
""" + a.finalize() + f""".section .rodata,"a"
.p2align 6
.amdhsa_kernel {NAME}
  .amdhsa_next_free_vgpr 256
  .amdhsa_next_free_sgpr 102
  .amdhsa_accum_offset 256
  .amdhsa_group_segment_fixed_size 0
  .amdhsa_kernarg_size 72
  .amdhsa_user_sgpr_count 2
  .amdhsa_user_sgpr_kernarg_segment_ptr 1
  .amdhsa_system_sgpr_workgroup_id_x 1
.end_amdhsa_kernel
"""
    open(out, "w").write(txt)

if __name__ == "__main__":
    for arg in sys.argv[2:]:
        if arg == "stamp": STAMP = True
        elif "=" in arg:
            k, v = arg.split("=", 1)
            globals()[k] = int(v) if v.lstrip("-").isdigit() else v
    main(sys.argv[1])
```

```python
import sys, struct
from asm import Asm

T_OFF = 0; ROW = 8320; U_OFF = 0x240000; WP_OFF = 0x480000; KVP_OFF = 0x6C0000; ZP_OFF = 0x740000
KVF_OFF = 0x6B0000; F0_OFF = 0x750000; O_OFF = 0x800000; WS_SIZE = 0xA00000; DBG_OFF = 0xA00000
XB = 65536; BXB = 131072; EB = 147456; CNT = 163584; WRB = EB; SPB = WRB + 16*576; LDS_SIZE = 163840
OF_OFF = 4096; H2_OFF = 8192; OF2_OFF = 16384
STAMP = False
NAME = "concat_heads__linear_attn_block__spectral_gfnet__prompt_kernel"
SPIN = 0x40000
MAP = 48; GPOS = 0; SIG1 = 4; TPOS = 1; PSLEEP = 2; RESLEEP = 2; CPRIO = 2; LPRIO = 3; FORCESLOW = 0
OUTFL = ""; TFL = "sc1"; UFL = "sc1"; OFL = "sc1"; NPRE = 5; NWO = 9; PSPLIT = 8; HPOS = 0; XROT = 1; BNT = "nt"; XNT = "nt"; WNT = ""; PFL = "sc1"; YFL = ""; SFL = "sc1"; LBAR = 0; WOX = 1; WOAT = 2; DYN = 1; PFB = 0; UGATE = 1; USLP = 4; PROT = 0; PEXP = 0; RPOS = 0; RSLP = 2; FSLP = 2; UPRIO = 3; MW = 1; MWQ = 0; OPF = 5; W67 = 0; B3LATE = 0; NOPF = 0; LSLP = 1; NBSLP = 0
MC = "cbx,cst,cf0,t0,cp2,ckv,co,cww,cof,coi,cg"; ML = "iss,lf0,lf7,lq3,lh1,lt,lb2,lack,lul,luok,lend"
K_BX, K_X, K_WO, K_E1, K_E2, K_MODE, K_H1, K_Q, K_H2, K_OI, K_C7, K_TASK, K_G0, K_U, K_CO, K_W67 = 0, 1, 2, 3, 4, 6, 7, 8, 12, 13, 14, 15, 16, 17, 18, 19

def fhex(x): return "0x%08x" % struct.unpack("<I", struct.pack("<f", x))[0]
def q(b): return "v[%d:%d]" % (b, b + 3)
def d(b): return "v[%d:%d]" % (b, b + 1)
MF = "v_mfma_f32_16x16x32_bf16"
M16 = "v_mfma_f32_16x16x16_bf16"
WS = "s[24:27]"
def WREST(): return (6, 7, 0, 1, 2, 3, 4, 5) if PFB == 4 else (0, 1, 2, 3, 4, 5)
def nclr(): return 82 if MAP == 48 else 98

def srd_ptr(a, r, lo): a(f"s_mov_b32 s{r}, s{lo}\ns_mov_b32 s{r+1}, s{lo+1}")
def srd_const(a, r, size): a(f"s_mov_b32 s{r+2}, {size}\ns_mov_b32 s{r+3}, 0x20000")
def wsz(): return WS_SIZE + (0x100000 if STAMP else 0)

class Stamps:
    def __init__(self, a): self.a = a
    def start(self):
        if STAMP: self.a("s_memtime s[76:77]\ns_memrealtime s[78:79]")
    def clear(self, keep):
        if STAMP:
            for lst in (MC.split(","), ML.split(",")):
                pass
            for i in range(11):
                if i != keep: self.a(f"s_mov_b32 s{80+2*i}, 0")
    def idx(self, name):
        for lst in (MC.split(","), ML.split(",")):
            if name in lst: return lst.index(name)
        return -1
    def mark(self, name):
        if STAMP and self.idx(name) >= 0:
            i = self.idx(name); self.a(f"s_memtime s[{80+2*i}:{81+2*i}]")
    def dump(self):
        if not STAMP: return
        a = self.a
        a("v_mov_b32 v28, s56\ns_memrealtime s[74:75]\ns_waitcnt vmcnt(0) lgkmcnt(0)\ns_mov_b64 exec, 1")
        for i in range(11): a(f"s_sub_u32 s73, s{80+2*i}, s76\ns_cmp_eq_u32 s{80+2*i}, 0\ns_cselect_b32 s73, 0, s73\nv_mov_b32 v{16+i}, s73")
        a(f"s_sub_u32 s73, {SPIN}, s72\nv_mov_b32 v27, s73\nv_mov_b32 v29, 0\nv_mov_b32 v30, s78\nv_mov_b32 v31, s74")
        a(f"s_lshl_b32 s73, s2, 3\ns_add_u32 s73, s73, s3\ns_lshl_b32 s73, s73, 6\ns_add_u32 s73, s73, {DBG_OFF}\nv_mov_b32 v15, s73")
        for j in range(4): a(f"buffer_store_dwordx4 {q(16+4*j)}, v15, {WS}, 0 offen offset:{16*j}")

def spin_check(a, slp, w=1):
    a(f"s_sub_u32 s72, s72, {w if STAMP else 1}\ns_cbranch_scc1 L_END")
    if slp: a(f"s_sleep {slp}")

def lds_signal(a, k): a(f"s_mov_b64 exec, 1\nds_add_u32 v254, v255 offset:{4*k}\ns_mov_b64 exec, -1")
def lds_wait(a, k, lbl, slp=0):
    a(f"""{lbl}:
    {"s_sleep %d" % slp if slp else ""}
    ds_read_b32 v253, v254 offset:{4*k}
    s_sub_u32 s74, s74, 1
    s_cbranch_scc1 L_END
    s_waitcnt lgkmcnt(0)
    v_cmp_ne_u32 vcc, 4, v253
    s_cbranch_vccnz {lbl}""")

def issue1w(a, c):
    a(f"""s_mul_i32 s66, s52, 196608
    s_add_u32 m0, s64, {(c & 3)*16384}
    s_add_u32 s66, s66, s61
    buffer_load_dwordx4 v6, s[32:35], s66 offen {WNT} lds
    buffer_load_dwordx4 v6, s[32:35], s66 offen offset:1024 {WNT} lds
    s_add_u32 s66, s66, 10240
    buffer_load_dwordx4 v6, s[32:35], s66 offen offset:2048 {WNT} lds
    buffer_load_dwordx4 v6, s[32:35], s66 offen offset:3072 {WNT} lds""")
def issue1x(a, c):
    a(f"""s_lshl_b32 s65, s52, 7
    s_add_u32 m0, s62, {XB + c*8192}
    s_add_u32 s65, s65, s60
    buffer_load_dwordx4 v5, s[28:31], s65 offen {XNT} lds
    s_add_u32 s65, s65, 7168
    buffer_load_dwordx4 v5, s[28:31], s65 offen offset:1024 {XNT} lds""")
def issue1(a, c):
    if MAP == 48: issue1w(a, c); issue1x(a, c)
    else: issue1x(a, c); issue1w(a, c)
    a("s_add_u32 s52, s52, 1\ns_and_b32 s52, s52, 7")
def issue2(a, gam):
    for k2 in range(2):
        a(f"""s_mul_i32 s66, s52, 196608
        s_add_u32 m0, s62, {gam*16384 + k2*8192}
        s_add_u32 s66, s66, s61
        s_add_u32 s52, s52, 1
        buffer_load_dwordx4 v6, s[32:35], s66 offen {WNT} lds
        s_add_u32 s66, s66, 11264
        s_and_b32 s52, s52, 7
        buffer_load_dwordx4 v6, s[32:35], s66 offen offset:1024 {WNT} lds""")

def waddr(a, slot, conj, step, row0, wq_, gq_):
    a(f"""s_and_b32 {slot}, s48, 3
    s_cmp_eq_u32 s48, 4
    s_cselect_b32 {row0}, 4, {slot}
    s_and_b32 {wq_}, s49, 7
    s_lshl4_add_u32 {row0}, {wq_}, {row0}
    s_lshr_b32 {gq_}, s49, 3
    s_lshl_b32 s22, {gq_}, 9
    s_add_u32 {row0}, {row0}, s22
    s_sub_u32 s22, 2048, {row0}
    s_cmp_ge_u32 s48, 4
    s_cselect_b32 {row0}, s22, {row0}
    s_cselect_b32 {conj}, 0x80000000, 0
    s_movk_i32 {step}, {8*514}
    s_cmovk_i32 {step}, {-8*514}
    s_mulk_i32 {row0}, 514""")

def entry(a, st):
    a(f".globl {NAME}\n.p2align 8\n.type {NAME},@function\n{NAME}:")
    st.start()
    a(f"""s_cmp_ge_u32 s2, 256
    s_cbranch_scc1 L_END
    s_load_dwordx16 s[4:19], s[0:1], 0
    s_load_dwordx2 s[20:21], s[0:1], 64
    v_lshrrev_b32 v4, 6, v0
    s_lshr_b32 s49, s2, 3
    v_readfirstlane_b32 s3, v4
    v_and_b32 v0, 63, v0
    s_cmp_eq_u32 s3, 0
    s_cbranch_scc0 C_NOPF
    s_mov_b32 exec_lo, 0xfffff
    s_mov_b32 exec_hi, 0
    s_getpc_b64 s[60:61]
    L_PC:
    s_mul_i32 s62, s49, 768
    v_min_u32 v1, 5, v0
    v_lshlrev_b32 v1, 7, v1
    v_add_u32 v1, s62, v1
    v_min_u32 v1, L_END-L_PC, v1
    global_load_dword v1, v1, s[60:61]
    v_lshlrev_b32 v2, 2, v0
    v_add_u32 v2, {CNT}, v2
    v_mov_b32 v3, 0
    ds_write_b32 v2, v3
    s_mov_b64 exec, -1
    C_NOPF:
    s_and_b32 s48, s2, 7
    v_lshlrev_b32 v7, 4, v0
    s_mov_b32 s30, 0x200000
    s_mov_b32 s31, 0x20000""")
    if MAP == 48:
        a("""s_and_b32 s52, s49, 3
        s_lshl2_add_u32 s50, s48, s52
        s_lshr_b32 s51, s49, 2
        s_lshl1_add_u32 s52, s52, s51""")
    else:
        a("""s_and_b32 s52, s49, 7
        s_lshr_b32 s50, s48, 1
        s_lshl3_add_u32 s50, s50, s52
        s_lshr_b32 s22, s49, 3
        s_and_b32 s51, s48, 1
        s_lshl2_add_u32 s51, s51, s22
        s_lshl1_add_u32 s52, s22, s52""")
    a(f"""s_cmp_ge_u32 s3, 4
    s_cbranch_scc1 L_START
    s_lshl_b32 s69, s3, 11
    s_lshl_b32 s58, s3, 19
    s_lshl_b32 s59, s2, 10
    s_add_u32 s58, s58, s59
    s_add_u32 s59, s58, {0x40000-1024}
    s_add_u32 m0, s69, {BXB}
    s_cmp_ge_u32 s2, 209
    s_cselect_b32 s22, 0, -1
    v_mov_b32 v208, s22
    v_mov_b32 v209, s22
    v_mov_b32 v210, s22
    v_mov_b32 v211, s22
    s_sub_u32 s52, s2, 129
    s_lshl_b32 s65, s52, 13
    s_add_u32 s65, s65, s69
    s_add_u32 s65, s65, {KVF_OFF}
    s_mov_b32 s26, {wsz()}
    s_mov_b32 s27, s31
    s_cmp_lt_u32 s52, {nclr()}
    s_waitcnt lgkmcnt(0)
    s_mov_b64 s[28:29], s[10:11]
    s_mov_b64 s[24:25], s[20:21]
    buffer_load_dwordx4 v7, s[28:31], s58 offen {BNT} lds
    buffer_load_dwordx4 v7, s[28:31], s59 offen offset:1024 {BNT} lds
    s_cbranch_scc0 C_NOCLR
    buffer_store_dwordx4 v[208:211], v7, {WS}, s65 offen sc1
    buffer_store_dwordx4 v[208:211], v7, {WS}, s65 offen offset:1024 sc1
    C_NOCLR:
    s_barrier
    s_branch C_MAIN
    L_START:
    s_sub_u32 s58, s3, 4
    {"s_add_u32 s52, s52, s48" if XROT == 1 else ""}
    {"s_lshr_b32 s22, s48, 1" if XROT == 2 else ""}
    {"s_add_u32 s52, s52, s22" if XROT == 2 else ""}
    s_and_b32 s52, s52, 7
    v_lshrrev_b32 v8, 3, v0
    v_and_b32 v9, 7, v0
    v_and_b32 v10, 6, v8
    v_xor_b32 v9, v9, v10
    v_lshlrev_b32 v9, 4, v9
    v_lshl_add_u32 v5, v8, 10, v9
    v_and_b32 v10, 4, v8
    v_add_u32 v10, v10, v8
    v_mul_u32_u24 v6, 3072, v10
    v_add_u32 v6, v6, v9
    s_lshl2_add_u32 s60, s50, s58
    s_lshl_b32 s60, s60, 14
    s_lshl_b32 s61, s51, 7
    s_mul_i32 s62, s58, 49152
    s_add_u32 s61, s61, s62
    s_addk_i32 s61, 1024
    s_lshl_b32 s62, s58, 11
    s_lshl_b32 s64, s58, 12
    s_mov_b32 s34, 0x180000
    s_mov_b32 s35, s31
    s_mov_b32 s38, {2048*514}
    s_mov_b32 s39, s31
    s_mov_b32 s42, s38
    s_mov_b32 s43, s31""")
    waddr(a, "s75", "s59", "s67", "s68", "s56", "s57")
    a(f"""s_lshl_b32 s22, s58, 4
    s_mul_i32 s22, s22, s67
    s_add_u32 s22, s22, s68
    s_and_b32 s22, s22, -16
    s_add_u32 s23, s22, s67
    s_mul_i32 s73, s58, {4*576}
    s_add_u32 m0, s73, {WRB}
    s_waitcnt lgkmcnt(0)
    s_mov_b64 s[36:37], s[12:13]
    s_mov_b64 s[40:41], s[14:15]
    s_mov_b64 s[32:33], s[6:7]
    s_mov_b64 s[28:29], s[4:5]
    s_barrier
    s_mov_b32 exec_hi, 3
    buffer_load_dwordx4 v7, s[36:39], s22 offen {BNT} lds
    s_add_u32 m0, s73, {WRB+576}
    s_nop 0
    buffer_load_dwordx4 v7, s[40:43], s22 offen {BNT} lds
    s_add_u32 m0, s73, {WRB+2*576}
    s_nop 0
    buffer_load_dwordx4 v7, s[36:39], s23 offen {BNT} lds
    s_add_u32 m0, s73, {WRB+3*576}
    s_nop 0
    buffer_load_dwordx4 v7, s[40:43], s23 offen {BNT} lds
    s_mov_b32 exec_hi, -1
    s_cmp_eq_u32 s58, 0
    s_cbranch_scc0 L_NOSP
    v_and_b32 v12, 3, v0
    v_lshlrev_b32 v12, 4, v12
    v_lshrrev_b32 v11, 2, v0
    v_add_u32 v12, v12, v11
    v_mul_i32_i24 v12, s67, v12
    v_add_u32 v12, s68, v12
    v_sub_u32 v11, {2048*514}, v12
    s_lshr_b32 s23, s59, 22
    s_sub_u32 s22, 512, s23
    s_cmp_eq_u32 s75, 0
    s_cselect_b64 vcc, -1, 0
    s_cselect_b32 s22, s22, s23
    v_cndmask_b32 v11, v11, v12, vcc
    s_mov_b32 m0, {SPB}
    s_mov_b64 exec, 0xff
    buffer_load_ushort v11, s[36:39], s22 offen lds
    s_mov_b32 m0, {SPB+32}
    s_nop 0
    buffer_load_ushort v11, s[40:43], s22 offen lds
    s_mov_b64 exec, -1
    L_NOSP:""")
    issue1(a, 0)
    st.mark("iss")

def common_setup(a, st, keep):
    st.clear(keep)
    a("s_mov_b64 s[24:25], s[20:21]\ns_mov_b64 s[40:41], s[16:17]\ns_mov_b64 s[44:45], s[18:19]")
    srd_const(a, 24, wsz()); srd_const(a, 40, 0x400000); srd_const(a, 44, 256)
    a(f"""s_mov_b32 s72, {SPIN}
    s_mov_b32 s74, {SPIN*16}
    v_mov_b32 v254, {CNT}
    v_mov_b32 v255, 1
    v_and_b32 v2, 15, v0
    v_lshrrev_b32 v3, 4, v0
    v_cvt_f32_u32 v8, v2
    v_cvt_f32_u32 v9, v3
    v_lshrrev_b32 v12, 1, v0
    v_lshrrev_b32 v13, 2, v0
    v_and_b32 v13, 4, v13
    v_xor_b32 v12, v12, v13
    v_and_b32 v15, 7, v12
    s_and_b32 s57, s49, 3
    s_lshl2_add_u32 s54, s48, s57
    s_lshr_b32 s55, s49, 2
    s_lshl1_add_u32 s57, s57, s55
    s_and_b32 s19, s2, 15
    s_lshl_b32 s19, s19, 7
    s_add_u32 s19, s19, {F0_OFF}""")

RWR, RWI, SPC = 176, 184, 192

def l_main(a, st):
    C1, C2, TWC, TWS, C3, DAT, AC1, OP2, AC2, INI = 16, 40, 48, 56, 64, 80, 112, 144, 160, 192
    TMP, OP3, AC3, OUT = 80, 112, 128, 144
    CA, CB = 208, 240
    OP, WPK, AC, PK, WRI, T0 = 80, 96, 112, 144, 160, 176
    seq = ["w"]*4 + ["F0"]*6
    a("v_lshl_add_u32 v4, v10, 10, v9\ns_mov_b64 s[36:37], s[8:9]")
    srd_const(a, 36, 0x80000)
    common_setup(a, st, st.idx("iss"))
    CT = 194
    def b3_consts():
        a(f"""s_lshl_b32 s67, s58, 9
        s_add_u32 s67, s67, s2
        v_and_b32 v10, 1, v0
        v_lshlrev_b32 v10, 8, v10
        v_add_u32 v10, s67, v10
        v_cvt_f32_u32 v10, v10
        v_mul_f32 v10, {fhex(1/2048)}, v10
        v_lshrrev_b32 v11, 5, v0
        v_cvt_f32_u32 v11, v11""")
        MK = 196
        for r in range(4): a(f"v_cmp_eq_u32 vcc, {r}, v15\nv_cndmask_b32 v{MK+r}, 0, -1, vcc")
        a(f"""v_mul_f32 v12, v11, v10
        v_mov_b32 v13, 0xc0400000
        v_fma_f32 v13, v13, v11, 4.0
        v_mul_f32 v13, v13, v10
        v_add_f32 v14, 2.0, v11
        v_mul_f32 v14, v14, v10""")
        for k in range(3):
            b = C1 + 8*k
            a(f"""v_cos_f32 v{CT}, v{12+k}
            v_sin_f32 v{CT+1}, v{12+k}
            v_mul_f32 v{CT}, {fhex(2.0**-19)}, v{CT}
            v_mul_f32 v{CT+1}, {fhex(2.0**-19)}, v{CT+1}
            v_cvt_pk_bf16_f32 v{b+3}, v{CT}, -v{CT+1}
            v_cvt_pk_bf16_f32 v{b+7}, v{CT+1}, v{CT}""")
            for c in range(2):
                for r in range(4): a(f"v_and_b32 v{b+4*c+r}, v{b+4*c+3}, v{MK+r}")
        a(f"v_mul_f32 v12, {fhex(1/16)}, v8\nv_mul_f32 v13, v9, v12\nv_mul_f32 v12, 4.0, v12")
        for v in range(4):
            a(f"v_cos_f32 v{CT}, v13\nv_sin_f32 v{CT+1}, v13")
            if v < 3: a("v_add_f32 v13, v13, v12")
            a(f"v_cvt_pk_bf16_f32 v{C2+v}, v{CT}, -v{CT+1}\nv_cvt_pk_bf16_f32 v{C2+4+v}, v{CT+1}, v{CT}")
        a(f"""v_bfe_u32 v12, v0, 4, 1
        v_cvt_f32_u32 v12, v12
        v_add_f32 v12, v12, v12
        v_mov_b32 v13, 0x41800000
        v_fma_f32 v12, v11, v13, v12
        v_mul_f32 v13, {fhex(1/512)}, v8
        v_mul_f32 v14, v12, v13
        v_mul_f32 v15, {fhex(3.0)}, v13""")
        for i in range(4):
            for ph in range(2):
                k = i*2 + ph; kap = i >> 1; r = (i & 1)*2 + ph
                a(f"""v_cos_f32 v{TWC+k}, v14
                v_sin_f32 v{TWS+k}, v14
                v_mul_f32 v12, 0x41800000, v14
                v_cos_f32 v{CT}, v12
                v_sin_f32 v{CT+1}, v12""")
                if k < 7: a(f"v_add_f32 v14, v14, v{15 if ph else 13}")
                a(f"v_cvt_pk_bf16_f32 v{C3+kap*8+r}, v{CT}, -v{CT+1}")
                if ph: a(f"v_cvt_pk_bf16_f32 v{C3+kap*8+4+r}, -v{CT}, v{CT+1}")
                else: a(f"v_cvt_pk_bf16_f32 v{C3+kap*8+4+r}, v{CT}, -v{CT+1}")
        a(f"""v_cvt_f32_u32 v12, s2
        v_mul_f32 v12, {fhex(1/512)}, v12
        v_cos_f32 v13, v12
        v_sin_f32 v14, v12
        v_lshlrev_b32 v10, 10, v3
        v_lshl_add_u32 v10, v2, 4, v10
        v_mul_f32 v13, {fhex(2.0**-20)}, v13
        v_mul_f32 v14, {fhex(2.0**-20)}, v14
        v_lshlrev_b32 v11, 5, v2
        v_lshl_add_u32 v11, v3, 3, v11
        v_mov_b32 v15, 0""")
    def b2_consts():
        a(f"""s_lshl_b32 s22, s58, 2
        v_cvt_f32_u32 v146, s22
        v_mul_f32 v144, {fhex(1/16)}, v8
        v_mul_f32 v145, 4.0, v9
        v_mul_f32 v145, v145, v144
        v_mul_f32 v147, {fhex(1/16)}, v144
        v_mul_f32 v146, v146, v147""")
        for r in range(4):
            a(f"""v_cos_f32 v154, v145
            v_sin_f32 v155, v145
            v_add_f32 v148, v145, v146
            v_cvt_pk_bf16_f32 v{CB+r}, v154, v155
            v_cvt_pk_bf16_f32 v{CB+4+r}, -v155, v154""")
            for j in range(4):
                t = 150 + 2*(j & 1)
                a(f"v_cos_f32 v{t}, v148\nv_sin_f32 v{t+1}, v148")
                if j < 3: a("v_add_f32 v148, v148, v147")
                elif r < 3: a("v_add_f32 v145, v145, v144")
                a(f"v_cvt_pk_bf16_f32 v{CA+8*j+r}, v{t}, v{t+1}\nv_cvt_pk_bf16_f32 v{CA+8*j+4+r}, -v{t+1}, v{t}")
        a(f"""v_lshlrev_b32 v248, 2, v0
        s_lshl_b32 s23, s58, 8
        v_lshlrev_b32 v200, 12, v3
        v_lshl_add_u32 v200, v2, 4, v200
        v_add_u32 v200, s23, v200
        v_add_u32 v201, s64, v7
        v_add_u32 v251, {EB}, v200
        v_add_u32 v252, {EB}, v201
        s_cmp_eq_u32 s58, 3
        s_cselect_b32 s16, 0xffff, -1""")
    def misc_addr():
        a(f"""s_and_b32 s53, s2, 15
        s_lshl_b32 s53, s53, 4
        s_bfe_u32 s22, s2, 0x20004
        s_lshl2_add_u32 s53, s22, s53
        s_lshr_b32 s22, s2, 6
        s_add_u32 s53, s53, s22
        s_lshl_b32 s53, s53, 6
        v_lshlrev_b32 v12, 7, v0
        v_add_u32 v250, {F0_OFF}, v12
        v_mov_b32 v207, 4
        v_mov_b32 v206, 0
        s_lshl_b32 s22, s51, 11
        s_add_u32 s22, s22, s60
        s_add_u32 s22, s22, {O_OFF}
        v_add_u32 v202, s22, v12
        s_lshl_b32 s22, s50, 7
        s_add_u32 s22, s22, {F0_OFF + OF_OFF}
        v_writelane_b32 v202, s22, 16
        v_mov_b32 v249, v12
        s_lshl_b32 s21, s58, 14
        s_lshl_b32 s22, s55, 7
        s_add_u32 s21, s21, s22
        s_cmp_eq_u32 s58, 0
        s_cselect_b32 s17, 0, 0x40000000""")
    def wo_dma(poss):
        for pos in poss:
            a(f"""s_add_u32 s5, s57, {(pos+2) & 7}
            s_and_b32 s5, s5, 7
            s_lshl_b32 s5, s5, 16
            s_add_u32 m0, s62, {XB + 16384 + pos*8192}
            s_add_u32 s5, s5, s21
            buffer_load_dwordx4 v4, s[36:39], s5 offen lds
            s_add_u32 s5, s5, 3072
            buffer_load_dwordx4 v4, s[36:39], s5 offen offset:1024 lds""")
    def opf():
        if MAP == 48: a(f"s_mov_b64 exec, 0x1ffff\nbuffer_load_dword v203, v202, {WS}, 0 offen {PFL.replace('_', ' ')}\ns_mov_b64 exec, -1"); seq.append("p")
    def younger(tag): return len(seq) - 1 - max(i for i, x in enumerate(seq) if x == tag)
    misc_addr()
    def mall_warm():
        a(f"""s_lshl2_add_u32 s22, s2, s58
        s_lshl_b32 s23, s22, 9
        s_lshr_b32 s5, s22, 1
        s_mulk_i32 s5, 3072
        s_and_b32 s22, s23, 512
        s_add_u32 s5, s5, s22
        s_mov_b64 exec, 15
        buffer_load_dword v198, v12, s[36:39], s23 offen
        {"buffer_load_dword v197, v12, s[32:35], s5 offen" if MWQ else ""}
        s_mov_b64 exec, -1"""); seq.extend(["m"]*(1+MWQ))
    if MW == 1: mall_warm()
    b2_consts()
    st.mark("lconst")
    a(f"s_waitcnt vmcnt({younger('w')})")
    lds_signal(a, 5)
    issue1(a, 1); seq += ["F1"]*6
    st.mark("lw")
    if MW == 2: mall_warm()
    issue1(a, 2); seq += ["F2"]*6
    for c in range(8):
        n = younger(f"F{c}")
        if c == SIG1: n = min(n, younger("g"))
        a(f"s_waitcnt vmcnt({n})")
        if c == SIG1: a(f"s_cmp_eq_u32 s58, 0\ns_cbranch_scc0 L_GOD\ns_mov_b64 exec, 3\nL_GO:\nv_cmp_gt_u32 vcc, {nclr()//2}, v204\ns_cbranch_vccnz L_GORE\ns_mov_b64 exec, -1\nL_GOD:")
        a("s_barrier")
        st.mark(f"lf{c}")
        if c < 5: issue1(a, c+3); seq += [f"F{c+3}"]*6
        if c == GPOS: a("s_mov_b64 exec, 3\nbuffer_load_dword v204, v249, s[44:47], s17 offen sc1\ns_mov_b64 exec, -1"); seq += ["g"]
        if c == 5: a("s_sub_u32 s61, s61, 1024")
        if c >= 5: issue2(a, c-5); seq += [f"F{c+3}"]*4
        if c == OPF: opf()
    def arrive(k):
        a(f"s_waitcnt vmcnt({younger('F%d' % k)})"); lds_signal(a, k); st.mark(f"la{k}")
    def h1(): a(f"s_mov_b64 exec, 0xffff\nbuffer_load_dword v205, v250, {WS}, s17 offen sc1\ns_mov_b64 exec, -1"); seq.append("h")
    def late_pf():
        if W67: wo_dma((6, 7)); seq.extend(["p"]*4)
        if OPF == 9: opf()
    def reducer():
        R0 = 160
        a("s_cmp_lt_u32 s13, 288\ns_cbranch_scc0 L_NORED\nL_RED:\ns_mov_b32 s22, s8")
        for t in range(8):
            a(f"buffer_load_dword v{R0+t}, v193, {WS}, s22 offen sc1")
            if t < 7: a("s_add_u32 s22, s22, s9")
        a(f"""s_waitcnt vmcnt(0)
        v_max3_u32 v1, v{R0}, v{R0+1}, v{R0+2}
        v_max3_u32 v{R0+8}, v{R0+3}, v{R0+4}, v{R0+5}
        v_max3_u32 v1, v1, v{R0+6}, v{R0+7}
        v_max_u32 v1, v1, v{R0+8}
        v_cmp_eq_u32 vcc, -1, v1
        s_cbranch_vccnz L_REDRE""")
        for t in range(8): a(f"v_lshlrev_b32 v{R0+8+2*t}, 16, v{R0+t}\nv_and_b32 v{R0+9+2*t}, s11, v{R0+t}")
        for st_ in (8, 4, 2):
            for t in range(0, st_, 2): a(f"v_pk_add_f32 {d(R0+8+t)}, {d(R0+8+t)}, {d(R0+8+t+st_)}")
        for sw in ("32", "16"):
            a(f"""v_mov_b32 v{R0+10}, v{R0+8}
            v_mov_b32 v{R0+11}, v{R0+9}
            v_permlane{sw}_swap_b32 v{R0+8}, v{R0+10}
            v_permlane{sw}_swap_b32 v{R0+9}, v{R0+11}
            v_pk_add_f32 {d(R0+8)}, {d(R0+8)}, {d(R0+10)}""")
        a(f"""v_cvt_pk_bf16_f32 v{R0+8}, v{R0+8}, v{R0+9}
        v_cndmask_b32 v{R0+8}, v{R0+9}, v{R0+8}, s[14:15]
        v_min_u32 v{R0+8}, -2, v{R0+8}
        s_mov_b64 exec, 0xffff
        buffer_store_dword v{R0+8}, v193, {WS}, s10 offen sc1
        s_mov_b64 exec, -1
        L_NORED:""")
        st.mark("lred")
    arrive(8)
    if PFB == 3: late_pf()
    lds_wait(a, K_C7, "L_C7A", LSLP)
    a(f"ds_read_b32 v1, v254 offset:{4*K_TASK}")
    issue2(a, 3); seq += ["F11"]*4
    a(f"""s_waitcnt lgkmcnt(0)
    v_readfirstlane_b32 s56, v1
    s_lshl_b32 s20, s56, 14
    s_add_u32 s20, s20, s64
    s_sub_u32 s13, s56, 129
    s_lshl2_add_u32 s13, s13, s58
    s_mul_i32 s22, s13, 7282
    s_lshr_b32 s22, s22, 16
    s_mul_i32 s23, s22, 9
    s_sub_u32 s23, s13, s23
    s_lshl_b32 s8, s22, 14
    s_lshl_b32 s9, s23, 6
    s_add_u32 s8, s8, s9
    s_add_u32 s8, s8, {KVP_OFF}
    s_lshl_b32 s9, s22, 11
    s_lshl_b32 s10, s23, 7
    s_add_u32 s10, s10, s9
    s_add_u32 s10, s10, {KVF_OFF}
    s_add_u32 s9, s9, {ZP_OFF}
    s_cmp_lt_u32 s23, 8
    s_cselect_b32 s8, s8, s9
    s_cselect_b32 s11, 0xffff0000, -1
    s_cselect_b32 s12, 9, 6
    s_cselect_b64 s[14:15], -1, 0
    s_lshl_b32 s9, 4, s12
    v_lshlrev_b32 v193, s12, v3
    v_lshl_add_u32 v193, v2, 2, v193""")
    for k in (9, 10, 11):
        arrive(k)
        if HPOS == k - 9:
            h1()
            if not PFB: late_pf()
    st.mark("lq3")
    if PFB == 2: late_pf()
    if PFB == 1:
        a("s_cmp_gt_u32 s56, 128\ns_cbranch_scc0 L_NOPF2")
        sv = list(seq); late_pf(); seq[:] = sv
        a("L_NOPF2:")
    a(f"""s_cmp_eq_u32 s58, 0
    s_cbranch_scc0 L_H1OK
    s_waitcnt vmcnt({younger('h')})
    s_mov_b64 exec, 0xffff
    L_H1:
    v_and_b32 v1, 0xffff, v205
    v_cmp_ne_u32 vcc, 16, v1
    s_cbranch_vccnz L_H1RE
    v_cmp_ne_u32 vcc, 16, v205
    v_mov_b32 v1, vcc_lo
    s_mov_b64 exec, 1
    ds_write_b32 v254, v1 offset:{4*K_MODE}
    ds_add_u32 v254, v207 offset:{4*K_H1}
    s_mov_b64 exec, -1
    L_H1OK:
    s_setprio {LPRIO}""")
    if RPOS == 0: reducer()
    a("""s_cmp_gt_u32 s56, 128
    s_cbranch_scc1 L_NOT""")
    lds_wait(a, K_H1, "L_H1W", LSLP)
    st.mark("lh1")
    for j in range(4):
        for r in range(4): a(f"buffer_load_dword v{OP+j*4+r}, v248, {WS}, s20 offen offset:{j*1024+r*256} {TFL}")
    a(f"s_add_u32 s23, s20, {WP_OFF}")
    for j in range(4): a(f"buffer_load_dwordx4 {q(WPK+4*j)}, v7, {WS}, s23 offen offset:{j*1024} {TFL}")
    npf = 0
    if PFB == 1: n0 = len(seq); late_pf(); npf = len(seq) - n0
    a("L_NOT:")
    if RPOS == 1: reducer()
    a(f"""s_setprio 0
    s_lshl_b32 s61, s58, 19
    s_add_u32 s61, s61, s53
    s_add_u32 s68, s61, 0x40000
    s_add_u32 s63, s53, {128*16384}
    v_lshrrev_b32 v249, 2, v0
    v_lshlrev_b32 v249, 14, v249
    v_and_b32 v250, 3, v0
    v_lshl_add_u32 v249, v250, 4, v249
    v_add_u32 v250, s62, v7
    v_add_u32 v250, {EB}, v250""")
    b3_consts()
    a("""s_lshl_b32 s65, s67, 11
    s_add_u32 s65, s65, 1024
    s_add_u32 s66, s65, 0x80000""")
    st.mark("lb3c")
    a(f"v_add_u32 v10, {EB}, v10")
    a("s_cmp_gt_u32 s56, 128")
    if W67:
        a("s_cbranch_scc0 L_W67\ns_waitcnt vmcnt(0)\nL_W67:\ns_waitcnt vmcnt(20)")
        lds_signal(a, K_W67)
    a(f"s_cbranch_scc1 L_NOB2\ns_setprio {LPRIO}")
    def exchange(vw, vr, k, lbl):
        for j in range(4):
            for i in range(4): a(f"v_cvt_pk_bf16_f32 v{PK+4*i+j}, v{AC+j*8+i}, v{AC+j*8+4+i}")
        if k == K_E2: lds_wait(a, K_G0, "L_XW")
        for i in range(4):
            if k == K_E1 and i == 3: a("s_mov_b32 exec_hi, s16")
            a(f"ds_write_b128 {vw}, {q(PK+4*i)} offset:{i*1024}")
        lds_signal(a, k)
        lds_wait(a, k, lbl)
        for j in range(4):
            if k == K_E1 and j == 3:
                for r in range(4): a(f"v_mov_b32 v{OP+12+r}, v{PK+12+r}")
                a("s_mov_b32 exec_hi, s16")
            a(f"ds_read_b128 {q(OP+4*j)}, {vr} offset:{j*1024}")
        a("s_mov_b32 exec_hi, -1")
    def stage_w(consts):
        for j in range(4):
            a(f"s_waitcnt lgkmcnt({3-j})")
            for c in range(2): a(f"{MF} {q(AC+(j*2+c)*4)}, {q(consts(j)+4*c)}, {q(OP+4*j)}, 0")
    for j in range(4):
        a(f"s_waitcnt vmcnt({16-4*j+npf})")
        for c in range(2): a(f"{MF} {q(AC+(j*2+c)*4)}, {q(CA+8*j+4*c)}, {q(OP+4*j)}, 0")
    st.mark("lt")
    exchange("v251", "v252", K_E1, "L_E1")
    st.mark("b2x1")
    stage_w(lambda j: CB)
    a(f"s_waitcnt vmcnt({npf})\nL_WPOK:")
    for j in range(4):
        xr = AC + j*8; xi = xr + 4; t = T0 + (j & 1)*8; wr = WRI + (j & 1)*8; wi = wr + 4
        for i in range(4): a(f"v_lshlrev_b32 v{wr+i}, 16, v{WPK+4*j+i}\nv_and_b32 v{wi+i}, 0xffff0000, v{WPK+4*j+i}")
        for h in (0, 2):
            a(f"v_pk_mul_f32 {d(t+h)}, {d(xr+h)}, {d(wr+h)}")
            a(f"v_pk_mul_f32 {d(t+4+h)}, {d(xi+h)}, {d(wr+h)}")
        for h in (0, 2):
            a(f"v_pk_fma_f32 {d(t+h)}, {d(xi+h)}, {d(wi+h)}, {d(t+h)} neg_lo:[1,0,0] neg_hi:[1,0,0]")
            a(f"v_pk_fma_f32 {d(t+4+h)}, {d(xr+h)}, {d(wi+h)}, {d(t+4+h)}")
        for i in range(4): a(f"v_cvt_pk_bf16_f32 v{OP+4*j+i}, v{t+i}, -v{t+4+i}")
        if j > 0:
            for c in range(2): a(f"{MF} {q(AC+((j-1)*2+c)*4)}, {q(CA+8*(j-1)+4*c)}, {q(OP+4*(j-1))}, 0")
    for c in range(2): a(f"{MF} {q(AC+(6+c)*4)}, {q(CA+24+4*c)}, {q(OP+12)}, 0")
    exchange("v200", "v201", K_E2, "L_E2")
    st.mark("b2x2")
    stage_w(lambda j: CB)
    for j in range(4):
        for i in range(4):
            a(f"v_cvt_pk_bf16_f32 v{PK+j*4+i}, v{AC+j*8+i}, -v{AC+j*8+4+i}")
            a(f"v_or_b32 v{PK+j*4+i}, 1, v{PK+j*4+i}")
            a(f"buffer_store_dword v{PK+j*4+i}, v248, {WS}, s20 offen offset:{j*1024+i*256} sc1")
    st.mark("lb2")
    a(f"L_NOB2:\ns_setprio {UPRIO}")
    if UGATE == 1: lds_wait(a, K_OI, "L_H2G", 1)
    if UGATE == 2: lds_wait(a, K_CO, "L_H2G", 1)
    st.mark("lul")
    a(f"""L_UL:
    buffer_load_dwordx4 {q(AC1)}, v249, {WS}, s61 offen sc1
    buffer_load_dwordx4 {q(AC1+4)}, v249, {WS}, s68 offen sc1
    buffer_load_dword v9, v15, {WS}, s63 offen sc1
    buffer_load_dword v8, v15, {WS}, s63 offen offset:32 sc1
    s_waitcnt vmcnt(3)
    ds_write_b128 v250, {q(AC1)}
    v_and_b32 v1, v{AC1}, v{AC1+1}
    v_and_b32 v12, v{AC1+2}, v{AC1+3}
    s_waitcnt vmcnt(2)
    ds_write_b128 v250, {q(AC1+4)} offset:1024
    v_and_b32 v1, v1, v{AC1+4}
    v_and_b32 v12, v12, v{AC1+5}
    v_and_b32 v1, v1, v{AC1+6}
    v_and_b32 v12, v12, v{AC1+7}
    s_waitcnt vmcnt(0)
    v_and_b32 v1, v1, v8
    v_and_b32 v12, v12, v9
    v_and_b32 v1, v1, v12
    v_and_b32 v1, 1, v1
    v_cmp_eq_u32 vcc, 0, v1
    s_cbranch_vccnz L_URE""")
    st.mark("lua")
    lds_signal(a, K_U); lds_wait(a, K_U, "L_UW")
    for v in range(4):
        for t in range(2): a(f"ds_read_b128 {q(DAT+(v*2+t)*4)}, v10 offset:{t*4096+v*256}")
    a(f"""s_waitcnt vmcnt(0)
    v_lshlrev_b32 v8, 16, v8
    v_and_b32 v12, 0xffff0000, v9
    v_lshlrev_b32 v9, 16, v9
    v_mul_f32 v8, {fhex(2.0**-20)}, v8
    v_mul_f32 v9, v9, v13
    v_fma_f32 v9, -v12, v14, v9
    v_add_f32 v{INI}, v9, v8
    v_sub_f32 v{INI+1}, v9, v8
    v_add_f32 v{INI+2}, v9, v8
    v_sub_f32 v{INI+3}, v9, v8
    v_sub_f32 v{INI+4}, v8, v9
    v_sub_f32 v{INI+5}, -v9, v8
    v_sub_f32 v{INI+6}, v8, v9
    v_sub_f32 v{INI+7}, -v9, v8""")
    for v in range(4):
        for t in range(2):
            b = DAT + (v*2+t)*4
            a(f"s_waitcnt lgkmcnt({7-(v*2+t)})")
            cs = C1 + (16 if t else 8*(v >> 1))
            for c in range(2):
                acc = AC1 + (v*2+c)*4
                a(f"{MF} {q(acc)}, {q(b)}, {q(cs+4*c)}, {q(acc) if t else 0}")
    st.mark("luok")
    for v in range(4):
        for i in range(4): a(f"v_cvt_pk_bf16_f32 v{OP2+i*4+v}, v{AC1+v*8+i}, v{AC1+v*8+4+i}")
    for i in range(4):
        for c in range(2): a(f"{MF} {q(AC2+(i*2+c)*4)}, {q(OP2+i*4)}, {q(C2+4*c)}, 0")
    for i in range(4):
        xr = AC2 + i*8; xi = xr + 4; t0 = TMP + (i & 1)*8
        for ph in range(2):
            sel = "op_sel:[0,1] op_sel_hi:[1,1]" if ph else "op_sel_hi:[1,0]"
            a(f"v_pk_mul_f32 {d(t0+2*ph)}, {d(xr+2*ph)}, {d(TWC+2*i)} {sel}")
            a(f"v_pk_mul_f32 {d(t0+4+2*ph)}, {d(xi+2*ph)}, {d(TWC+2*i)} {sel}")
        for ph in range(2):
            sel = "op_sel:[0,1,0] op_sel_hi:[1,1,1]" if ph else "op_sel_hi:[1,0,1]"
            a(f"v_pk_fma_f32 {d(t0+2*ph)}, {d(xi+2*ph)}, {d(TWS+2*i)}, {d(t0+2*ph)} {sel} neg_lo:[1,0,0] neg_hi:[1,0,0]")
            a(f"v_pk_fma_f32 {d(t0+4+2*ph)}, {d(xr+2*ph)}, {d(TWS+2*i)}, {d(t0+4+2*ph)} {sel}")
        for ph in range(2):
            for rho in range(2):
                a(f"v_cvt_pk_bf16_f32 v{OP3+(rho*2+(i>>1))*4+(i&1)*2+ph}, v{t0+2*ph+rho}, v{t0+4+2*ph+rho}")
    for kap in range(2):
        for rho in range(2):
            for th in range(2):
                acc = AC3 + (rho*2+th)*4
                a(f"{MF} {q(acc)}, {q(OP3+(rho*2+kap)*4)}, {q(C3+kap*8+th*4)}, {q(acc) if kap else q(INI+4*rho)}")
    for rho in range(2):
        for th in range(2):
            acc = AC3 + (rho*2+th)*4; o = OUT + (rho*2+th)*2
            a(f"v_cvt_pk_bf16_f32 v{o}, v{acc}, v{acc+1}\nv_cvt_pk_bf16_f32 v{o+1}, v{acc+2}, v{acc+3}")
            a(f"buffer_store_dwordx2 {d(o)}, v11, s[40:43], s{65+rho} offen offset:{th*512} {YFL.replace('_', ' ')}")
    st.mark("lend")
    st.dump()
    a("s_endpgm")

def c_main(a, st):
    C1, C2, TWC, TWS, C3A, C3B, DAT, AC1, OP2, AC2 = 16, 48, 64, 80, 96, 104, 112, 144, 160, 168
    OP3, TMP, AC3, ACE, OUT, MSK = 112, 128, 144, 160, 200, 228
    a(f"C_MAIN:\ns_setprio {CPRIO}")
    common_setup(a, st, -1)
    a(f"""s_lshl_b32 s60, s3, 8
    s_mul_i32 s61, s2, s3
    s_add_u32 s59, s61, 512
    s_cmp_eq_u32 s3, 0
    s_cselect_b32 s62, 1024, s60
    s_cselect_b32 s59, 0, s59
    s_cselect_b32 s58, s2, 0
    s_cselect_b32 s65, 0, 0xbe800000
    s_cselect_b64 s[66:67], -1, 0
    v_and_b32 v14, 1, v0
    v_cmp_eq_u32 vcc, 1, v14
    v_mov_b32 v4, 0xffff
    v_mov_b32 v5, 0xffff0000
    v_cndmask_b32 v14, v4, v5, vcc""")
    for r in range(4): a(f"v_cmp_eq_u32 vcc, {r}, v15\nv_cndmask_b32 v{MSK+r}, 0, v14, vcc")
    a(f"""v_lshrrev_b32 v10, 5, v0
    v_mov_b32 v11, s61
    v_mov_b32 v12, s59
    v_mad_u32_u24 v11, v10, s60, v11
    v_mad_u32_u24 v12, v10, s62, v12
    v_cvt_f32_u32 v11, v11
    v_cvt_f32_u32 v12, v12
    v_cvt_f32_u32 v13, s60
    v_cvt_f32_u32 v14, s62
    v_mul_f32 v11, {fhex(1/2048)}, v11
    v_mul_f32 v12, {fhex(1/2048)}, v12
    v_mul_f32 v13, {fhex(2/2048)}, v13
    v_mul_f32 v14, {fhex(2/2048)}, v14""")
    for t in range(4):
        for c in range(2):
            b = C1 + (t*2 + c)*4
            a(f"v_cos_f32 v{b+3}, v{11+c}")
            if t < 3: a(f"v_add_f32 v{11+c}, v{11+c}, v{13+c}")
            a(f"v_cvt_pk_bf16_f32 v{b+3}, v{b+3}, v{b+3}")
            for r in range(4): a(f"v_and_b32 v{b+r}, v{b+3}, v{MSK+r}")
    a(f"v_mul_f32 v10, {fhex(1/32)}, v8\nv_mul_f32 v11, 4.0, v9\nv_mul_f32 v12, v11, v10")
    for i in range(4):
        a(f"v_cos_f32 v{TMP+i}, v12\nv_sin_f32 v{TMP+4+i}, v12")
        if i < 3: a("v_add_f32 v12, v12, v10")
    a("v_lshlrev_b32 v13, 31, v0\nv_lshrrev_b32 v14, 16, v13\nv_or_b32 v13, v13, v14")
    a(f"""v_cvt_pk_bf16_f32 v{C2}, v{TMP}, v{TMP+1}
    v_cvt_pk_bf16_f32 v{C2+1}, v{TMP+2}, v{TMP+3}
    v_cvt_pk_bf16_f32 v{C2+4}, -v{TMP+4}, -v{TMP+5}
    v_cvt_pk_bf16_f32 v{C2+5}, -v{TMP+6}, -v{TMP+7}
    s_brev_b32 s68, 1""")
    for c in range(2):
        b = C2 + 4*c
        a(f"v_xor_b32 v{b+2}, v{b}, v13\nv_xor_b32 v{b+3}, v{b+1}, v13")
        for r in range(4): a(f"v_xor_b32 v{b+8+r}, s68, v{b+r}")
    a("v_add_f32 v10, v10, v10\nv_mul_f32 v12, v11, v10")
    a("""v_cmp_gt_u32 vcc, 8, v2
    s_andn2_b64 s[22:23], s[66:67], vcc
    s_and_b64 s[66:67], s[66:67], vcc
    v_cndmask_b32 v13, -1, 0, s[22:23]
    v_cndmask_b32 v14, -1, 0, s[66:67]""")
    for i in range(4):
        a(f"""v_cos_f32 v{TMP}, v12
        v_sin_f32 v{TMP+1}, v12
        v_add_f32 v15, s65, v12
        v_cos_f32 v{TMP+2}, v15
        v_sin_f32 v{TMP+3}, v15""")
        if i < 3: a("v_add_f32 v12, v12, v10")
        a(f"""v_cvt_pk_bf16_f32 v{C3A+i}, v{TMP}, v{TMP+1}
        v_cvt_pk_bf16_f32 v{C3A+4+i}, -v{TMP+1}, v{TMP}
        v_cvt_pk_bf16_f32 v{C3B+i}, v{TMP+2}, v{TMP+3}
        v_cvt_pk_bf16_f32 v{C3B+4+i}, -v{TMP+3}, v{TMP+2}""")
    for r in range(8): a(f"v_and_b32 v{C3A+r}, v{C3A+r}, v13\nv_and_b32 v{C3B+r}, v{C3B+r}, v14")
    a(f"v_cvt_f32_u32 v14, s58\nv_mul_f32 v14, {fhex(1/512)}, v14")
    for tau in range(2):
        a(f"v_mul_f32 v10, {fhex(1/512)}, v8")
        if tau: a(f"v_add_f32 v10, {fhex(16/512)}, v10")
        a("v_mul_f32 v12, v11, v10")
        for i in range(4):
            k0 = tau*4 + i; k1 = 8 + k0
            a(f"""v_cos_f32 v{TWC+k0}, v12
            v_sin_f32 v{TWS+k0}, v12
            v_add_f32 v15, v12, v14
            v_cos_f32 v{TWC+k1}, v15
            v_sin_f32 v{TWS+k1}, v15""")
            if i < 3: a("v_add_f32 v12, v12, v10")
    a(f"""v_lshrrev_b32 v14, 5, v0
    v_lshlrev_b32 v10, 10, v14
    v_lshl_add_u32 v10, v2, 5, v10
    v_and_b32 v12, 16, v0
    v_add_u32 v10, v10, v12
    v_add_u32 v10, {BXB}, v10""")
    waddr(a, "s12", "s13", "s14", "s15", "s56", "s11")
    a(f"""v_lshlrev_b32 v11, 16, v3
    v_lshl_add_u32 v11, v2, 2, v11
    v_and_b32 v12, 6, v2
    v_xor_b32 v12, v12, v3
    v_lshlrev_b32 v12, 4, v12
    v_lshl_add_u32 v4, v2, 7, v12
    v_add_u32 v4, {XB}, v4
    v_xor_b32 v5, 64, v4
    v_bfe_u32 v12, v0, 2, 3
    v_bfe_u32 v13, v0, 1, 1
    v_and_b32 v15, 6, v12
    v_xor_b32 v13, v13, v15
    v_lshlrev_b32 v13, 4, v13
    v_lshl_add_u32 v13, v12, 7, v13
    v_and_b32 v15, 1, v0
    v_lshl_add_u32 v13, v15, 3, v13
    s_lshl_b32 s22, s3, 5
    v_xor_b32 v13, s22, v13
    v_lshl_add_u32 v6, v14, 12, v13
    v_lshl_add_u32 v8, v14, 11, v13
    v_lshlrev_b32 v9, 8, v14
    v_lshl_add_u32 v9, v2, 4, v9
    s_and_b32 s60, s2, 15
    s_lshl_b32 s60, s60, 4
    s_bfe_u32 s61, s2, 0x20004
    s_lshl2_add_u32 s60, s61, s60
    s_lshr_b32 s61, s2, 6
    s_add_u32 s60, s60, s61
    s_lshl_b32 s60, s60, 6
    s_lshl_b32 s61, s3, 19
    s_add_u32 s61, s61, s60
    s_add_u32 s60, s60, {128*16384}
    s_lshl2_add_u32 s53, s51, s3
    s_lshl_b32 s58, s53, 14
    s_add_u32 s58, s58, {KVP_OFF}
    s_lshl_b32 s59, s53, 11
    s_add_u32 s59, s59, {ZP_OFF}
    s_lshl_b32 s63, s50, 9
    s_add_u32 s63, s63, s58
    s_lshl_b32 s64, s50, 6
    s_add_u32 s64, s64, s59
    s_getreg_b32 s23, hwreg(HW_REG_XCC_ID)
    s_and_b32 s23, s23, 15
    s_cmp_eq_u32 s23, {'s48' if not FORCESLOW else '15'}
    s_cselect_b32 s23, 1, 0x10001
    v_mov_b32 v240, s23
    s_cmp_eq_u32 s3, 0
    s_cselect_b32 s18, {SIG1}, -1
    v_lshlrev_b32 v241, 2, v2
    v_lshl_add_u32 v13, v14, 5, v241
    s_mov_b32 s22, 0x3f803f80
    v_mov_b32 v232, s22
    v_mov_b32 v233, s22
    v_mov_b32 v234, s22
    v_mov_b32 v235, s22
    s_mov_b32 s66, {fhex(1.4426950408889634)}
    s_mov_b32 s67, s66
    s_mov_b32 s65, {fhex(1e-6)}
    v_and_b32 v226, 1, v3
    v_lshlrev_b32 v226, 18, v226
    v_lshl_add_u32 v226, v14, 14, v226
    v_lshl_add_u32 v226, v2, 4, v226
    s_lshl_b32 s16, s56, 11
    s_lshl_b32 s22, s11, 8
    s_add_u32 s16, s16, s22
    s_add_u32 s16, s16, {WP_OFF}
    s_lshl_b32 s17, s12, 19
    s_lshr_b32 s22, s13, 14
    s_add_u32 s17, s17, s22
    s_lshl_b32 s22, s3, 15
    s_add_u32 s17, s17, s22
    s_add_u32 s17, s17, s16
    s_lshr_b32 s22, s13, 24
    s_sub_u32 s16, s16, s22
    s_add_u32 s16, s16, {128*16384 + 128}
    s_lshl_b32 s23, s3, 6
    v_add_u32 v212, s23, v0
    v_sub_u32 v213, 0x100, v212
    s_cmp_ge_u32 s48, 4
    s_cselect_b64 vcc, -1, 0
    s_and_b32 s22, s15, 15
    s_add_u32 s22, s22, {WRB}
    v_cndmask_b32 v212, v212, v213, vcc
    v_lshlrev_b32 v212, 1, v212
    v_add_u32 v212, s22, v212
    s_lshr_b32 s23, s13, 22
    s_add_u32 s22, s22, s23
    v_and_b32 v213, 3, v0
    v_mul_u32_u24 v213, {4*576}, v213
    v_and_b32 v214, 1, v3
    v_mul_u32_u24 v214, {2*576}, v214
    v_add3_u32 v213, v213, v214, s22
    v_lshl_add_u32 v227, v3, 10, v241
    s_mov_b64 s[36:37], s[8:9]
    s_mov_b32 s38, 0x80000
    s_mov_b32 s39, s31
    s_lshl_b32 s21, s3, 14
    s_lshl_b32 s22, s55, 7
    s_add_u32 s21, s21, s22
    v_lshrrev_b32 v242, 3, v0
    v_and_b32 v243, 7, v0
    v_and_b32 v230, 6, v242
    v_xor_b32 v243, v243, v230
    v_lshlrev_b32 v243, 4, v243
    v_and_b32 v230, 4, v242
    v_add_u32 v242, v242, v230
    v_lshl_add_u32 v242, v242, 10, v243
    v_lshlrev_b32 v243, 4, v3
    v_lshrrev_b32 v231, 2, v2
    v_lshl_add_u32 v231, v14, 2, v231
    v_lshlrev_b32 v231, 7, v231
    v_and_b32 v230, 3, v2
    v_lshl_add_u32 v231, v230, 4, v231
    v_and_b32 v230, 1, v3
    v_lshl_add_u32 v231, v230, 3, v231
    v_and_b32 v214, 3, v0
    v_and_b32 v215, 16, v0
    v_lshl_add_u32 v214, v214, 2, v215
    v_add_u32 v214, {SPB}, v214""")
    st.mark("cconst")
    a("s_waitcnt vmcnt(0)")
    lds_signal(a, K_BX)
    lds_wait(a, K_BX, "C_BXW")
    a(f"""s_cmp_eq_u32 s3, 3
    s_cselect_b32 s22, s52, -1
    s_cmp_lt_u32 s22, {nclr()}
    s_cbranch_scc0 C_NOGO
    s_and_b32 s22, s22, 1
    s_lshl_b32 s22, s22, 7
    s_mov_b64 exec, 1
    buffer_atomic_add v255, v7, s[44:47], s22 offen sc1
    s_mov_b64 exec, -1
    C_NOGO:""")
    st.mark("cbx")
    for u in range(2):
        for t in range(4): a(f"ds_read_b128 {q(DAT+(u*4+t)*4)}, v10 offset:{t*2048+u*512}")
    for u in range(2):
        for t in range(4):
            a(f"s_waitcnt lgkmcnt({7-(u*4+t)})")
            for c in range(2):
                acc = AC1 + (u*2+c)*4
                a(f"{MF} {q(acc)}, {q(DAT+(u*4+t)*4)}, {q(C1+(t*2+c)*4)}, {q(acc) if t else 0}")
    for u in range(2):
        for rho in range(2):
            s = AC1 + (u*2+rho)*4
            a(f"v_cvt_pk_bf16_f32 v{OP2+rho*4+u*2}, v{s}, v{s+1}\nv_cvt_pk_bf16_f32 v{OP2+rho*4+u*2+1}, v{s+2}, v{s+3}")
    for rho in range(2):
        for tau in range(2):
            for c in range(2): a(f"{MF} {q(AC2+((rho*2+tau)*2+c)*4)}, {q(OP2+rho*4)}, {q(C2+(tau*2+c)*4)}, 0")
    def st3(rho, tau):
        for c in range(2):
            acc = AC3 + (tau*2+c)*4
            a(f"{MF} {q(acc)}, {q((C3B if rho else C3A)+4*c)}, {q(OP3+(rho*2+tau)*4)}, {q(acc) if rho else 0}")
        if tau == 0:
            for c in range(2):
                acc = ACE + 4*c
                a(f"{MF} {q(acc)}, {q((C3A if rho else C3B)+4*c)}, {q(OP3+(rho*2)*4)}, {q(acc) if rho else 0}")
    prev = None
    for rho in range(2):
        for tau in range(2):
            xr = AC2 + ((rho*2+tau)*2)*4; xi = xr + 4; k = rho*8 + tau*4
            t0 = TMP + ((rho*2+tau) & 1)*8
            for h in (0, 2):
                a(f"v_pk_mul_f32 {d(t0+h)}, {d(xr+h)}, {d(TWC+k+h)}")
                a(f"v_pk_mul_f32 {d(t0+4+h)}, {d(xi+h)}, {d(TWC+k+h)}")
            if prev: st3(*prev)
            for h in (0, 2):
                a(f"v_pk_fma_f32 {d(t0+h)}, {d(xi+h)}, {d(TWS+k+h)}, {d(t0+h)}")
                a(f"v_pk_fma_f32 {d(t0+4+h)}, {d(xr+h)}, {d(TWS+k+h)}, {d(t0+4+h)} neg_lo:[1,0,0] neg_hi:[1,0,0]")
            for i in range(4): a(f"v_cvt_pk_bf16_f32 v{OP3+(rho*2+tau)*4+i}, v{t0+i}, v{t0+4+i}")
            prev = (rho, tau)
    st3(*prev)
    st.mark("cb1")
    lds_wait(a, 5, "C_WRW")
    for j in range(2):
        if j: a("s_waitcnt lgkmcnt(4)")
        for i in range(4):
            a(f"ds_read_u16 v{RWR+4*j+i}, v212 offset:{(i*4+j*2)*576}\nds_read_u16 v{RWI+4*j+i}, v212 offset:{(i*4+j*2+1)*576}")
    a(f"s_waitcnt lgkmcnt(8)\nds_read_u16 v{SPC}, v213\nds_read_u16 v{SPC+1}, v213 offset:576\nds_read_u16 v224, v214\nds_read_u16 v225, v214 offset:32")
    for tau in range(2):
        for i in range(4): a(f"v_cvt_pk_bf16_f32 v{OUT+tau*4+i}, v{AC3+tau*8+i}, v{AC3+tau*8+4+i}")
    a(f"v_cvt_pk_bf16_f32 v14, v{ACE}, v{ACE+4}")
    for k in range(8): a(f"v_and_b32 v{OUT+k}, -2, v{OUT+k}")
    a("v_and_b32 v14, -2, v14")
    AK, AV, AQ = 144, 160, 112
    for r in range(0, 32, 2): a(f"v_pk_mul_f32 {d(AK+r)}, {d(232)}, 0")
    a("s_waitcnt lgkmcnt(0)")
    for k in range(8): a(f"v_lshl_or_b32 v{RWR+k}, v{RWI+k}, 16, v{RWR+k}\nv_xor_b32 v{RWR+k}, s13, v{RWR+k}")
    a(f"""s_cmp_eq_u32 s3, 0
    s_cbranch_scc0 C_NOSP2
    s_cmp_eq_u32 s12, 0
    s_cselect_b32 s22, 0, 1.0
    v_lshl_or_b32 v{SPC+4}, v225, 16, v224
    v_lshlrev_b32 v{SPC}, 16, v{SPC}
    v_lshlrev_b32 v{SPC+1}, 16, v{SPC+1}
    v_lshlrev_b32 v224, 16, v224
    v_lshlrev_b32 v225, 16, v225
    v_fma_f32 v{SPC}, v224, s22, v{SPC}
    v_fma_f32 v{SPC+1}, -v225, s22, v{SPC+1}
    v_mul_f32 v{SPC}, 0.5, v{SPC}
    v_mul_f32 v{SPC+1}, 0.5, v{SPC+1}
    v_cvt_pk_bf16_f32 v{SPC}, v{SPC}, v{SPC+1}
    v_xor_b32 v{SPC+4}, s13, v{SPC+4}
    v_xor_b32 v{SPC}, s13, v{SPC}""")
    for k in range(8): a(f"v_readlane_b32 s{4+k}, v{SPC}, {16*(k>>2) + (k&3)}")
    for k in range(8): a(f"v_writelane_b32 v{RWR+k}, s{4+k}, 0")
    a("C_NOSP2:")
    if TPOS == 0: a("s_branch C_TST\nC_TRET:")
    st.mark("cst")
    XF = lambda ks, R: 16 + (ks*4 + R)*4
    WF = lambda ks, p: 48 + (ks*2 + p)*4
    def reads(ks):
        L = []
        def w(p):
            for eta in range(2): L.append(f"ds_read_b64_tr_b16 {d(WF(ks,p)+2*eta)}, v6 offset:{(4*ks+eta)*2048 + p*1024}")
        w(0)
        for R in range(4): L.append(f"ds_read_b128 {q(XF(ks,R))}, v{4+ks} offset:{R*2048}")
        w(1)
        return L
    def mf(ks, p): return [f"{MF} {q(AK+(p*4+R)*4)}, {q(XF(ks,R))}, {q(WF(ks,p))}, {q(AK+(p*4+R)*4)}" for R in range(4)]
    def mfmas(ks): return mf(ks, 0) + mf(ks, 1)
    def inter(M, Rd):
        for i, m in enumerate(M):
            a(m)
            if i < len(Rd): a(Rd[i])
    a("s_mov_b32 s68, 0\ns_barrier")
    st.mark("cf0")
    for r in reads(0): a(r)
    a("s_branch C_MID\nC_LOOP:\ns_barrier")
    inter(mfmas(1), reads(0))
    if TPOS: a(f"s_cmp_eq_u32 s68, {TPOS}\ns_cbranch_scc1 C_TST\nC_TRET:")
    a("s_cmp_eq_u32 s68, s18\ns_cbranch_scc1 C_SIG")
    a("C_MID:\ns_waitcnt lgkmcnt(0)")
    inter(mfmas(0), reads(1))
    a(f"""v_add_u32 v4, 0x2000, v4
    v_add_u32 v5, 0x2000, v5
    v_add_u32 v6, 0x4000, v6
    v_and_b32 v6, 0xffff, v6
    s_add_u32 s68, s68, 1
    s_cmp_lg_u32 s68, {SIG1}
    s_cbranch_scc1 C_NOW
    s_waitcnt vmcnt(0)
    C_NOW:
    s_cmp_lt_u32 s68, 7
    s_waitcnt lgkmcnt(0)
    s_cbranch_scc1 C_LOOP""")
    for m in mfmas(1): a(m)
    a(f"""s_cmp_eq_u32 s3, 0
    s_cbranch_scc0 C_NOTK
    s_waitcnt vmcnt(0)
    v_readfirstlane_b32 s22, v240
    s_and_b32 s22, s22, 0xffff
    s_and_b32 s23, s2, 15
    s_lshl4_add_u32 s22, s22, s23
    {"" if DYN else "s_mov_b32 s22, s2"}
    v_mov_b32 v240, s22
    ds_write_b32 v254, v240 offset:{4*K_TASK}
    C_NOTK:
    s_barrier""")
    st.mark("cl1")
    R0, R1 = reads(0), reads(1)
    for r in R0[:6] + R1[:6]: a(r)
    M = mf(0, 0)
    for i in range(4): a(f"s_waitcnt lgkmcnt({9-i})"); a(M[i])
    for r in R0[6:] + R1[6:]: a(r)
    M = mf(1, 0)
    for i in range(4): a(f"s_waitcnt lgkmcnt({7-i})"); a(M[i])
    a("s_waitcnt lgkmcnt(0)")
    lds_signal(a, K_C7)
    KP, VP, KV, ZZ, KO = 208, 216, 236, 244, 248
    MV = mf(0, 1) + mf(1, 1)
    for m in MV[:2]: a(m)
    MV = MV[2:]
    def phi_list(src, dst, tmp):
        L = []
        for g4 in range(0, 16, 4):
            L += [f"v_pk_mul_f32 {d(tmp+g4+h)}, {d(src+g4+h)}, s[66:67]" for h in (0, 2)]
        for h in range(16):
            L += [f"v_exp_f32 v{tmp+h}, v{tmp+h} clamp", f"v_max_f32 v{src+h}, s65, v{src+h}"]
        for h in range(0, 16, 2): L += [f"v_pk_add_f32 {d(src+h)}, {d(src+h)}, {d(tmp+h)}"]
        for h in range(8): L += [f"v_cvt_pk_bf16_f32 v{dst+h}, v{src+2*h}, v{src+2*h+1}"]
        return L
    P = phi_list(AK, KP, 128)
    V = [f"v_cvt_pk_bf16_f32 v{VP+h}, v{AV+2*h}, v{AV+2*h+1}" for h in range(8)]
    P = P[:40] + V + P[40:]
    for i, x in enumerate(P):
        a(x)
        if i % 2 == 1 and MV: a(MV.pop(0))
        if i == len(P) - 3: a(f"{MF} {q(KV)}, {q(KP)}, {q(VP)}, 0")
    a(f"""{MF} {q(ZZ)}, v[232:235], {q(KP)}, 0
    {MF} {q(KV)}, {q(KP+4)}, {q(VP+4)}, {q(KV)}
    {MF} {q(ZZ)}, v[232:235], {q(KP+4)}, {q(ZZ)}
    v_subrev_u32 v4, 0xe000, v4
    v_subrev_u32 v5, 0xe000, v5
    v_mov_b32 v11, v231
    s_lshl_b32 s58, s53, 11
    s_add_u32 s58, s58, {KVF_OFF}
    v_cvt_pk_bf16_f32 v{KO}, v{KV}, v{KV+1}
    v_cvt_pk_bf16_f32 v{KO+1}, v{KV+2}, v{KV+3}
    v_min_u32 v{KO+2}, -2, v{KO}
    v_min_u32 v{KO+3}, -2, v{KO+1}
    v_min_u32 v{KO}, -2, v{KO}
    v_min_u32 v{KO+1}, -2, v{KO+1}
    v_min_u32 v{ZZ}, -2, v{ZZ}
    v_permlane16_swap_b32 v{KO+1}, v{KO+3}
    v_permlane16_swap_b32 v{KO}, v{KO+2}
    s_mov_b32 exec_lo, 0xffff
    s_mov_b32 exec_hi, 0xffff
    buffer_store_dwordx4 {q(KO)}, v9, {WS}, s63 offen sc1
    s_mov_b32 exec_hi, 0
    buffer_store_dword v{ZZ}, v241, {WS}, s64 offen sc1
    s_mov_b64 exec, -1""")
    st.mark("t0")
    class LQ:
        def __init__(self): self.o = []; self.seen = set()
        def issue(self, txt, tag):
            if len(self.o) >= 15: self.drain(10)
            a(txt); self.o.append(tag); self.seen.add(tag)
        def drain(self, n):
            if len(self.o) > n: a(f"s_waitcnt lgkmcnt({n})"); self.o = self.o[len(self.o)-n:] if n else []
        def need(self, *tags):
            idx = [i for i, t in enumerate(self.o) if t in tags]
            if idx: self.drain(len(self.o) - 1 - max(idx))
    lq = LQ()
    XS = [16 + 16*k for k in range(6)] + [144 + 16*k for k in range(4)]
    xs = lambda s_: XS[s_ % NPRE]
    wq = lambda s_: (128 if (s_ >> 2) % 2 == 0 else 208) + 4*(s_ & 3)
    def xr(s_): return [(f"ds_read_b128 {q(xs(s_)+4*R)}, v{4+(s_&1)} offset:{(s_>>1)*8192 + R*2048}", f"x{s_}") for R in range(4)]
    def wr_(g_): return [(f"ds_read_b64_tr_b16 {d(wq(s_)+2*eta)}, v8 offset:{g_*16384 + ((s_>>1)&1)*8192 + (4*(s_&1)+eta)*1024}", f"w{s_}") for s_ in range(4*g_, 4*g_+4) for eta in range(2)]
    lq.issue(f"ds_read_b32 v253, v254 offset:{4*K_Q}", "c")
    for s_ in range(2):
        for t in xr(s_): lq.issue(*t)
    lq.need("c")
    a("v_cmp_ne_u32 vcc, 4, v253\ns_cbranch_vccnz C_QS0\nC_QR0:")
    st.mark("cq0")
    for t in wr_(0): lq.issue(*t)
    pend = []
    for s_ in range(2, NPRE): pend += xr(s_)
    for g_ in range(4):
        if g_ < 3: lq.issue(f"ds_read_b32 v253, v254 offset:{4*(K_Q+1+g_)}", "c")
        for s_ in range(4*g_, 4*g_+4):
            if s_ & 3 == 1 and g_ < 3:
                lq.need("c")
                a(f"v_cmp_ne_u32 vcc, 4, v253\ns_cbranch_vccnz C_QS{g_+1}\nC_QR{g_+1}:")
                st.mark(f"cq{g_+1}")
                pend += wr_(g_+1)
            while any(t[1] in (f"x{s_}", f"w{s_}") for t in pend): lq.issue(*pend.pop(0))
            lq.need(f"x{s_}", f"w{s_}")
            if s_ == 4: lq.issue(f"s_mov_b64 exec, 1\nds_add_u32 v254, v255 offset:{4*K_G0}\ns_mov_b64 exec, -1", "a")
            if s_ >= 1 and s_ - 1 + NPRE < 16: pend += xr(s_ - 1 + NPRE)
            for R in range(4):
                a(f"{MF} {q(AQ+R*4)}, {q(wq(s_))}, {q(xs(s_)+4*R)}, {q(AQ+R*4) if s_ else 0}")
                for _ in range(2):
                    if pend: lq.issue(*pend.pop(0))
    assert not lq.o and not pend
    st.mark("cp2")
    QP, PP, ZL = 96, 16, 80
    def pl(p0, p1, fl):
        for p in range(p0, p1):
            if p % 2 == 0: a(f"s_add_u32 s22, s60, {p*1024}\ns_and_b32 s22, s22, 0x3fff\ns_add_u32 s22, s22, s58")
            a(f"buffer_load_dwordx4 {q(PP+4*p)}, v7, {WS}, s22 offen offset:{(p&1)*1024} {fl}")
    lds_signal(a, K_X)
    for x in phi_list(AQ, QP, 128): a(x)
    lds_wait(a, K_X, "C_XW")
    for pos in (range(6) if W67 else (6, 7, 0, 1, 2, 3, 4, 5)):
        a(f"""s_add_u32 s5, s57, {(pos+2) & 7}
        s_and_b32 s5, s5, 7
        s_lshl_b32 s5, s5, 16
        s_add_u32 m0, s69, {XB + 16384 + pos*8192}
        s_add_u32 s5, s5, s21
        buffer_load_dwordx4 v242, s[36:39], s5 offen lds
        s_add_u32 s5, s5, 3072
        buffer_load_dwordx4 v242, s[36:39], s5 offen offset:1024 lds""")
    st.mark("cpi")
    DEN, NUM = 112, 128
    a(f"v_and_b32 v12, 1, v3\nv_lshl_add_u32 v12, v12, 14, v9")
    FS = 2 if MAP == 48 else 7
    FO = F0_OFF + (OF_OFF if MAP == 48 else OF2_OFF)
    a(f"""s_lshl_b32 s61, s50, 16
    s_lshl_b32 s62, s53, 9
    s_add_u32 s61, s61, s62
    s_add_u32 s61, s61, {O_OFF}
    s_add_u32 s62, s61, 0x8000
    s_lshl_b32 s6, s54, {5+FS}
    s_add_u32 s6, s6, {FO}
    s_lshl_b32 s7, s50, 5
    s_add_u32 s7, s7, s53
    s_lshl_b32 s7, s7, {FS}
    s_add_u32 s7, s7, {FO}""")
    if MAP == 48: a(f"ds_read_b64 v[238:239], v254 offset:{4*K_MODE}")
    a(f"""C_PF:
    buffer_load_dwordx4 {q(ZL)}, v243, {WS}, s58 offen offset:1024 sc1
    buffer_load_dwordx2 {d(ZL+6)}, v11, {WS}, s58 offen sc1
    s_waitcnt vmcnt(0)
    v_max3_u32 v1, v{ZL}, v{ZL+1}, v{ZL+2}
    v_max3_u32 v14, v{ZL+3}, v{ZL+6}, v{ZL+7}
    v_cvt_pk_bf16_f32 v{ZL+4}, v{ZL}, v{ZL+1}
    v_max_u32 v1, v1, v14
    v_cvt_pk_bf16_f32 v{ZL+5}, v{ZL+2}, v{ZL+3}
    v_cmp_eq_u32 vcc, -1, v1
    s_cbranch_vccnz C_PFRE""")
    st.mark("ckv")
    for R in range(4): a(f"{M16} {q(DEN+4*R)}, {d(ZL+4)}, {d(QP+2*R)}, 0")
    for R in range(4): a(f"{M16} {q(NUM+4*R)}, {d(ZL+6)}, {d(QP+2*R)}, 0")
    lds_signal(a, K_WO)
    if MAP == 48: a("s_waitcnt lgkmcnt(1)\nv_readfirstlane_b32 s75, v238\nv_readfirstlane_b32 s73, v239")
    for R in range(4): a(f"v_add_f32 v{DEN+4*R}, s65, v{DEN+4*R}")
    for R in range(4): a(f"v_rcp_f32 v{DEN+4*R}, v{DEN+4*R}")
    if MAP == 48: a("s_cmp_eq_u32 s73, 4\ns_cbranch_scc0 C_MW\nC_MWR:\ns_nop 2")
    OO = 244
    for pr in range(2):
        for R in (2*pr, 2*pr+1):
            for h in (0, 2): a(f"v_pk_mul_f32 {d(NUM+4*R+h)}, {d(NUM+4*R+h)}, {d(DEN+4*R)} op_sel_hi:[1,0]")
            a(f"v_cvt_pk_bf16_f32 v{OO+2*R}, v{NUM+4*R}, v{NUM+4*R+1}\nv_cvt_pk_bf16_f32 v{OO+2*R+1}, v{NUM+4*R+2}, v{NUM+4*R+3}")
        o = OO + 4*pr
        a(f"v_permlane16_swap_b32 v{o}, v{o+2}\nv_permlane16_swap_b32 v{o+1}, v{o+3}")
        if MAP != 48: a(f"buffer_store_dwordx4 {q(o)}, v12, {WS}, s{61+pr} offen sc1")
    if MAP == 48:
        a(f"""s_cmp_eq_u32 s75, 0
        s_cbranch_scc0 C_OSLOW
        buffer_store_dwordx4 {q(OO)}, v12, {WS}, s61 offen
        buffer_store_dwordx4 {q(OO+4)}, v12, {WS}, s62 offen
        C_OST:""")
    st.mark("co")
    a(f"""s_lshl_b32 s22, s3, 5
    v_xor_b32 v8, s22, v8
    v_add_u32 v8, {XB + 16384}, v8
    v_xor_b32 v9, 32, v8
    v_xor_b32 v10, 64, v8
    v_xor_b32 v11, 96, v8
    v_lshlrev_b32 v13, {FS}, v0
    s_lshl2_add_u32 s58, s54, s3
    s_lshl_b32 s61, s58, 15
    s_lshl_b32 s58, s58, 14
    s_add_u32 s58, s58, {O_OFF}
    s_lshl_b32 s60, s57, 11
    s_add_u32 s60, s60, 4096
    s_lshl_b32 s22, s55, 7
    s_add_u32 s61, s61, s22
    v_lshlrev_b32 v12, 11, v2
    v_and_b32 v14, 1, v3
    v_lshl_add_u32 v12, v14, 5, v12
    v_lshrrev_b32 v14, 1, v3
    v_lshl_add_u32 v12, v14, 4, v12""")
    OF, ACC = 16, 128
    WB = [80, 96, 112, 160, 176, 192, 208, 224, 144]
    wb = lambda p: WB[p % NWO]
    def wreads(p): return [(f"ds_read_b64_tr_b16 {d(wb(p)+4*t+2*eta)}, v{8+t} offset:{p*4096 + eta*1024}", f"o{p}") for t in range(4) for eta in range(2)]
    a("s_cmp_eq_u32 s75, 0\ns_waitcnt vmcnt(0)")
    st.mark("cab")
    if MAP == 48:
        a(f"""s_mov_b64 exec, 1
        s_cbranch_scc0 C_FSLOW
        buffer_store_dword v255, v7, {WS}, s7 offen
        C_FST:
        s_mov_b64 exec, -1""")
    else: a(f"s_mov_b64 exec, 1\nbuffer_store_dword v255, v7, {WS}, s7 offen sc1\ns_mov_b64 exec, -1")
    if UGATE == 2: lds_signal(a, K_CO)
    lds_wait(a, K_WO, "C_WW")
    if W67: lds_wait(a, K_W67, "C_WW2")
    st.mark("cww")
    for p in range(0, 4):
        for t in wreads(p): lq.issue(*t)
    a(f"s_mov_b32 exec_hi, 0\nbuffer_load_dword v1, v13, {WS}, s6 offen sc1\ns_mov_b32 exec_hi, -1")
    for p in range(4, NWO):
        for t in wreads(p): lq.issue(*t)
    a(f"""s_mov_b32 exec_hi, 0
    C_OP:
    s_waitcnt vmcnt(0)
    v_cmp_ne_u32 vcc, 1, v1
    s_cbranch_vccnz C_OPRE
    s_mov_b64 exec, -1""")
    st.mark("cof")
    pl(0, 16, OFL)
    lq.issue(f"s_mov_b64 exec, 1\nds_add_u32 v254, v255 offset:{4*K_OI}\ns_mov_b64 exec, -1", "a")
    st.mark("coi")
    for p in range(16):
        a(f"s_waitcnt vmcnt({15-p})")
        lq.need(f"o{p}")
        if p == 0: st.mark("cg0")
        R = wreads(p-1+NWO) if p >= 1 and p-1+NWO < 16 else []
        for t in range(4):
            a(f"{MF} {q(ACC+4*t)}, {q(wb(p)+4*t)}, {q(OF+4*p)}, {q(ACC+4*t) if p else 0}")
            for r in R[2*t:2*t+2]: lq.issue(*r)
    st.mark("cg")
    for pr in range(2):
        o = 144 + pr*4
        for t in range(2):
            acc = ACC + (pr*2+t)*4
            a(f"v_cvt_pk_bf16_f32 v{o+2*t}, v{acc}, v{acc+1}\nv_cvt_pk_bf16_f32 v{o+2*t+1}, v{acc+2}, v{acc+3}")
        a(f"v_permlane16_swap_b32 v{o}, v{o+2}\nv_permlane16_swap_b32 v{o+1}, v{o+3}")
        a(f"buffer_store_dwordx4 {q(o)}, v12, s[40:43], s61 offen offset:{64*pr} {OUTFL.replace('_', ' ')}")
    st.dump()
    a("s_endpgm")
    a("C_TST:")
    for k in range(8): a(f"buffer_store_dword v{OUT+k}, v11, {WS}, s61 offen sc1\ns_add_u32 s61, s61, {0x4000 if k != 3 else 0x40000-3*0x4000}")
    a(f"""buffer_store_dwordx4 {q(RWR)}, v226, {WS}, s17 offen sc1
    buffer_store_dwordx4 {q(RWR+4)}, v226, {WS}, s17 offen offset:1024 sc1
    s_cmp_eq_u32 s3, 0
    s_cbranch_scc0 C_TRET
    s_mov_b32 exec_lo, 0xff
    s_mov_b32 exec_hi, 0xff
    buffer_store_dword v14, v13, {WS}, s60 offen sc1
    s_mov_b64 exec, -1
    s_cmp_eq_u32 s12, 0
    s_cbranch_scc0 C_TRET
    s_mov_b32 exec_hi, 0
    buffer_store_dword v{SPC+4}, v227, {WS}, s16 offen sc1
    s_mov_b32 exec_hi, -1
    s_branch C_TRET
    C_SIG:
    s_mov_b64 exec, 1
    buffer_atomic_add v240, v7, {WS}, s19 offen sc0 sc1
    s_mov_b64 exec, -1
    s_branch C_MID
    C_OPRE:""")
    spin_check(a, 0 if MAP == 48 else 2)
    a(f"buffer_load_dword v1, v13, {WS}, s6 offen sc1\ns_branch C_OP")
    for g_ in range(4):
        lds_wait(a, K_Q+g_, f"C_QS{g_}")
        a(f"s_branch C_QR{g_}")
    a("L_REDRE:")
    spin_check(a, RSLP, 100)
    a("s_branch L_RED")
    a("L_URE:")
    if UGATE != 1: lds_wait(a, K_OI, "L_URG", 1)
    spin_check(a, USLP)
    a("s_waitcnt lgkmcnt(0)\ns_branch L_UL\nL_H1RE:")
    spin_check(a, PSLEEP)
    a(f"buffer_load_dword v205, v250, {WS}, 0 offen sc1\ns_waitcnt vmcnt(0)\ns_branch L_H1")
    a("C_PFRE:")
    spin_check(a, FSLP, 100)
    a("s_branch C_PF")
    if MAP == 48:
        lds_wait(a, K_H1, "C_MW")
        a(f"""ds_read_b32 v238, v254 offset:{4*K_MODE}
        s_waitcnt lgkmcnt(0)
        v_readfirstlane_b32 s75, v238
        s_branch C_MWR
        C_OSLOW:
        buffer_store_dwordx4 {q(OO)}, v12, {WS}, s61 offen sc1
        buffer_store_dwordx4 {q(OO+4)}, v12, {WS}, s62 offen sc1
        s_branch C_OST
        C_FSLOW:
        buffer_store_dword v255, v7, {WS}, s7 offen sc1
        s_branch C_FST""")
    a("L_GORE:")
    spin_check(a, RESLEEP)
    a("buffer_load_dword v204, v249, s[44:47], 0 offen sc1\ns_waitcnt vmcnt(0)\ns_branch L_GO\nL_END:\ns_endpgm")

HEADER = open("concat_heads__linear_attn_block__spectral_gfnet__prompt.s.ref").read().split("; Override")[0]

def main(out):
    a = Asm(); st = Stamps(a)
    entry(a, st); l_main(a, st); c_main(a, st)
    txt = HEADER + f"""; @launch grid=(256,1,1) block=(512,1,1) lds={LDS_SIZE}
.amdgcn_target "amdgcn-amd-amdhsa--gfx950"
.text
""" + a.finalize() + f""".section .rodata,"a"
.p2align 6
.amdhsa_kernel {NAME}
  .amdhsa_next_free_vgpr 256
  .amdhsa_next_free_sgpr 102
  .amdhsa_accum_offset 256
  .amdhsa_group_segment_fixed_size 0
  .amdhsa_kernarg_size 72
  .amdhsa_user_sgpr_count 2
  .amdhsa_user_sgpr_kernarg_segment_ptr 1
  .amdhsa_system_sgpr_workgroup_id_x 1
.end_amdhsa_kernel
"""
    open(out, "w").write(txt)

if __name__ == "__main__":
    for arg in sys.argv[2:]:
        if arg == "stamp": STAMP = True
        elif "=" in arg:
            k, v = arg.split("=", 1)
            globals()[k] = int(v) if v.lstrip("-").isdigit() else v
    main(sys.argv[1])
```

```python
import sys, struct
from asm import Asm

T_OFF = 0; ROW = 8320; U_OFF = 0x240000; WP_OFF = 0x480000; KVP_OFF = 0x6C0000; ZP_OFF = 0x740000
KVF_OFF = 0x6B0000; F0_OFF = 0x750000; O_OFF = 0x800000; WS_SIZE = 0xA00000; DBG_OFF = 0xA00000
XB = 65536; BXB = 131072; EB = 147456; CNT = 163584; WRB = EB; SPB = WRB + 16*576; LDS_SIZE = 163840
OF_OFF = 4096; H2_OFF = 8192; OF2_OFF = 16384
STAMP = False
NAME = "concat_heads__linear_attn_block__spectral_gfnet__prompt_kernel"
SPIN = 0x40000
MAP = 48; GPOS = 1; SIG1 = 4; TPOS = 0; PSLEEP = 2; RESLEEP = 2; CPRIO = 2; LPRIO = 3; FORCESLOW = 0
OUTFL = ""; TFL = "sc1"; UFL = "sc1"; OFL = "sc1"; NPRE = 5; NWO = 9; PSPLIT = 8; HPOS = 0; XROT = 1; BNT = ""; XNT = ""; QPF = 0; RP = 1; WSB = 0; ROTM = 7; F3E = 0; RPM = 2; B2POS = 1; WNT = ""; PFL = "sc1"; YFL = ""; SFL = "sc1"; LBAR = 0; WOX = 1; WOAT = 2; DYN = 1; PFB = 0; UGATE = 1; USLP = 4; PROT = 0; PEXP = 0; RPOS = 0; RSLP = 2; FSLP = 2; UPRIO = 3; MW = 0; MWQ = 0; OPF = 7; W67 = 1; B3LATE = 0; NOPF = 0; LSLP = 1; NBSLP = 0
MC = "cbx,cst,cf0,t0,cp2,ckv,co,cww,cof,coi,cg"; ML = "iss,lf0,lf7,lq3,lh1,lt,lb2,lack,lul,luok,lend"
K_BX, K_X, K_WO, K_E1, K_E2, K_MODE, K_H1, K_Q, K_H2, K_OI, K_C7, K_TASK, K_G0, K_U, K_CO, K_W67 = 0, 1, 2, 3, 4, 6, 7, 8, 12, 13, 14, 15, 16, 17, 18, 19

def fhex(x): return "0x%08x" % struct.unpack("<I", struct.pack("<f", x))[0]
def q(b): return "v[%d:%d]" % (b, b + 3)
def d(b): return "v[%d:%d]" % (b, b + 1)
MF = "v_mfma_f32_16x16x32_bf16"
M16 = "v_mfma_f32_16x16x16_bf16"
WS = "s[24:27]"
def WREST(): return (6, 7, 0, 1, 2, 3, 4, 5) if PFB == 4 else (0, 1, 2, 3, 4, 5)
def nclr(): return 82 if MAP == 48 else 98

def srd_ptr(a, r, lo): a(f"s_mov_b32 s{r}, s{lo}\ns_mov_b32 s{r+1}, s{lo+1}")
def srd_const(a, r, size): a(f"s_mov_b32 s{r+2}, {size}\ns_mov_b32 s{r+3}, 0x20000")
def wsz(): return WS_SIZE + (0x100000 if STAMP else 0)

class Stamps:
    def __init__(self, a): self.a = a
    def start(self):
        if STAMP: self.a("s_memtime s[76:77]\ns_memrealtime s[78:79]")
    def clear(self, keep):
        if STAMP:
            for lst in (MC.split(","), ML.split(",")):
                pass
            for i in range(11):
                if i != keep: self.a(f"s_mov_b32 s{80+2*i}, 0")
    def idx(self, name):
        for lst in (MC.split(","), ML.split(",")):
            if name in lst: return lst.index(name)
        return -1
    def mark(self, name):
        if STAMP and self.idx(name) >= 0:
            i = self.idx(name); self.a(f"s_memtime s[{80+2*i}:{81+2*i}]")
    def dump(self):
        if not STAMP: return
        a = self.a
        a("v_mov_b32 v28, s56\ns_memrealtime s[74:75]\ns_waitcnt vmcnt(0) lgkmcnt(0)\ns_mov_b64 exec, 1")
        for i in range(11): a(f"s_sub_u32 s73, s{80+2*i}, s76\ns_cmp_eq_u32 s{80+2*i}, 0\ns_cselect_b32 s73, 0, s73\nv_mov_b32 v{16+i}, s73")
        a(f"s_sub_u32 s73, {SPIN}, s72\nv_mov_b32 v27, s73\nv_mov_b32 v29, 0\nv_mov_b32 v30, s78\nv_mov_b32 v31, s74")
        a(f"s_lshl_b32 s73, s2, 3\ns_add_u32 s73, s73, s3\ns_lshl_b32 s73, s73, 6\ns_add_u32 s73, s73, {DBG_OFF}\nv_mov_b32 v15, s73")
        for j in range(4): a(f"buffer_store_dwordx4 {q(16+4*j)}, v15, {WS}, 0 offen offset:{16*j}")

def spin_check(a, slp, w=1):
    a(f"s_sub_u32 s72, s72, {w if STAMP else 1}\ns_cbranch_scc1 L_END")
    if slp: a(f"s_sleep {slp}")

def lds_signal(a, k): a(f"s_mov_b64 exec, 1\nds_add_u32 v254, v255 offset:{4*k}\ns_mov_b64 exec, -1")
def lds_wait(a, k, lbl, slp=0):
    a(f"""{lbl}:
    {"s_sleep %d" % slp if slp else ""}
    ds_read_b32 v253, v254 offset:{4*k}
    s_sub_u32 s74, s74, 1
    s_cbranch_scc1 L_END
    s_waitcnt lgkmcnt(0)
    v_cmp_ne_u32 vcc, 4, v253
    s_cbranch_vccnz {lbl}""")

def issue1w(a, c):
    a(f"""s_mul_i32 s66, s52, 196608
    s_add_u32 m0, s64, {(c & 3)*16384}
    s_add_u32 s66, s66, s61
    buffer_load_dwordx4 v6, s[32:35], s66 offen {WNT} lds
    buffer_load_dwordx4 v6, s[32:35], s66 offen offset:1024 {WNT} lds
    s_add_u32 s66, s66, 10240
    buffer_load_dwordx4 v6, s[32:35], s66 offen offset:2048 {WNT} lds
    buffer_load_dwordx4 v6, s[32:35], s66 offen offset:3072 {WNT} lds""")
def issue1x(a, c):
    a(f"""s_lshl_b32 s65, s52, 7
    s_add_u32 m0, s62, {XB + c*8192}
    s_add_u32 s65, s65, s60
    buffer_load_dwordx4 v5, s[28:31], s65 offen {XNT} lds
    s_add_u32 s65, s65, 7168
    buffer_load_dwordx4 v5, s[28:31], s65 offen offset:1024 {XNT} lds""")
def issue1(a, c):
    if MAP == 48: issue1w(a, c); issue1x(a, c)
    else: issue1x(a, c); issue1w(a, c)
    a("s_add_u32 s52, s52, 1\ns_and_b32 s52, s52, 7")
def issue2(a, gam):
    for k2 in range(2):
        a(f"""s_mul_i32 s66, s52, 196608
        s_add_u32 m0, s62, {gam*16384 + k2*8192}
        s_add_u32 s66, s66, s61
        s_add_u32 s52, s52, 1
        buffer_load_dwordx4 v6, s[32:35], s66 offen {WNT} lds
        s_add_u32 s66, s66, 11264
        s_and_b32 s52, s52, 7
        buffer_load_dwordx4 v6, s[32:35], s66 offen offset:1024 {WNT} lds""")

def waddr(a, slot, conj, step, row0, wq_, gq_):
    a(f"""s_and_b32 {slot}, s48, 3
    s_cmp_eq_u32 s48, 4
    s_cselect_b32 {row0}, 4, {slot}
    s_and_b32 {wq_}, s49, 7
    s_lshl4_add_u32 {row0}, {wq_}, {row0}
    s_lshr_b32 {gq_}, s49, 3
    s_lshl_b32 s22, {gq_}, 9
    s_add_u32 {row0}, {row0}, s22
    s_sub_u32 s22, 2048, {row0}
    s_cmp_ge_u32 s48, 4
    s_cselect_b32 {row0}, s22, {row0}
    s_cselect_b32 {conj}, 0x80000000, 0
    s_movk_i32 {step}, {8*514}
    s_cmovk_i32 {step}, {-8*514}
    s_mulk_i32 {row0}, 514""")

def entry(a, st):
    a(f".globl {NAME}\n.p2align 8\n.type {NAME},@function\n{NAME}:")
    st.start()
    a(f"""s_cmp_ge_u32 s2, 256
    s_cbranch_scc1 L_END
    s_load_dwordx16 s[4:19], s[0:1], 0
    s_load_dwordx2 s[20:21], s[0:1], 64
    v_lshrrev_b32 v4, 6, v0
    s_lshr_b32 s49, s2, 3
    v_readfirstlane_b32 s3, v4
    v_and_b32 v0, 63, v0
    s_cmp_eq_u32 s3, 0
    s_cbranch_scc0 C_NOPF
    s_mov_b32 exec_lo, 0xfffff
    s_mov_b32 exec_hi, 0
    s_getpc_b64 s[60:61]
    L_PC:
    s_mul_i32 s62, s49, 768
    v_min_u32 v1, 5, v0
    v_lshlrev_b32 v1, 7, v1
    v_add_u32 v1, s62, v1
    v_min_u32 v1, L_END-L_PC, v1
    global_load_dword v1, v1, s[60:61]
    v_lshlrev_b32 v2, 2, v0
    v_add_u32 v2, {CNT}, v2
    v_mov_b32 v3, 0
    ds_write_b32 v2, v3
    s_mov_b64 exec, -1
    C_NOPF:
    s_and_b32 s48, s2, 7
    v_lshlrev_b32 v7, 4, v0
    s_mov_b32 s30, 0x200000
    s_mov_b32 s31, 0x20000""")
    if MAP == 48:
        a("""s_and_b32 s52, s49, 3
        s_lshl2_add_u32 s50, s48, s52
        s_lshr_b32 s51, s49, 2
        s_lshl1_add_u32 s52, s52, s51""")
    else:
        a("""s_and_b32 s52, s49, 7
        s_lshr_b32 s50, s48, 1
        s_lshl3_add_u32 s50, s50, s52
        s_lshr_b32 s22, s49, 3
        s_and_b32 s51, s48, 1
        s_lshl2_add_u32 s51, s51, s22
        s_lshl1_add_u32 s52, s22, s52""")
    a(f"""s_cmp_ge_u32 s3, 4
    s_cbranch_scc1 L_START
    s_lshl_b32 s69, s3, 11
    s_lshl_b32 s58, s3, 19
    s_lshl_b32 s59, s2, 10
    s_add_u32 s58, s58, s59
    s_add_u32 s59, s58, {0x40000-1024}
    s_add_u32 m0, s69, {BXB}
    s_cmp_ge_u32 s2, 209
    s_cselect_b32 s22, 0, -1
    v_mov_b32 v208, s22
    v_mov_b32 v209, s22
    v_mov_b32 v210, s22
    v_mov_b32 v211, s22
    s_sub_u32 s52, s2, 129
    s_cmp_eq_u32 s3, 3
    s_cselect_b32 s52, s52, -1
    s_lshl_b32 s65, s52, 13
    s_add_u32 s65, s65, {KVF_OFF}
    s_mov_b32 s26, {wsz()}
    s_mov_b32 s27, s31
    s_cmp_lt_u32 s52, {nclr()}
    s_waitcnt lgkmcnt(0)
    s_mov_b64 s[28:29], s[10:11]
    s_cselect_b32 s23, 1, 0
    s_add_u32 s24, s20, {WSB << 20}
    s_addc_u32 s25, s21, 0
    s_cmp_eq_u32 s23, 1
    s_cbranch_scc1 C_CLR
    C_NOCLR:
    buffer_load_dwordx4 v7, s[28:31], s58 offen {BNT} lds
    buffer_load_dwordx4 v7, s[28:31], s59 offen offset:1024 {BNT} lds
    s_barrier
    s_branch C_MAIN
    C_CLR:
    buffer_store_dwordx4 v[208:211], v7, {WS}, s65 offen sc1
    buffer_store_dwordx4 v[208:211], v7, {WS}, s65 offen offset:1024 sc1
    buffer_store_dwordx4 v[208:211], v7, {WS}, s65 offen offset:2048 sc1
    buffer_store_dwordx4 v[208:211], v7, {WS}, s65 offen offset:3072 sc1
    s_bitset1_b32 s65, 12
    buffer_store_dwordx4 v[208:211], v7, {WS}, s65 offen sc1
    buffer_store_dwordx4 v[208:211], v7, {WS}, s65 offen offset:1024 sc1
    buffer_store_dwordx4 v[208:211], v7, {WS}, s65 offen offset:2048 sc1
    buffer_store_dwordx4 v[208:211], v7, {WS}, s65 offen offset:3072 sc1
    s_branch C_NOCLR
    L_START:
    s_sub_u32 s58, s3, 4
    {"s_and_b32 s52, s52, %d" % ROTM if ROTM != 7 else ""}
    {"s_add_u32 s52, s52, s48" if XROT == 1 else ""}
    {"s_lshr_b32 s22, s48, 1" if XROT == 2 else ""}
    {"s_add_u32 s52, s52, s22" if XROT == 2 else ""}
    s_and_b32 s52, s52, 7
    v_lshrrev_b32 v8, 3, v0
    v_and_b32 v9, 7, v0
    v_and_b32 v10, 6, v8
    v_xor_b32 v9, v9, v10
    v_lshlrev_b32 v9, 4, v9
    v_lshl_add_u32 v5, v8, 10, v9
    v_and_b32 v10, 4, v8
    v_add_u32 v10, v10, v8
    v_mul_u32_u24 v6, 3072, v10
    v_add_u32 v6, v6, v9
    s_lshl2_add_u32 s60, s50, s58
    s_lshl_b32 s60, s60, 14
    s_lshl_b32 s61, s51, 7
    s_mul_i32 s62, s58, 49152
    s_add_u32 s61, s61, s62
    s_addk_i32 s61, 1024
    s_lshl_b32 s62, s58, 11
    s_lshl_b32 s64, s58, 12
    s_mov_b32 s34, 0x180000
    s_mov_b32 s35, s31
    s_mov_b32 s38, {2048*514}
    s_mov_b32 s39, s31
    s_mov_b32 s42, s38
    s_mov_b32 s43, s31""")
    waddr(a, "s75", "s59", "s67", "s68", "s56", "s57")
    a(f"""s_lshl_b32 s22, s58, 4
    s_mul_i32 s22, s22, s67
    s_add_u32 s22, s22, s68
    s_and_b32 s22, s22, -16
    s_add_u32 s23, s22, s67
    s_mul_i32 s73, s58, {4*576}
    s_add_u32 m0, s73, {WRB}
    s_waitcnt lgkmcnt(0)
    s_mov_b64 s[36:37], s[12:13]
    s_mov_b64 s[40:41], s[14:15]
    s_mov_b64 s[32:33], s[6:7]
    s_mov_b64 s[28:29], s[4:5]
    s_barrier
    s_mov_b32 exec_hi, 3
    buffer_load_dwordx4 v7, s[36:39], s22 offen {BNT} lds
    s_add_u32 m0, s73, {WRB+576}
    s_nop 0
    buffer_load_dwordx4 v7, s[40:43], s22 offen {BNT} lds
    s_add_u32 m0, s73, {WRB+2*576}
    s_nop 0
    buffer_load_dwordx4 v7, s[36:39], s23 offen {BNT} lds
    s_add_u32 m0, s73, {WRB+3*576}
    s_nop 0
    buffer_load_dwordx4 v7, s[40:43], s23 offen {BNT} lds
    s_mov_b32 exec_hi, -1
    s_cmp_eq_u32 s58, 0
    s_cbranch_scc0 L_NOSP
    v_and_b32 v12, 3, v0
    v_lshlrev_b32 v12, 4, v12
    v_lshrrev_b32 v11, 2, v0
    v_add_u32 v12, v12, v11
    v_mul_i32_i24 v12, s67, v12
    v_add_u32 v12, s68, v12
    v_sub_u32 v11, {2048*514}, v12
    s_lshr_b32 s23, s59, 22
    s_sub_u32 s22, 512, s23
    s_cmp_eq_u32 s75, 0
    s_cselect_b64 vcc, -1, 0
    s_cselect_b32 s22, s22, s23
    v_cndmask_b32 v11, v11, v12, vcc
    s_mov_b32 m0, {SPB}
    s_mov_b64 exec, 0xff
    buffer_load_ushort v11, s[36:39], s22 offen lds
    s_mov_b32 m0, {SPB+32}
    s_nop 0
    buffer_load_ushort v11, s[40:43], s22 offen lds
    s_mov_b64 exec, -1
    L_NOSP:""")
    issue1(a, 0)
    st.mark("iss")

def common_setup(a, st, keep):
    st.clear(keep)
    a(f"s_add_u32 s24, s20, {WSB << 20}\ns_addc_u32 s25, s21, 0\ns_mov_b64 s[40:41], s[16:17]\ns_mov_b64 s[44:45], s[18:19]")
    srd_const(a, 24, wsz()); srd_const(a, 40, 0x400000); srd_const(a, 44, 256)
    a(f"""s_mov_b32 s72, {SPIN}
    s_mov_b32 s74, {SPIN*16}
    v_mov_b32 v254, {CNT}
    v_mov_b32 v255, 1
    v_and_b32 v2, 15, v0
    v_lshrrev_b32 v3, 4, v0
    v_cvt_f32_u32 v8, v2
    v_cvt_f32_u32 v9, v3
    v_lshrrev_b32 v12, 1, v0
    v_lshrrev_b32 v13, 2, v0
    v_and_b32 v13, 4, v13
    v_xor_b32 v12, v12, v13
    v_and_b32 v15, 7, v12
    s_and_b32 s57, s49, 3
    s_lshl2_add_u32 s54, s48, s57
    s_lshr_b32 s55, s49, 2
    s_lshl1_add_u32 s57, s57, s55
    s_and_b32 s19, s2, 15
    s_lshl_b32 s19, s19, 7
    s_add_u32 s19, s19, {F0_OFF}""")

RWR, RWI, SPC = 176, 184, 192

def l_main(a, st):
    C1, C2, TWC, TWS, C3, DAT, AC1, OP2, AC2, INI = 16, 40, 48, 56, 64, 80, 112, 144, 160, 192
    TMP, OP3, AC3, OUT = 80, 112, 128, 144
    CA, CB = 208, 240
    OP, WPK, AC, PK, WRI, T0 = 80, 96, 112, 144, 160, 176
    seq = ["w"]*4 + ["F0"]*6
    a("v_lshl_add_u32 v4, v10, 10, v9\ns_mov_b64 s[36:37], s[8:9]")
    srd_const(a, 36, 0x80000)
    common_setup(a, st, st.idx("iss"))
    CT = 194
    def b3_consts():
        a(f"""s_lshl_b32 s67, s58, 9
        s_add_u32 s67, s67, s2
        v_and_b32 v10, 1, v0
        v_lshlrev_b32 v10, 8, v10
        v_add_u32 v10, s67, v10
        v_cvt_f32_u32 v10, v10
        v_mul_f32 v10, {fhex(1/2048)}, v10
        v_lshrrev_b32 v11, 5, v0
        v_cvt_f32_u32 v11, v11""")
        MK = 196
        for r in range(4): a(f"v_cmp_eq_u32 vcc, {r}, v15\nv_cndmask_b32 v{MK+r}, 0, -1, vcc")
        a(f"""v_mul_f32 v12, v11, v10
        v_mov_b32 v13, 0xc0400000
        v_fma_f32 v13, v13, v11, 4.0
        v_mul_f32 v13, v13, v10
        v_add_f32 v14, 2.0, v11
        v_mul_f32 v14, v14, v10""")
        for k in range(3):
            b = C1 + 8*k
            a(f"""v_cos_f32 v{CT}, v{12+k}
            v_sin_f32 v{CT+1}, v{12+k}
            v_mul_f32 v{CT}, {fhex(2.0**-19)}, v{CT}
            v_mul_f32 v{CT+1}, {fhex(2.0**-19)}, v{CT+1}
            v_cvt_pk_bf16_f32 v{b+3}, v{CT}, -v{CT+1}
            v_cvt_pk_bf16_f32 v{b+7}, v{CT+1}, v{CT}""")
            for c in range(2):
                for r in range(4): a(f"v_and_b32 v{b+4*c+r}, v{b+4*c+3}, v{MK+r}")
        a(f"v_mul_f32 v12, {fhex(1/16)}, v8\nv_mul_f32 v13, v9, v12\nv_mul_f32 v12, 4.0, v12")
        for v in range(4):
            a(f"v_cos_f32 v{CT}, v13\nv_sin_f32 v{CT+1}, v13")
            if v < 3: a("v_add_f32 v13, v13, v12")
            a(f"v_cvt_pk_bf16_f32 v{C2+v}, v{CT}, -v{CT+1}\nv_cvt_pk_bf16_f32 v{C2+4+v}, v{CT+1}, v{CT}")
        a(f"""v_bfe_u32 v12, v0, 4, 1
        v_cvt_f32_u32 v12, v12
        v_add_f32 v12, v12, v12
        v_mov_b32 v13, 0x41800000
        v_fma_f32 v12, v11, v13, v12
        v_mul_f32 v13, {fhex(1/512)}, v8
        v_mul_f32 v14, v12, v13
        v_mul_f32 v15, {fhex(3.0)}, v13""")
        for i in range(4):
            for ph in range(2):
                k = i*2 + ph; kap = i >> 1; r = (i & 1)*2 + ph
                a(f"""v_cos_f32 v{TWC+k}, v14
                v_sin_f32 v{TWS+k}, v14
                v_mul_f32 v12, 0x41800000, v14
                v_cos_f32 v{CT}, v12
                v_sin_f32 v{CT+1}, v12""")
                if k < 7: a(f"v_add_f32 v14, v14, v{15 if ph else 13}")
                a(f"v_cvt_pk_bf16_f32 v{C3+kap*8+r}, v{CT}, -v{CT+1}")
                if ph: a(f"v_cvt_pk_bf16_f32 v{C3+kap*8+4+r}, -v{CT}, v{CT+1}")
                else: a(f"v_cvt_pk_bf16_f32 v{C3+kap*8+4+r}, v{CT}, -v{CT+1}")
        a(f"""v_cvt_f32_u32 v12, s2
        v_mul_f32 v12, {fhex(1/512)}, v12
        v_cos_f32 v13, v12
        v_sin_f32 v14, v12
        v_lshlrev_b32 v10, 10, v3
        v_lshl_add_u32 v10, v2, 4, v10
        v_mul_f32 v13, {fhex(2.0**-20)}, v13
        v_mul_f32 v14, {fhex(2.0**-20)}, v14
        v_lshlrev_b32 v11, 5, v2
        v_lshl_add_u32 v11, v3, 3, v11
        v_mov_b32 v15, 0""")
    def b2_consts():
        a(f"""s_lshl_b32 s22, s58, 2
        v_cvt_f32_u32 v146, s22
        v_mul_f32 v144, {fhex(1/16)}, v8
        v_mul_f32 v145, 4.0, v9
        v_mul_f32 v145, v145, v144
        v_mul_f32 v147, {fhex(1/16)}, v144
        v_mul_f32 v146, v146, v147""")
        for r in range(4):
            a(f"""v_cos_f32 v154, v145
            v_sin_f32 v155, v145
            v_add_f32 v148, v145, v146
            v_cvt_pk_bf16_f32 v{CB+r}, v154, v155
            v_cvt_pk_bf16_f32 v{CB+4+r}, -v155, v154""")
            for j in range(4):
                t = 150 + 2*(j & 1)
                a(f"v_cos_f32 v{t}, v148\nv_sin_f32 v{t+1}, v148")
                if j < 3: a("v_add_f32 v148, v148, v147")
                elif r < 3: a("v_add_f32 v145, v145, v144")
                a(f"v_cvt_pk_bf16_f32 v{CA+8*j+r}, v{t}, v{t+1}\nv_cvt_pk_bf16_f32 v{CA+8*j+4+r}, -v{t+1}, v{t}")
        a(f"""s_lshl_b32 s23, s58, 8
        v_lshlrev_b32 v200, 12, v3
        v_lshl_add_u32 v200, v2, 4, v200
        v_add_u32 v200, s23, v200
        v_add_u32 v201, s64, v7
        v_add_u32 v251, {EB}, v200
        v_add_u32 v252, {EB}, v201
        s_cmp_eq_u32 s58, 3
        s_cselect_b32 s16, 0xffff, -1""")
    def misc_addr():
        a(f"""s_and_b32 s53, s2, 15
        s_lshl_b32 s53, s53, 4
        s_bfe_u32 s22, s2, 0x20004
        s_lshl2_add_u32 s53, s22, s53
        s_lshr_b32 s22, s2, 6
        s_add_u32 s53, s53, s22
        s_lshl_b32 s53, s53, 6
        v_lshlrev_b32 v12, 7, v0
        v_add_u32 v250, {F0_OFF}, v12
        v_mov_b32 v207, 4
        v_lshlrev_b32 v248, 2, v0
        v_mov_b32 v206, 0
        s_lshl_b32 s22, s51, 11
        s_add_u32 s22, s22, s60
        s_add_u32 s22, s22, {O_OFF}
        v_add_u32 v202, s22, v12
        s_lshl_b32 s22, s50, 7
        s_add_u32 s22, s22, {F0_OFF + OF_OFF}
        v_writelane_b32 v202, s22, 16
        v_mov_b32 v249, v12
        s_lshl_b32 s21, s58, 14
        s_lshl_b32 s22, s55, 7
        s_add_u32 s21, s21, s22
        s_cmp_eq_u32 s58, 0
        s_cselect_b32 s17, 0, 0x40000000""")
    def wo_dma(poss):
        for pos in poss:
            a(f"""s_add_u32 s5, s57, {(pos+2) & 7}
            s_and_b32 s5, s5, 7
            s_lshl_b32 s5, s5, 16
            s_add_u32 m0, s62, {XB + 16384 + pos*8192}
            s_add_u32 s5, s5, s21
            buffer_load_dwordx4 v4, s[36:39], s5 offen lds
            s_add_u32 s5, s5, 3072
            buffer_load_dwordx4 v4, s[36:39], s5 offen offset:1024 lds""")
    def opf():
        if MAP == 48: a(f"s_mov_b64 exec, 0x1ffff\nbuffer_load_dword v203, v202, {WS}, 0 offen {PFL.replace('_', ' ')}\ns_mov_b64 exec, -1"); seq.append("p")
    def younger(tag): return len(seq) - 1 - max(i for i, x in enumerate(seq) if x == tag)
    misc_addr()
    def mall_warm():
        a(f"""s_lshl2_add_u32 s22, s2, s58
        s_lshl_b32 s23, s22, 9
        s_lshr_b32 s5, s22, 1
        s_mulk_i32 s5, 3072
        s_and_b32 s22, s23, 512
        s_add_u32 s5, s5, s22
        s_mov_b64 exec, 15
        buffer_load_dword v198, v12, s[36:39], s23 offen
        {"buffer_load_dword v197, v12, s[32:35], s5 offen" if MWQ else ""}
        s_mov_b64 exec, -1"""); seq.extend(["m"]*(1+MWQ))
    def repack_all():
        a(f"""v_lshrrev_b32 v109, 5, v0
        v_lshlrev_b32 v108, 2, v2
        s_lshr_b32 s69, s49, 3
    v_and_b32 v100, 1, v3
    v_lshlrev_b32 v100, 18, v100
    v_lshl_add_u32 v100, v109, 14, v100
    v_lshl_add_u32 v100, v2, 4, v100
    s_lshl_b32 s14, s56, 11
    s_lshl_b32 s22, s69, 8
    s_add_u32 s14, s14, s22
    s_add_u32 s14, s14, {WP_OFF}
    s_lshl_b32 s15, s75, 19
    s_lshr_b32 s22, s59, 14
    s_add_u32 s15, s15, s22
    s_lshl_b32 s22, s58, 15
    s_add_u32 s15, s15, s22
    s_add_u32 s15, s15, s14
    s_lshr_b32 s22, s59, 24
    s_sub_u32 s14, s14, s22
    s_add_u32 s14, s14, {128*16384 + 128}
    s_lshl_b32 s23, s58, 6
    v_add_u32 v102, s23, v0
    v_sub_u32 v103, 0x100, v102
    s_cmp_ge_u32 s48, 4
    s_cselect_b64 vcc, -1, 0
    s_and_b32 s22, s68, 15
    s_add_u32 s22, s22, {WRB}
    v_cndmask_b32 v102, v102, v103, vcc
    v_lshlrev_b32 v102, 1, v102
    v_add_u32 v102, s22, v102
    s_lshr_b32 s23, s59, 22
    s_add_u32 s22, s22, s23
    v_and_b32 v103, 3, v0
    v_mul_u32_u24 v103, {4*576}, v103
    v_and_b32 v104, 1, v3
    v_mul_u32_u24 v104, {2*576}, v104
    v_add3_u32 v103, v103, v104, s22
    v_lshl_add_u32 v101, v3, 10, v108
    v_and_b32 v104, 3, v0
    v_and_b32 v105, 16, v0
    v_lshl_add_u32 v104, v104, 2, v105
    v_add_u32 v104, {SPB}, v104""")
        if RP >= 2: issue1(a, 1); seq.extend(["F1"]*6)
        a(f"s_waitcnt vmcnt({younger('w')})")
        lds_signal(a, 5)
        if RP == 1: issue1(a, 1); seq.extend(["F1"]*6)
        if RP >= 2: issue1(a, 2); seq.extend(["F2"]*6)
        if RP >= 3: issue1(a, 3); seq.extend(["F3"]*6)
        lds_wait(a, 5, "L_WRW")
        st.mark("lbar")
        for j in range(2):
            if j: a("s_waitcnt lgkmcnt(4)")
            for i in range(4):
                a(f"ds_read_u16 v{RWR+4*j+i}, v102 offset:{(i*4+j*2)*576}\nds_read_u16 v{RWI+4*j+i}, v102 offset:{(i*4+j*2+1)*576}")
        a(f"s_waitcnt lgkmcnt(8)\nds_read_u16 v{SPC}, v103\nds_read_u16 v{SPC+1}, v103 offset:576\nds_read_u16 v106, v104\nds_read_u16 v107, v104 offset:32")
        a("s_waitcnt lgkmcnt(0)")
        for k in range(8): a(f"v_lshl_or_b32 v{RWR+k}, v{RWI+k}, 16, v{RWR+k}\nv_xor_b32 v{RWR+k}, s59, v{RWR+k}")
        a(f"""s_cmp_eq_u32 s58, 0
        s_cbranch_scc0 L_NOSP2
        s_cmp_eq_u32 s75, 0
        s_cselect_b32 s22, 0, 1.0
        v_lshl_or_b32 v{SPC+4}, v107, 16, v106
        v_lshlrev_b32 v{SPC}, 16, v{SPC}
        v_lshlrev_b32 v{SPC+1}, 16, v{SPC+1}
        v_lshlrev_b32 v106, 16, v106
        v_lshlrev_b32 v107, 16, v107
        v_fma_f32 v{SPC}, v106, s22, v{SPC}
        v_fma_f32 v{SPC+1}, -v107, s22, v{SPC+1}
        v_mul_f32 v{SPC}, 0.5, v{SPC}
        v_mul_f32 v{SPC+1}, 0.5, v{SPC+1}
        v_cvt_pk_bf16_f32 v{SPC}, v{SPC}, v{SPC+1}
        v_xor_b32 v{SPC+4}, s59, v{SPC+4}
        v_xor_b32 v{SPC}, s59, v{SPC}""")
        for k in range(8): a(f"v_readlane_b32 s{4+k}, v{SPC}, {16*(k>>2) + (k&3)}")
        for k in range(8): a(f"v_writelane_b32 v{RWR+k}, s{4+k}, 0")
        a("L_NOSP2:")
        a(f"""s_or_b32 s22, s58, s75
        s_cbranch_scc1 L_NOSP3
        s_mov_b32 exec_hi, 0
        buffer_store_dword v{SPC+4}, v101, {WS}, s14 offen sc1
        s_mov_b32 exec_hi, -1
        L_NOSP3:
        buffer_store_dwordx4 {q(RWR)}, v100, {WS}, s15 offen sc1
        buffer_store_dwordx4 {q(RWR+4)}, v100, {WS}, s15 offen offset:1024 sc1""")
        seq.extend(["s"]*2)
    st.mark("lw")
    repack_all()
    st.mark("lwp")
    if RP == 0: issue1(a, 1); seq += ["F1"]*6
    if RP < 2: issue1(a, 2); seq += ["F2"]*6
    if F3E and RP < 3: issue1(a, 3); seq += ["F3"]*6
    if QPF:
        a("""s_and_b32 s22, s49, 3
        s_lshl2_add_u32 s22, s22, s58
        s_lshl_b32 s22, s22, 5
        v_add_u32 v110, s22, v0
        v_mul_u32_u24 v110, 3072, v110
        s_lshl_b32 s22, s51, 7
        s_mov_b32 exec_hi, 0
        buffer_load_dword v111, v110, s[32:35], s22 offen
        s_mov_b32 exec_hi, -1"""); seq.append("p")
    if B2POS == 0: b2_consts()
    st.mark("lconst")
    for c in range(8):
        n = younger(f"F{c}")
        if c == SIG1: n = min(n, younger("g"))
        a(f"s_waitcnt vmcnt({n})")
        if c == SIG1: a(f"s_cmp_eq_u32 s58, 0\ns_cbranch_scc0 L_GOD\ns_mov_b64 exec, 3\nL_GO:\nv_cmp_gt_u32 vcc, {nclr()//2}, v204\ns_cbranch_vccnz L_GORE\ns_mov_b64 exec, -1\nL_GOD:")
        a("s_barrier")
        st.mark(f"lf{c}")
        if c == GPOS: a("s_mov_b64 exec, 3\nbuffer_load_dword v204, v249, s[44:47], s17 offen sc1\ns_mov_b64 exec, -1"); seq += ["g"]
        if F3E <= c < 5: issue1(a, c+3); seq += [f"F{c+3}"]*6
        if c == 5: a("s_sub_u32 s61, s61, 1024")
        if c >= 5: issue2(a, c-5); seq += [f"F{c+3}"]*4
        if c == OPF: opf()
    def arrive(k):
        a(f"s_waitcnt vmcnt({younger('F%d' % k)})"); lds_signal(a, k); st.mark(f"la{k}")
    def h1(): a(f"s_mov_b64 exec, 0xffff\nbuffer_load_dword v205, v250, {WS}, s17 offen sc1\ns_mov_b64 exec, -1"); seq.append("h")
    def late_pf():
        if W67: wo_dma((6, 7)); seq.extend(["p"]*4)
        if OPF == 9: opf()
    def reducer():
        R0 = 160
        a("s_cmp_lt_u32 s13, 288\ns_cbranch_scc0 L_NORED\nL_RED:\ns_mov_b32 s22, s8")
        for t in range(8):
            a(f"buffer_load_dword v{R0+t}, v193, {WS}, s22 offen sc1")
            if t < 7: a("s_add_u32 s22, s22, s9")
        a(f"""s_waitcnt vmcnt(0)
        v_max3_u32 v1, v{R0}, v{R0+1}, v{R0+2}
        v_max3_u32 v{R0+8}, v{R0+3}, v{R0+4}, v{R0+5}
        v_max3_u32 v1, v1, v{R0+6}, v{R0+7}
        v_max_u32 v1, v1, v{R0+8}
        v_cmp_eq_u32 vcc, -1, v1
        s_cbranch_vccnz L_REDRE""")
        for t in range(8): a(f"v_lshlrev_b32 v{R0+8+2*t}, 16, v{R0+t}\nv_and_b32 v{R0+9+2*t}, s11, v{R0+t}")
        for st_ in (8, 4, 2):
            for t in range(0, st_, 2): a(f"v_pk_add_f32 {d(R0+8+t)}, {d(R0+8+t)}, {d(R0+8+t+st_)}")
        for sw in ("32", "16"):
            a(f"""v_mov_b32 v{R0+10}, v{R0+8}
            v_mov_b32 v{R0+11}, v{R0+9}
            v_permlane{sw}_swap_b32 v{R0+8}, v{R0+10}
            v_permlane{sw}_swap_b32 v{R0+9}, v{R0+11}
            v_pk_add_f32 {d(R0+8)}, {d(R0+8)}, {d(R0+10)}""")
        a(f"""v_cvt_pk_bf16_f32 v{R0+8}, v{R0+8}, v{R0+9}
        v_cndmask_b32 v{R0+8}, v{R0+9}, v{R0+8}, s[14:15]
        v_min_u32 v{R0+8}, -2, v{R0+8}
        s_mov_b64 exec, 0xffff
        buffer_store_dword v{R0+8}, v193, {WS}, s10 offen sc1
        s_mov_b64 exec, -1
        L_NORED:""")
        st.mark("lred")
    arrive(8)
    if PFB == 3: late_pf()
    lds_wait(a, K_C7, "L_C7A", LSLP)
    a(f"ds_read_b32 v1, v254 offset:{4*K_TASK}")
    issue2(a, 3); seq += ["F11"]*4
    a(f"""s_waitcnt lgkmcnt(0)
    v_readfirstlane_b32 s56, v1
    s_lshl_b32 s20, s56, 14
    s_add_u32 s20, s20, s64
    s_sub_u32 s13, s56, 129
    s_lshl2_add_u32 s13, s13, s58
    s_mul_i32 s22, s13, 7282
    s_lshr_b32 s22, s22, 16
    s_mul_i32 s23, s22, 9
    s_sub_u32 s23, s13, s23
    s_lshl_b32 s8, s22, 14
    s_lshl_b32 s9, s23, 6
    s_add_u32 s8, s8, s9
    s_add_u32 s8, s8, {KVP_OFF}
    s_lshl_b32 s9, s22, 11
    s_lshl_b32 s10, s23, 7
    s_add_u32 s10, s10, s9
    s_add_u32 s10, s10, {KVF_OFF}
    s_add_u32 s9, s9, {ZP_OFF}
    s_cmp_lt_u32 s23, 8
    s_cselect_b32 s8, s8, s9
    s_cselect_b32 s11, 0xffff0000, -1
    s_cselect_b32 s12, 9, 6
    s_cselect_b64 s[14:15], -1, 0
    s_lshl_b32 s9, 4, s12
    v_lshlrev_b32 v193, s12, v3
    v_lshl_add_u32 v193, v2, 2, v193""")
    for k in (9, 10, 11):
        arrive(k)
        if HPOS == k - 9:
            h1()
            if not PFB: late_pf()
    st.mark("lq3")
    if PFB == 2: late_pf()
    if PFB == 1:
        a("s_cmp_gt_u32 s56, 128\ns_cbranch_scc0 L_NOPF2")
        sv = list(seq); late_pf(); seq[:] = sv
        a("L_NOPF2:")
    a(f"""s_cmp_eq_u32 s58, 0
    s_cbranch_scc0 L_H1OK
    s_waitcnt vmcnt({younger('h')})
    s_mov_b64 exec, 0xffff
    L_H1:
    v_and_b32 v1, 0xffff, v205
    v_cmp_ne_u32 vcc, 16, v1
    s_cbranch_vccnz L_H1RE
    v_cmp_ne_u32 vcc, 16, v205
    v_mov_b32 v1, vcc_lo
    s_mov_b64 exec, 1
    ds_write_b32 v254, v1 offset:{4*K_MODE}
    ds_add_u32 v254, v207 offset:{4*K_H1}
    s_mov_b64 exec, -1
    L_H1OK:
    s_setprio {LPRIO}""")
    if RPOS == 0: reducer()
    a("""s_cmp_gt_u32 s56, 128
    s_cbranch_scc1 L_NOT""")
    lds_wait(a, K_H1, "L_H1W", LSLP)
    st.mark("lh1")
    for j in range(4):
        for r in range(4): a(f"buffer_load_dword v{OP+j*4+r}, v248, {WS}, s20 offen offset:{j*1024+r*256} {TFL}")
    a(f"s_add_u32 s23, s20, {WP_OFF}")
    for j in range(4): a(f"buffer_load_dwordx4 {q(WPK+4*j)}, v7, {WS}, s23 offen offset:{j*1024} {TFL}")
    npf = 0
    if PFB == 1: n0 = len(seq); late_pf(); npf = len(seq) - n0
    if B2POS == 1: b2_consts()
    a("L_NOT:")
    if RPOS == 1: reducer()
    def b3blk():
        a(f"""s_setprio 0
        s_lshl_b32 s61, s58, 19
        s_add_u32 s61, s61, s53
        s_add_u32 s68, s61, 0x40000
        s_add_u32 s63, s53, {128*16384}
        v_lshrrev_b32 v249, 2, v0
        v_lshlrev_b32 v249, 14, v249
        v_and_b32 v250, 3, v0
        v_lshl_add_u32 v249, v250, 4, v249
        v_add_u32 v250, s62, v7
        v_add_u32 v250, {EB}, v250""")
        b3_consts()
        a("""s_lshl_b32 s65, s67, 11
        s_add_u32 s65, s65, 1024
        s_add_u32 s66, s65, 0x80000""")
        st.mark("lb3c")
        a(f"v_add_u32 v10, {EB}, v10")
    if B2POS == 0: b3blk()
    a("s_cmp_gt_u32 s56, 128")
    if W67:
        a("s_cbranch_scc0 L_W67\ns_waitcnt vmcnt(0)\nL_W67:\ns_waitcnt vmcnt(20)")
        lds_signal(a, K_W67)
    a(f"s_cbranch_scc1 L_NOB2\ns_setprio {LPRIO}")
    def exchange(vw, vr, k, lbl):
        for j in range(4):
            for i in range(4): a(f"v_cvt_pk_bf16_f32 v{PK+4*i+j}, v{AC+j*8+i}, v{AC+j*8+4+i}")
        if k == K_E2: lds_wait(a, K_G0, "L_XW")
        for i in range(4):
            if k == K_E1 and i == 3: a("s_mov_b32 exec_hi, s16")
            a(f"ds_write_b128 {vw}, {q(PK+4*i)} offset:{i*1024}")
        lds_signal(a, k)
        lds_wait(a, k, lbl)
        for j in range(4):
            if k == K_E1 and j == 3:
                for r in range(4): a(f"v_mov_b32 v{OP+12+r}, v{PK+12+r}")
                a("s_mov_b32 exec_hi, s16")
            a(f"ds_read_b128 {q(OP+4*j)}, {vr} offset:{j*1024}")
        a("s_mov_b32 exec_hi, -1")
    def stage_w(consts):
        for j in range(4):
            a(f"s_waitcnt lgkmcnt({3-j})")
            for c in range(2): a(f"{MF} {q(AC+(j*2+c)*4)}, {q(consts(j)+4*c)}, {q(OP+4*j)}, 0")
    for j in range(4):
        a(f"s_waitcnt vmcnt({16-4*j+npf})")
        for c in range(2): a(f"{MF} {q(AC+(j*2+c)*4)}, {q(CA+8*j+4*c)}, {q(OP+4*j)}, 0")
    st.mark("lt")
    exchange("v251", "v252", K_E1, "L_E1")
    st.mark("b2x1")
    stage_w(lambda j: CB)
    a(f"s_waitcnt vmcnt({npf})\nL_WPOK:")
    for j in range(4):
        xr = AC + j*8; xi = xr + 4; t = T0 + (j & 1)*8; wr = WRI + (j & 1)*8; wi = wr + 4
        for i in range(4): a(f"v_lshlrev_b32 v{wr+i}, 16, v{WPK+4*j+i}\nv_and_b32 v{wi+i}, 0xffff0000, v{WPK+4*j+i}")
        for h in (0, 2):
            a(f"v_pk_mul_f32 {d(t+h)}, {d(xr+h)}, {d(wr+h)}")
            a(f"v_pk_mul_f32 {d(t+4+h)}, {d(xi+h)}, {d(wr+h)}")
        for h in (0, 2):
            a(f"v_pk_fma_f32 {d(t+h)}, {d(xi+h)}, {d(wi+h)}, {d(t+h)} neg_lo:[1,0,0] neg_hi:[1,0,0]")
            a(f"v_pk_fma_f32 {d(t+4+h)}, {d(xr+h)}, {d(wi+h)}, {d(t+4+h)}")
        for i in range(4): a(f"v_cvt_pk_bf16_f32 v{OP+4*j+i}, v{t+i}, -v{t+4+i}")
        if j > 0:
            for c in range(2): a(f"{MF} {q(AC+((j-1)*2+c)*4)}, {q(CA+8*(j-1)+4*c)}, {q(OP+4*(j-1))}, 0")
    for c in range(2): a(f"{MF} {q(AC+(6+c)*4)}, {q(CA+24+4*c)}, {q(OP+12)}, 0")
    exchange("v200", "v201", K_E2, "L_E2")
    st.mark("b2x2")
    stage_w(lambda j: CB)
    for j in range(4):
        for i in range(4):
            a(f"v_cvt_pk_bf16_f32 v{PK+j*4+i}, v{AC+j*8+i}, -v{AC+j*8+4+i}")
            a(f"v_or_b32 v{PK+j*4+i}, 1, v{PK+j*4+i}")
            a(f"buffer_store_dword v{PK+j*4+i}, v248, {WS}, s20 offen offset:{j*1024+i*256} sc1")
    st.mark("lb2")
    a("L_NOB2:")
    if B2POS == 1: b3blk()
    a(f"s_setprio {UPRIO}")
    if UGATE == 1: lds_wait(a, K_OI, "L_H2G", 1)
    if UGATE == 2: lds_wait(a, K_CO, "L_H2G", 1)
    st.mark("lul")
    a(f"""L_UL:
    buffer_load_dwordx4 {q(AC1)}, v249, {WS}, s61 offen sc1
    buffer_load_dwordx4 {q(AC1+4)}, v249, {WS}, s68 offen sc1
    buffer_load_dword v9, v15, {WS}, s63 offen sc1
    buffer_load_dword v8, v15, {WS}, s63 offen offset:32 sc1
    s_waitcnt vmcnt(3)
    ds_write_b128 v250, {q(AC1)}
    v_and_b32 v1, v{AC1}, v{AC1+1}
    v_and_b32 v12, v{AC1+2}, v{AC1+3}
    s_waitcnt vmcnt(2)
    ds_write_b128 v250, {q(AC1+4)} offset:1024
    v_and_b32 v1, v1, v{AC1+4}
    v_and_b32 v12, v12, v{AC1+5}
    v_and_b32 v1, v1, v{AC1+6}
    v_and_b32 v12, v12, v{AC1+7}
    s_waitcnt vmcnt(0)
    v_and_b32 v1, v1, v8
    v_and_b32 v12, v12, v9
    v_and_b32 v1, v1, v12
    v_and_b32 v1, 1, v1
    v_cmp_eq_u32 vcc, 0, v1
    s_cbranch_vccnz L_URE""")
    st.mark("lua")
    lds_signal(a, K_U); lds_wait(a, K_U, "L_UW")
    for v in range(4):
        for t in range(2): a(f"ds_read_b128 {q(DAT+(v*2+t)*4)}, v10 offset:{t*4096+v*256}")
    a(f"""s_waitcnt vmcnt(0)
    v_lshlrev_b32 v8, 16, v8
    v_and_b32 v12, 0xffff0000, v9
    v_lshlrev_b32 v9, 16, v9
    v_mul_f32 v8, {fhex(2.0**-20)}, v8
    v_mul_f32 v9, v9, v13
    v_fma_f32 v9, -v12, v14, v9
    v_add_f32 v{INI}, v9, v8
    v_sub_f32 v{INI+1}, v9, v8
    v_add_f32 v{INI+2}, v9, v8
    v_sub_f32 v{INI+3}, v9, v8
    v_sub_f32 v{INI+4}, v8, v9
    v_sub_f32 v{INI+5}, -v9, v8
    v_sub_f32 v{INI+6}, v8, v9
    v_sub_f32 v{INI+7}, -v9, v8""")
    for v in range(4):
        for t in range(2):
            b = DAT + (v*2+t)*4
            a(f"s_waitcnt lgkmcnt({7-(v*2+t)})")
            cs = C1 + (16 if t else 8*(v >> 1))
            for c in range(2):
                acc = AC1 + (v*2+c)*4
                a(f"{MF} {q(acc)}, {q(b)}, {q(cs+4*c)}, {q(acc) if t else 0}")
    st.mark("luok")
    for v in range(4):
        for i in range(4): a(f"v_cvt_pk_bf16_f32 v{OP2+i*4+v}, v{AC1+v*8+i}, v{AC1+v*8+4+i}")
    for i in range(4):
        for c in range(2): a(f"{MF} {q(AC2+(i*2+c)*4)}, {q(OP2+i*4)}, {q(C2+4*c)}, 0")
    for i in range(4):
        xr = AC2 + i*8; xi = xr + 4; t0 = TMP + (i & 1)*8
        for ph in range(2):
            sel = "op_sel:[0,1] op_sel_hi:[1,1]" if ph else "op_sel_hi:[1,0]"
            a(f"v_pk_mul_f32 {d(t0+2*ph)}, {d(xr+2*ph)}, {d(TWC+2*i)} {sel}")
            a(f"v_pk_mul_f32 {d(t0+4+2*ph)}, {d(xi+2*ph)}, {d(TWC+2*i)} {sel}")
        for ph in range(2):
            sel = "op_sel:[0,1,0] op_sel_hi:[1,1,1]" if ph else "op_sel_hi:[1,0,1]"
            a(f"v_pk_fma_f32 {d(t0+2*ph)}, {d(xi+2*ph)}, {d(TWS+2*i)}, {d(t0+2*ph)} {sel} neg_lo:[1,0,0] neg_hi:[1,0,0]")
            a(f"v_pk_fma_f32 {d(t0+4+2*ph)}, {d(xr+2*ph)}, {d(TWS+2*i)}, {d(t0+4+2*ph)} {sel}")
        for ph in range(2):
            for rho in range(2):
                a(f"v_cvt_pk_bf16_f32 v{OP3+(rho*2+(i>>1))*4+(i&1)*2+ph}, v{t0+2*ph+rho}, v{t0+4+2*ph+rho}")
    for kap in range(2):
        for rho in range(2):
            for th in range(2):
                acc = AC3 + (rho*2+th)*4
                a(f"{MF} {q(acc)}, {q(OP3+(rho*2+kap)*4)}, {q(C3+kap*8+th*4)}, {q(acc) if kap else q(INI+4*rho)}")
    for rho in range(2):
        for th in range(2):
            acc = AC3 + (rho*2+th)*4; o = OUT + (rho*2+th)*2
            a(f"v_cvt_pk_bf16_f32 v{o}, v{acc}, v{acc+1}\nv_cvt_pk_bf16_f32 v{o+1}, v{acc+2}, v{acc+3}")
            a(f"buffer_store_dwordx2 {d(o)}, v11, s[40:43], s{65+rho} offen offset:{th*512} {YFL.replace('_', ' ')}")
    st.mark("lend")
    st.dump()
    a("s_endpgm")

def c_main(a, st):
    C1, C2, TWC, TWS, C3A, C3B, DAT, AC1, OP2, AC2 = 16, 48, 64, 80, 96, 104, 112, 144, 160, 168
    OP3, TMP, AC3, ACE, OUT, MSK = 112, 128, 144, 160, 200, 228
    a(f"C_MAIN:\ns_setprio {CPRIO}")
    common_setup(a, st, -1)
    a(f"""s_lshl_b32 s60, s3, 8
    s_mul_i32 s61, s2, s3
    s_add_u32 s59, s61, 512
    s_cmp_eq_u32 s3, 0
    s_cselect_b32 s62, 1024, s60
    s_cselect_b32 s59, 0, s59
    s_cselect_b32 s58, s2, 0
    s_cselect_b32 s65, 0, 0xbe800000
    s_cselect_b64 s[66:67], -1, 0
    v_and_b32 v14, 1, v0
    v_cmp_eq_u32 vcc, 1, v14
    v_mov_b32 v4, 0xffff
    v_mov_b32 v5, 0xffff0000
    v_cndmask_b32 v14, v4, v5, vcc""")
    for r in range(4): a(f"v_cmp_eq_u32 vcc, {r}, v15\nv_cndmask_b32 v{MSK+r}, 0, v14, vcc")
    a(f"""v_lshrrev_b32 v10, 5, v0
    v_mov_b32 v11, s61
    v_mov_b32 v12, s59
    v_mad_u32_u24 v11, v10, s60, v11
    v_mad_u32_u24 v12, v10, s62, v12
    v_cvt_f32_u32 v11, v11
    v_cvt_f32_u32 v12, v12
    v_cvt_f32_u32 v13, s60
    v_cvt_f32_u32 v14, s62
    v_mul_f32 v11, {fhex(1/2048)}, v11
    v_mul_f32 v12, {fhex(1/2048)}, v12
    v_mul_f32 v13, {fhex(2/2048)}, v13
    v_mul_f32 v14, {fhex(2/2048)}, v14""")
    for t in range(4):
        for c in range(2):
            b = C1 + (t*2 + c)*4
            a(f"v_cos_f32 v{b+3}, v{11+c}")
            if t < 3: a(f"v_add_f32 v{11+c}, v{11+c}, v{13+c}")
            a(f"v_cvt_pk_bf16_f32 v{b+3}, v{b+3}, v{b+3}")
            for r in range(4): a(f"v_and_b32 v{b+r}, v{b+3}, v{MSK+r}")
    a(f"v_mul_f32 v10, {fhex(1/32)}, v8\nv_mul_f32 v11, 4.0, v9\nv_mul_f32 v12, v11, v10")
    for i in range(4):
        a(f"v_cos_f32 v{TMP+i}, v12\nv_sin_f32 v{TMP+4+i}, v12")
        if i < 3: a("v_add_f32 v12, v12, v10")
    a("v_lshlrev_b32 v13, 31, v0\nv_lshrrev_b32 v14, 16, v13\nv_or_b32 v13, v13, v14")
    a(f"""v_cvt_pk_bf16_f32 v{C2}, v{TMP}, v{TMP+1}
    v_cvt_pk_bf16_f32 v{C2+1}, v{TMP+2}, v{TMP+3}
    v_cvt_pk_bf16_f32 v{C2+4}, -v{TMP+4}, -v{TMP+5}
    v_cvt_pk_bf16_f32 v{C2+5}, -v{TMP+6}, -v{TMP+7}
    s_brev_b32 s68, 1""")
    for c in range(2):
        b = C2 + 4*c
        a(f"v_xor_b32 v{b+2}, v{b}, v13\nv_xor_b32 v{b+3}, v{b+1}, v13")
        for r in range(4): a(f"v_xor_b32 v{b+8+r}, s68, v{b+r}")
    a("v_add_f32 v10, v10, v10\nv_mul_f32 v12, v11, v10")
    a("""v_cmp_gt_u32 vcc, 8, v2
    s_andn2_b64 s[22:23], s[66:67], vcc
    s_and_b64 s[66:67], s[66:67], vcc
    v_cndmask_b32 v13, -1, 0, s[22:23]
    v_cndmask_b32 v14, -1, 0, s[66:67]""")
    for i in range(4):
        a(f"""v_cos_f32 v{TMP}, v12
        v_sin_f32 v{TMP+1}, v12
        v_add_f32 v15, s65, v12
        v_cos_f32 v{TMP+2}, v15
        v_sin_f32 v{TMP+3}, v15""")
        if i < 3: a("v_add_f32 v12, v12, v10")
        a(f"""v_cvt_pk_bf16_f32 v{C3A+i}, v{TMP}, v{TMP+1}
        v_cvt_pk_bf16_f32 v{C3A+4+i}, -v{TMP+1}, v{TMP}
        v_cvt_pk_bf16_f32 v{C3B+i}, v{TMP+2}, v{TMP+3}
        v_cvt_pk_bf16_f32 v{C3B+4+i}, -v{TMP+3}, v{TMP+2}""")
    for r in range(8): a(f"v_and_b32 v{C3A+r}, v{C3A+r}, v13\nv_and_b32 v{C3B+r}, v{C3B+r}, v14")
    a(f"""s_cmp_lt_u32 s52, {nclr()}
    s_cbranch_scc0 C_NOGO
    s_and_b32 s22, s52, 1
    s_lshl_b32 s22, s22, 7
    s_mov_b64 exec, 1
    s_waitcnt vmcnt(2)
    buffer_atomic_add v255, v7, s[44:47], s22 offen sc1
    s_mov_b64 exec, -1
    s_waitcnt vmcnt(1)
    s_mov_b32 s52, 0
    C_NOGO:""")
    a(f"v_cvt_f32_u32 v14, s58\nv_mul_f32 v14, {fhex(1/512)}, v14")
    for tau in range(2):
        a(f"v_mul_f32 v10, {fhex(1/512)}, v8")
        if tau: a(f"v_add_f32 v10, {fhex(16/512)}, v10")
        a("v_mul_f32 v12, v11, v10")
        for i in range(4):
            k0 = tau*4 + i; k1 = 8 + k0
            a(f"""v_cos_f32 v{TWC+k0}, v12
            v_sin_f32 v{TWS+k0}, v12
            v_add_f32 v15, v12, v14
            v_cos_f32 v{TWC+k1}, v15
            v_sin_f32 v{TWS+k1}, v15""")
            if i < 3: a("v_add_f32 v12, v12, v10")
    a(f"""v_lshrrev_b32 v14, 5, v0
    v_lshlrev_b32 v10, 10, v14
    v_lshl_add_u32 v10, v2, 5, v10
    v_and_b32 v12, 16, v0
    v_add_u32 v10, v10, v12
    v_add_u32 v10, {BXB}, v10""")
    a(f"""v_lshlrev_b32 v11, 16, v3
    v_lshl_add_u32 v11, v2, 2, v11
    v_and_b32 v12, 6, v2
    v_xor_b32 v12, v12, v3
    v_lshlrev_b32 v12, 4, v12
    v_lshl_add_u32 v4, v2, 7, v12
    v_add_u32 v4, {XB}, v4
    v_xor_b32 v5, 64, v4
    v_bfe_u32 v12, v0, 2, 3
    v_bfe_u32 v13, v0, 1, 1
    v_and_b32 v15, 6, v12
    v_xor_b32 v13, v13, v15
    v_lshlrev_b32 v13, 4, v13
    v_lshl_add_u32 v13, v12, 7, v13
    v_and_b32 v15, 1, v0
    v_lshl_add_u32 v13, v15, 3, v13
    s_lshl_b32 s22, s3, 5
    v_xor_b32 v13, s22, v13
    v_lshl_add_u32 v6, v14, 12, v13
    v_lshl_add_u32 v8, v14, 11, v13
    v_lshlrev_b32 v9, 8, v14
    v_lshl_add_u32 v9, v2, 4, v9
    s_and_b32 s60, s2, 15
    s_lshl_b32 s60, s60, 4
    s_bfe_u32 s61, s2, 0x20004
    s_lshl2_add_u32 s60, s61, s60
    s_lshr_b32 s61, s2, 6
    s_add_u32 s60, s60, s61
    s_lshl_b32 s60, s60, 6
    s_lshl_b32 s61, s3, 19
    s_add_u32 s61, s61, s60
    s_add_u32 s60, s60, {128*16384}
    s_lshl2_add_u32 s53, s51, s3
    s_lshl_b32 s58, s53, 14
    s_add_u32 s58, s58, {KVP_OFF}
    s_lshl_b32 s59, s53, 11
    s_add_u32 s59, s59, {ZP_OFF}
    s_lshl_b32 s63, s50, 9
    s_add_u32 s63, s63, s58
    s_lshl_b32 s64, s50, 6
    s_add_u32 s64, s64, s59
    s_getreg_b32 s23, hwreg(HW_REG_XCC_ID)
    s_and_b32 s23, s23, 15
    s_cmp_eq_u32 s23, {'s48' if not FORCESLOW else '15'}
    s_cselect_b32 s23, 1, 0x10001
    v_mov_b32 v240, s23
    s_cmp_eq_u32 s3, 0
    s_cselect_b32 s18, {SIG1-1}, -1
    v_lshlrev_b32 v241, 2, v2
    v_lshl_add_u32 v13, v14, 5, v241
    s_mov_b32 s22, 0x3f803f80
    v_mov_b32 v232, s22
    v_mov_b32 v233, s22
    v_mov_b32 v234, s22
    v_mov_b32 v235, s22
    s_mov_b32 s66, {fhex(1.4426950408889634)}
    s_mov_b32 s67, s66
    s_mov_b32 s65, {fhex(1e-6)}
    s_mov_b64 s[36:37], s[8:9]
    s_mov_b32 s38, 0x80000
    s_mov_b32 s39, s31
    s_lshl_b32 s21, s3, 14
    s_lshl_b32 s22, s55, 7
    s_add_u32 s21, s21, s22
    v_lshrrev_b32 v242, 3, v0
    v_and_b32 v243, 7, v0
    v_and_b32 v230, 6, v242
    v_xor_b32 v243, v243, v230
    v_lshlrev_b32 v243, 4, v243
    v_and_b32 v230, 4, v242
    v_add_u32 v242, v242, v230
    v_lshl_add_u32 v242, v242, 10, v243
    v_lshlrev_b32 v243, 4, v3
    v_lshrrev_b32 v231, 2, v2
    v_lshl_add_u32 v231, v14, 2, v231
    v_lshlrev_b32 v231, 7, v231
    v_and_b32 v230, 3, v2
    v_lshl_add_u32 v231, v230, 4, v231
    v_and_b32 v230, 1, v3
    v_lshl_add_u32 v231, v230, 3, v231""")
    st.mark("cconst")
    a("s_cmp_eq_u32 s52, 0\ns_cbranch_scc1 C_BXOK\ns_waitcnt vmcnt(0)\nC_BXOK:")
    lds_signal(a, K_BX)
    lds_wait(a, K_BX, "C_BXW")
    st.mark("cbx")
    for u in range(2):
        for t in range(4): a(f"ds_read_b128 {q(DAT+(u*4+t)*4)}, v10 offset:{t*2048+u*512}")
    for u in range(2):
        for t in range(4):
            a(f"s_waitcnt lgkmcnt({7-(u*4+t)})")
            for c in range(2):
                acc = AC1 + (u*2+c)*4
                a(f"{MF} {q(acc)}, {q(DAT+(u*4+t)*4)}, {q(C1+(t*2+c)*4)}, {q(acc) if t else 0}")
    for u in range(2):
        for rho in range(2):
            s = AC1 + (u*2+rho)*4
            a(f"v_cvt_pk_bf16_f32 v{OP2+rho*4+u*2}, v{s}, v{s+1}\nv_cvt_pk_bf16_f32 v{OP2+rho*4+u*2+1}, v{s+2}, v{s+3}")
    for rho in range(2):
        for tau in range(2):
            for c in range(2): a(f"{MF} {q(AC2+((rho*2+tau)*2+c)*4)}, {q(OP2+rho*4)}, {q(C2+(tau*2+c)*4)}, 0")
    def st3(rho, tau):
        for c in range(2):
            acc = AC3 + (tau*2+c)*4
            a(f"{MF} {q(acc)}, {q((C3B if rho else C3A)+4*c)}, {q(OP3+(rho*2+tau)*4)}, {q(acc) if rho else 0}")
        if tau == 0:
            for c in range(2):
                acc = ACE + 4*c
                a(f"{MF} {q(acc)}, {q((C3A if rho else C3B)+4*c)}, {q(OP3+(rho*2)*4)}, {q(acc) if rho else 0}")
    prev = None
    for rho in range(2):
        for tau in range(2):
            xr = AC2 + ((rho*2+tau)*2)*4; xi = xr + 4; k = rho*8 + tau*4
            t0 = TMP + ((rho*2+tau) & 1)*8
            for h in (0, 2):
                a(f"v_pk_mul_f32 {d(t0+h)}, {d(xr+h)}, {d(TWC+k+h)}")
                a(f"v_pk_mul_f32 {d(t0+4+h)}, {d(xi+h)}, {d(TWC+k+h)}")
            if prev: st3(*prev)
            for h in (0, 2):
                a(f"v_pk_fma_f32 {d(t0+h)}, {d(xi+h)}, {d(TWS+k+h)}, {d(t0+h)}")
                a(f"v_pk_fma_f32 {d(t0+4+h)}, {d(xr+h)}, {d(TWS+k+h)}, {d(t0+4+h)} neg_lo:[1,0,0] neg_hi:[1,0,0]")
            for i in range(4): a(f"v_cvt_pk_bf16_f32 v{OP3+(rho*2+tau)*4+i}, v{t0+i}, v{t0+4+i}")
            prev = (rho, tau)
    st3(*prev)
    st.mark("cb1")
    for tau in range(2):
        for i in range(4): a(f"v_cvt_pk_bf16_f32 v{OUT+tau*4+i}, v{AC3+tau*8+i}, v{AC3+tau*8+4+i}")
    a(f"v_cvt_pk_bf16_f32 v14, v{ACE}, v{ACE+4}")
    for k in range(8): a(f"v_and_b32 v{OUT+k}, -2, v{OUT+k}")
    a("v_and_b32 v14, -2, v14")
    AK, AV, AQ = 144, 160, 112
    for r in range(0, 32, 2): a(f"v_pk_mul_f32 {d(AK+r)}, {d(232)}, 0")
    if TPOS == 0: a("s_branch C_TST\nC_TRET:")
    st.mark("cst")
    SET = [0]
    XF = lambda ks, R: 16 + SET[0]*48 + (ks*4 + R)*4
    WF = lambda ks, p: 48 + SET[0]*48 + (ks*2 + p)*4
    def reads(ks):
        L = []
        o = SET[0]
        def w(p):
            for eta in range(2): L.append(f"ds_read_b64_tr_b16 {d(WF(ks,p)+2*eta)}, v6 offset:{o*16384 + (4*ks+eta)*2048 + p*1024}")
        w(0)
        for R in range(4): L.append(f"ds_read_b128 {q(XF(ks,R))}, v{4+ks} offset:{o*8192 + R*2048}")
        w(1)
        return L
    def mf(ks, p): return [f"{MF} {q(AK+(p*4+R)*4)}, {q(XF(ks,R))}, {q(WF(ks,p))}, {q(AK+(p*4+R)*4)}" for R in range(4)]
    def chunk(newset, extra=""):
        SET[0] = 1 - newset; M = mf(0, 0) + mf(0, 1) + mf(1, 0) + mf(1, 1)
        SET[0] = newset; Rd = reads(0) + reads(1)
        k = 0
        for i, m in enumerate(M):
            a(m)
            for _ in range(RPM):
                if Rd:
                    if k == 14: a("s_waitcnt lgkmcnt(8)")
                    a(Rd.pop(0)); k += 1
            if i == 11: a(extra)
        a("s_waitcnt lgkmcnt(0)")
    adv = "v_add_u32 v4, 0x4000, v4\nv_add_u32 v5, 0x4000, v5\nv_xor_b32 v6, 0x8000, v6"
    a("s_mov_b32 s68, 1\ns_barrier")
    st.mark("cf0")
    SET[0] = 0
    for k, r in enumerate(reads(0) + reads(1)):
        if k == 14: a("s_waitcnt lgkmcnt(8)")
        a(r)
    a("s_waitcnt lgkmcnt(0)\nC_LOOP:\ns_barrier")
    assert TPOS in (0, 1) and SIG1 in (4, 6)
    chunk(1, adv)
    if TPOS == 1: a("s_cmp_eq_u32 s68, 1\ns_cbranch_scc1 C_TST\nC_TRET:")
    a(f"""s_cmp_lg_u32 s68, {SIG1-1}
    s_cbranch_scc1 C_NOW
    s_waitcnt vmcnt(0)
    C_NOW:
    s_barrier
    s_cmp_eq_u32 s68, s18
    s_cbranch_scc1 C_SIG
    C_MID:""")
    chunk(0, "s_add_u32 s68, s68, 2\ns_cmp_lt_u32 s68, 7")
    a("s_cbranch_scc1 C_LOOP")
    SET[0] = 0
    for m in mf(0, 0) + mf(1, 0): a(m)
    V6 = mf(0, 1) + mf(1, 1)
    SET[0] = 1
    a(f"""s_cmp_eq_u32 s3, 0
    s_cbranch_scc0 C_NOTK
    s_waitcnt vmcnt(0)
    v_readfirstlane_b32 s22, v240
    s_and_b32 s22, s22, 0xffff
    s_and_b32 s23, s2, 15
    s_lshl4_add_u32 s22, s22, s23
    {"" if DYN else "s_mov_b32 s22, s2"}
    v_mov_b32 v240, s22
    ds_write_b32 v254, v240 offset:{4*K_TASK}
    C_NOTK:
    s_barrier""")
    st.mark("cl1")
    R0, R1 = reads(0), reads(1)
    RR = R0[:6] + R1[:6]
    for i, m in enumerate(V6):
        for r in RR[2*i:2*i+2]: a(r)
        a(m)
    M = mf(0, 0)
    for i in range(4): a(f"s_waitcnt lgkmcnt({9-i})"); a(M[i])
    for r in R0[6:] + R1[6:]: a(r)
    M = mf(1, 0)
    for i in range(4): a(f"s_waitcnt lgkmcnt({7-i})"); a(M[i])
    a("s_waitcnt lgkmcnt(0)")
    lds_signal(a, K_C7)
    KP, VP, KV, ZZ, KO = 208, 216, 236, 244, 248
    MV = mf(0, 1) + mf(1, 1)
    for m in MV[:2]: a(m)
    MV = MV[2:]
    def phi_list(src, dst, tmp):
        L = []
        for g4 in range(0, 16, 4):
            L += [f"v_pk_mul_f32 {d(tmp+g4+h)}, {d(src+g4+h)}, s[66:67]" for h in (0, 2)]
        for h in range(16):
            L += [f"v_exp_f32 v{tmp+h}, v{tmp+h} clamp", f"v_max_f32 v{src+h}, s65, v{src+h}"]
        for h in range(0, 16, 2): L += [f"v_pk_add_f32 {d(src+h)}, {d(src+h)}, {d(tmp+h)}"]
        for h in range(8): L += [f"v_cvt_pk_bf16_f32 v{dst+h}, v{src+2*h}, v{src+2*h+1}"]
        return L
    P = phi_list(AK, KP, 128)
    V = [f"v_cvt_pk_bf16_f32 v{VP+h}, v{AV+2*h}, v{AV+2*h+1}" for h in range(8)]
    P = P[:40] + V + P[40:]
    for i, x in enumerate(P):
        a(x)
        if i % 2 == 1 and MV: a(MV.pop(0))
        if i == len(P) - 3: a(f"{MF} {q(KV)}, {q(KP)}, {q(VP)}, 0")
    a(f"""{MF} {q(ZZ)}, v[232:235], {q(KP)}, 0
    {MF} {q(KV)}, {q(KP+4)}, {q(VP+4)}, {q(KV)}
    {MF} {q(ZZ)}, v[232:235], {q(KP+4)}, {q(ZZ)}
    v_subrev_u32 v4, 0xc000, v4
    v_subrev_u32 v5, 0xc000, v5
    v_mov_b32 v11, v231
    s_lshl_b32 s58, s53, 11
    s_add_u32 s58, s58, {KVF_OFF}
    v_cvt_pk_bf16_f32 v{KO}, v{KV}, v{KV+1}
    v_cvt_pk_bf16_f32 v{KO+1}, v{KV+2}, v{KV+3}
    v_min_u32 v{KO+2}, -2, v{KO}
    v_min_u32 v{KO+3}, -2, v{KO+1}
    v_min_u32 v{KO}, -2, v{KO}
    v_min_u32 v{KO+1}, -2, v{KO+1}
    v_min_u32 v{ZZ}, -2, v{ZZ}
    v_permlane16_swap_b32 v{KO+1}, v{KO+3}
    v_permlane16_swap_b32 v{KO}, v{KO+2}
    s_mov_b32 exec_lo, 0xffff
    s_mov_b32 exec_hi, 0xffff
    buffer_store_dwordx4 {q(KO)}, v9, {WS}, s63 offen sc1
    s_mov_b32 exec_hi, 0
    buffer_store_dword v{ZZ}, v241, {WS}, s64 offen sc1
    s_mov_b64 exec, -1""")
    st.mark("t0")
    class LQ:
        def __init__(self): self.o = []; self.seen = set()
        def issue(self, txt, tag):
            if len(self.o) >= 15: self.drain(10)
            a(txt); self.o.append(tag); self.seen.add(tag)
        def drain(self, n):
            if len(self.o) > n: a(f"s_waitcnt lgkmcnt({n})"); self.o = self.o[len(self.o)-n:] if n else []
        def need(self, *tags):
            idx = [i for i, t in enumerate(self.o) if t in tags]
            if idx: self.drain(len(self.o) - 1 - max(idx))
    lq = LQ()
    XS = [16 + 16*k for k in range(6)] + [144 + 16*k for k in range(4)]
    xs = lambda s_: XS[s_ % NPRE]
    wq = lambda s_: (128 if (s_ >> 2) % 2 == 0 else 208) + 4*(s_ & 3)
    def xr(s_): return [(f"ds_read_b128 {q(xs(s_)+4*R)}, v{4+(s_&1)} offset:{(s_>>1)*8192 + R*2048}", f"x{s_}") for R in range(4)]
    def wr_(g_): return [(f"ds_read_b64_tr_b16 {d(wq(s_)+2*eta)}, v8 offset:{g_*16384 + ((s_>>1)&1)*8192 + (4*(s_&1)+eta)*1024}", f"w{s_}") for s_ in range(4*g_, 4*g_+4) for eta in range(2)]
    lq.issue(f"ds_read_b32 v253, v254 offset:{4*K_Q}", "c")
    for s_ in range(2):
        for t in xr(s_): lq.issue(*t)
    lq.need("c")
    a("v_cmp_ne_u32 vcc, 4, v253\ns_cbranch_vccnz C_QS0\nC_QR0:")
    st.mark("cq0")
    for t in wr_(0): lq.issue(*t)
    pend = []
    for s_ in range(2, NPRE): pend += xr(s_)
    for g_ in range(4):
        if g_ < 3: lq.issue(f"ds_read_b32 v253, v254 offset:{4*(K_Q+1+g_)}", "c")
        for s_ in range(4*g_, 4*g_+4):
            if s_ & 3 == 1 and g_ < 3:
                lq.need("c")
                a(f"v_cmp_ne_u32 vcc, 4, v253\ns_cbranch_vccnz C_QS{g_+1}\nC_QR{g_+1}:")
                st.mark(f"cq{g_+1}")
                pend += wr_(g_+1)
            while any(t[1] in (f"x{s_}", f"w{s_}") for t in pend): lq.issue(*pend.pop(0))
            lq.need(f"x{s_}", f"w{s_}")
            if s_ == 4: lq.issue(f"s_mov_b64 exec, 1\nds_add_u32 v254, v255 offset:{4*K_G0}\ns_mov_b64 exec, -1", "a")
            if s_ >= 1 and s_ - 1 + NPRE < 16: pend += xr(s_ - 1 + NPRE)
            for R in range(4):
                a(f"{MF} {q(AQ+R*4)}, {q(wq(s_))}, {q(xs(s_)+4*R)}, {q(AQ+R*4) if s_ else 0}")
                for _ in range(2):
                    if pend: lq.issue(*pend.pop(0))
    assert not lq.o and not pend
    st.mark("cp2")
    QP, PP, ZL = 96, 16, 80
    def pl(p0, p1, fl):
        for p in range(p0, p1):
            if p % 2 == 0: a(f"s_add_u32 s22, s60, {p*1024}\ns_and_b32 s22, s22, 0x3fff\ns_add_u32 s22, s22, s58")
            a(f"buffer_load_dwordx4 {q(PP+4*p)}, v7, {WS}, s22 offen offset:{(p&1)*1024} {fl}")
    lds_signal(a, K_X)
    for x in phi_list(AQ, QP, 128): a(x)
    lds_wait(a, K_X, "C_XW")
    for pos in (range(6) if W67 else (6, 7, 0, 1, 2, 3, 4, 5)):
        a(f"""s_add_u32 s5, s57, {(pos+2) & 7}
        s_and_b32 s5, s5, 7
        s_lshl_b32 s5, s5, 16
        s_add_u32 m0, s69, {XB + 16384 + pos*8192}
        s_add_u32 s5, s5, s21
        buffer_load_dwordx4 v242, s[36:39], s5 offen lds
        s_add_u32 s5, s5, 3072
        buffer_load_dwordx4 v242, s[36:39], s5 offen offset:1024 lds""")
    st.mark("cpi")
    DEN, NUM = 112, 128
    a(f"v_and_b32 v12, 1, v3\nv_lshl_add_u32 v12, v12, 14, v9")
    FS = 2 if MAP == 48 else 7
    FO = F0_OFF + (OF_OFF if MAP == 48 else OF2_OFF)
    a(f"""s_lshl_b32 s61, s50, 16
    s_lshl_b32 s62, s53, 9
    s_add_u32 s61, s61, s62
    s_add_u32 s61, s61, {O_OFF}
    s_add_u32 s62, s61, 0x8000
    s_lshl_b32 s6, s54, {5+FS}
    s_add_u32 s6, s6, {FO}
    s_lshl_b32 s7, s50, 5
    s_add_u32 s7, s7, s53
    s_lshl_b32 s7, s7, {FS}
    s_add_u32 s7, s7, {FO}""")
    if MAP == 48: a(f"ds_read_b64 v[238:239], v254 offset:{4*K_MODE}")
    a(f"""C_PF:
    buffer_load_dwordx4 {q(ZL)}, v243, {WS}, s58 offen offset:1024 sc1
    buffer_load_dwordx2 {d(ZL+6)}, v11, {WS}, s58 offen sc1
    s_waitcnt vmcnt(0)
    v_max3_u32 v1, v{ZL}, v{ZL+1}, v{ZL+2}
    v_max3_u32 v14, v{ZL+3}, v{ZL+6}, v{ZL+7}
    v_cvt_pk_bf16_f32 v{ZL+4}, v{ZL}, v{ZL+1}
    v_max_u32 v1, v1, v14
    v_cvt_pk_bf16_f32 v{ZL+5}, v{ZL+2}, v{ZL+3}
    v_cmp_eq_u32 vcc, -1, v1
    s_cbranch_vccnz C_PFRE""")
    st.mark("ckv")
    for R in range(4): a(f"{M16} {q(DEN+4*R)}, {d(ZL+4)}, {d(QP+2*R)}, 0")
    for R in range(4): a(f"{M16} {q(NUM+4*R)}, {d(ZL+6)}, {d(QP+2*R)}, 0")
    lds_signal(a, K_WO)
    if MAP == 48: a("s_waitcnt lgkmcnt(1)\nv_readfirstlane_b32 s75, v238\nv_readfirstlane_b32 s73, v239")
    for R in range(4): a(f"v_add_f32 v{DEN+4*R}, s65, v{DEN+4*R}")
    for R in range(4): a(f"v_rcp_f32 v{DEN+4*R}, v{DEN+4*R}")
    if MAP == 48: a("s_cmp_eq_u32 s73, 4\ns_cbranch_scc0 C_MW\nC_MWR:\ns_nop 2")
    OO = 244
    for pr in range(2):
        for R in (2*pr, 2*pr+1):
            for h in (0, 2): a(f"v_pk_mul_f32 {d(NUM+4*R+h)}, {d(NUM+4*R+h)}, {d(DEN+4*R)} op_sel_hi:[1,0]")
            a(f"v_cvt_pk_bf16_f32 v{OO+2*R}, v{NUM+4*R}, v{NUM+4*R+1}\nv_cvt_pk_bf16_f32 v{OO+2*R+1}, v{NUM+4*R+2}, v{NUM+4*R+3}")
        o = OO + 4*pr
        a(f"v_permlane16_swap_b32 v{o}, v{o+2}\nv_permlane16_swap_b32 v{o+1}, v{o+3}")
        if MAP != 48: a(f"buffer_store_dwordx4 {q(o)}, v12, {WS}, s{61+pr} offen sc1")
    if MAP == 48:
        a(f"""s_cmp_eq_u32 s75, 0
        s_cbranch_scc0 C_OSLOW
        buffer_store_dwordx4 {q(OO)}, v12, {WS}, s61 offen
        buffer_store_dwordx4 {q(OO+4)}, v12, {WS}, s62 offen
        C_OST:""")
    st.mark("co")
    a(f"""s_lshl_b32 s22, s3, 5
    v_xor_b32 v8, s22, v8
    v_add_u32 v8, {XB + 16384}, v8
    v_xor_b32 v9, 32, v8
    v_xor_b32 v10, 64, v8
    v_xor_b32 v11, 96, v8
    v_lshlrev_b32 v13, {FS}, v0
    s_lshl2_add_u32 s58, s54, s3
    s_lshl_b32 s61, s58, 15
    s_lshl_b32 s58, s58, 14
    s_add_u32 s58, s58, {O_OFF}
    s_lshl_b32 s60, s57, 11
    s_add_u32 s60, s60, 4096
    s_lshl_b32 s22, s55, 7
    s_add_u32 s61, s61, s22
    v_lshlrev_b32 v12, 11, v2
    v_and_b32 v14, 1, v3
    v_lshl_add_u32 v12, v14, 5, v12
    v_lshrrev_b32 v14, 1, v3
    v_lshl_add_u32 v12, v14, 4, v12""")
    OF, ACC = 16, 128
    WB = [80, 96, 112, 160, 176, 192, 208, 224, 144]
    wb = lambda p: WB[p % NWO]
    def wreads(p): return [(f"ds_read_b64_tr_b16 {d(wb(p)+4*t+2*eta)}, v{8+t} offset:{p*4096 + eta*1024}", f"o{p}") for t in range(4) for eta in range(2)]
    a("s_cmp_eq_u32 s75, 0\ns_waitcnt vmcnt(0)")
    st.mark("cab")
    if MAP == 48:
        a(f"""s_mov_b64 exec, 1
        s_cbranch_scc0 C_FSLOW
        buffer_store_dword v255, v7, {WS}, s7 offen
        C_FST:
        s_mov_b64 exec, -1""")
    else: a(f"s_mov_b64 exec, 1\nbuffer_store_dword v255, v7, {WS}, s7 offen sc1\ns_mov_b64 exec, -1")
    if UGATE == 2: lds_signal(a, K_CO)
    lds_wait(a, K_WO, "C_WW")
    if W67: lds_wait(a, K_W67, "C_WW2")
    st.mark("cww")
    for p in range(0, 4):
        for t in wreads(p): lq.issue(*t)
    a(f"s_mov_b32 exec_hi, 0\nbuffer_load_dword v1, v13, {WS}, s6 offen sc1\ns_mov_b32 exec_hi, -1")
    for p in range(4, NWO):
        for t in wreads(p): lq.issue(*t)
    a(f"""s_mov_b32 exec_hi, 0
    C_OP:
    s_waitcnt vmcnt(0)
    v_cmp_ne_u32 vcc, 1, v1
    s_cbranch_vccnz C_OPRE
    s_mov_b64 exec, -1""")
    st.mark("cof")
    pl(0, 16, OFL)
    lq.issue(f"s_mov_b64 exec, 1\nds_add_u32 v254, v255 offset:{4*K_OI}\ns_mov_b64 exec, -1", "a")
    st.mark("coi")
    for p in range(16):
        a(f"s_waitcnt vmcnt({15-p})")
        lq.need(f"o{p}")
        if p == 0: st.mark("cg0")
        R = wreads(p-1+NWO) if p >= 1 and p-1+NWO < 16 else []
        for t in range(4):
            a(f"{MF} {q(ACC+4*t)}, {q(wb(p)+4*t)}, {q(OF+4*p)}, {q(ACC+4*t) if p else 0}")
            for r in R[2*t:2*t+2]: lq.issue(*r)
    st.mark("cg")
    for pr in range(2):
        o = 144 + pr*4
        for t in range(2):
            acc = ACC + (pr*2+t)*4
            a(f"v_cvt_pk_bf16_f32 v{o+2*t}, v{acc}, v{acc+1}\nv_cvt_pk_bf16_f32 v{o+2*t+1}, v{acc+2}, v{acc+3}")
        a(f"v_permlane16_swap_b32 v{o}, v{o+2}\nv_permlane16_swap_b32 v{o+1}, v{o+3}")
        a(f"buffer_store_dwordx4 {q(o)}, v12, s[40:43], s61 offen offset:{64*pr} {OUTFL.replace('_', ' ')}")
    st.dump()
    a("s_endpgm")
    a("C_TST:")
    for k in range(8): a(f"buffer_store_dword v{OUT+k}, v11, {WS}, s61 offen sc1\ns_add_u32 s61, s61, {0x4000 if k != 3 else 0x40000-3*0x4000}")
    a(f"""s_cmp_eq_u32 s3, 0
    s_cbranch_scc0 C_TRET
    s_mov_b32 exec_lo, 0xff
    s_mov_b32 exec_hi, 0xff
    buffer_store_dword v14, v13, {WS}, s60 offen sc1
    s_mov_b64 exec, -1
    s_branch C_TRET
    C_SIG:
    s_mov_b64 exec, 1
    buffer_atomic_add v240, v7, {WS}, s19 offen sc0 sc1
    s_mov_b64 exec, -1
    s_branch C_MID
    C_OPRE:""")
    spin_check(a, 0 if MAP == 48 else 2)
    a(f"buffer_load_dword v1, v13, {WS}, s6 offen sc1\ns_branch C_OP")
    for g_ in range(4):
        lds_wait(a, K_Q+g_, f"C_QS{g_}")
        a(f"s_branch C_QR{g_}")
    a("L_REDRE:")
    spin_check(a, RSLP, 100)
    a("s_branch L_RED")
    a("L_URE:")
    if UGATE != 1: lds_wait(a, K_OI, "L_URG", 1)
    spin_check(a, USLP)
    a("s_waitcnt lgkmcnt(0)\ns_branch L_UL\nL_H1RE:")
    spin_check(a, PSLEEP)
    a(f"buffer_load_dword v205, v250, {WS}, 0 offen sc1\ns_waitcnt vmcnt(0)\ns_branch L_H1")
    a("C_PFRE:")
    spin_check(a, FSLP, 100)
    a("s_branch C_PF")
    if MAP == 48:
        lds_wait(a, K_H1, "C_MW")
        a(f"""ds_read_b32 v238, v254 offset:{4*K_MODE}
        s_waitcnt lgkmcnt(0)
        v_readfirstlane_b32 s75, v238
        s_branch C_MWR
        C_OSLOW:
        buffer_store_dwordx4 {q(OO)}, v12, {WS}, s61 offen sc1
        buffer_store_dwordx4 {q(OO+4)}, v12, {WS}, s62 offen sc1
        s_branch C_OST
        C_FSLOW:
        buffer_store_dword v255, v7, {WS}, s7 offen sc1
        s_branch C_FST""")
    a("L_GORE:")
    spin_check(a, RESLEEP)
    a("buffer_load_dword v204, v249, s[44:47], 0 offen sc1\ns_waitcnt vmcnt(0)\ns_branch L_GO\nL_END:\ns_endpgm")

HEADER = open("concat_heads__linear_attn_block__spectral_gfnet__prompt.s.ref").read().split("; Override")[0]

def main(out):
    a = Asm(); st = Stamps(a)
    entry(a, st); l_main(a, st); c_main(a, st)
    txt = HEADER + f"""; @launch grid=(256,1,1) block=(512,1,1) lds={LDS_SIZE}
.amdgcn_target "amdgcn-amd-amdhsa--gfx950"
.text
""" + a.finalize() + f""".section .rodata,"a"
.p2align 6
.amdhsa_kernel {NAME}
  .amdhsa_next_free_vgpr 256
  .amdhsa_next_free_sgpr 102
  .amdhsa_accum_offset 256
  .amdhsa_group_segment_fixed_size 0
  .amdhsa_kernarg_size 72
  .amdhsa_user_sgpr_count 2
  .amdhsa_user_sgpr_kernarg_segment_ptr 1
  .amdhsa_system_sgpr_workgroup_id_x 1
.end_amdhsa_kernel
"""
    open(out, "w").write(txt)

if __name__ == "__main__":
    for arg in sys.argv[2:]:
        if arg == "stamp": STAMP = True
        elif "=" in arg:
            k, v = arg.split("=", 1)
            globals()[k] = int(v) if v.lstrip("-").isdigit() else v
    main(sys.argv[1])
```

```python
import sys, struct
from asm import Asm

T_OFF = 0; ROW = 8320; U_OFF = 0x240000; WP_OFF = 0x480000; KVP_OFF = 0x6C0000; ZP_OFF = 0x740000
KVF_OFF = 0x6B0000; F0_OFF = 0x750000; O_OFF = 0x800000; WS_SIZE = 0xA00000; DBG_OFF = 0xA00000
XB = 65536; BXB = 131072; EB = 147456; CNT = 163584; WRB = EB; SPB = WRB + 16*576; LDS_SIZE = 163840
OF_OFF = 4096; H2_OFF = 8192; OF2_OFF = 16384
STAMP = False
NAME = "concat_heads__linear_attn_block__spectral_gfnet__prompt_kernel"
SPIN = 0x40000
MAP = 48; GPOS = 1; SIG1 = 4; TPOS = 1; RCL = 1; TFIRST = 0; OIL = 10; PFS = 0; EXIT0 = 0; EARLY = 0; NOOUT = 0; PREU = 1; PSLEEP = 2; RESLEEP = 2; CPRIO = 2; LPRIO = 3; FORCESLOW = 0
OUTFL = ""; TFL = "sc1"; UFL = "sc1"; OFL = "sc1"; NPRE = 5; NWO = 9; PSPLIT = 8; HPOS = 0; XROT = 1; BNT = ""; XNT = ""; QPF = 0; RP = 1; WSB = 0; ROTM = 7; F3E = 0; RPM = 2; B2POS = 1; WNT = ""; PFL = "sc1"; YFL = ""; SFL = "sc1"; LBAR = 0; WOX = 1; WOAT = 2; DYN = 1; PFB = 0; UGATE = 1; USLP = 4; PROT = 0; PEXP = 0; RPOS = 0; RSLP = 2; FSLP = 2; UPRIO = 3; MW = 0; MWQ = 0; OPF = 7; W67 = 1; B3LATE = 0; NOPF = 0; LSLP = 1; NBSLP = 0
MC = "cbx,cst,cf0,t0,cp2,ckv,co,cww,cof,coi,cg"; ML = "iss,lf0,lf7,lq3,lh1,lt,lb2,lack,lul,luok,lend"
K_BX, K_X, K_WO, K_E1, K_E2, K_MODE, K_H1, K_Q, K_H2, K_OI, K_C7, K_TASK, K_G0, K_U, K_CO, K_W67 = 0, 1, 2, 3, 4, 6, 7, 8, 12, 13, 14, 15, 16, 17, 18, 19
K_RD = 12

def fhex(x): return "0x%08x" % struct.unpack("<I", struct.pack("<f", x))[0]
def q(b): return "v[%d:%d]" % (b, b + 3)
def d(b): return "v[%d:%d]" % (b, b + 1)
MF = "v_mfma_f32_16x16x32_bf16"
M16 = "v_mfma_f32_16x16x16_bf16"
WS = "s[24:27]"
def WREST(): return (6, 7, 0, 1, 2, 3, 4, 5) if PFB == 4 else (0, 1, 2, 3, 4, 5)
def nclr(): return 82 if MAP == 48 else 98

def srd_ptr(a, r, lo): a(f"s_mov_b32 s{r}, s{lo}\ns_mov_b32 s{r+1}, s{lo+1}")
def srd_const(a, r, size): a(f"s_mov_b32 s{r+2}, {size}\ns_mov_b32 s{r+3}, 0x20000")
def wsz(): return WS_SIZE + (0x100000 if STAMP else 0)

class Stamps:
    def __init__(self, a): self.a = a
    def start(self):
        if STAMP: self.a("s_memtime s[76:77]\ns_memrealtime s[78:79]")
    def clear(self, keep):
        if STAMP:
            for lst in (MC.split(","), ML.split(",")):
                pass
            for i in range(11):
                if i != keep and not (EARLY and i < 7): self.a(f"s_mov_b32 s{80+2*i}, 0")
    def idx(self, name):
        for lst in (MC.split(","), ML.split(",")):
            if name in lst: return lst.index(name)
        return -1
    def mark(self, name):
        if STAMP and self.idx(name) >= 0:
            i = self.idx(name); self.a(f"s_memtime s[{80+2*i}:{81+2*i}]")
    def dump(self):
        if not STAMP: return
        a = self.a
        a("v_mov_b32 v28, s56\ns_memrealtime s[74:75]\ns_waitcnt vmcnt(0) lgkmcnt(0)\ns_mov_b64 exec, 1")
        for i in range(11): a(f"s_sub_u32 s73, s{80+2*i}, s76\ns_cmp_eq_u32 s{80+2*i}, 0\ns_cselect_b32 s73, 0, s73\nv_mov_b32 v{16+i}, s73")
        a(f"s_sub_u32 s73, {SPIN}, s72\nv_mov_b32 v27, s73\nv_mov_b32 v29, 0\nv_mov_b32 v30, s78\nv_mov_b32 v31, s74")
        a(f"s_lshl_b32 s73, s2, 3\ns_add_u32 s73, s73, s3\ns_lshl_b32 s73, s73, 6\ns_add_u32 s73, s73, {DBG_OFF}\nv_mov_b32 v15, s73")
        for j in range(4): a(f"buffer_store_dwordx4 {q(16+4*j)}, v15, {WS}, 0 offen offset:{16*j}")

def spin_check(a, slp, w=1):
    a(f"s_sub_u32 s72, s72, {w if STAMP else 1}\ns_cbranch_scc1 L_END")
    if slp: a(f"s_sleep {slp}")

def lds_signal(a, k): a(f"s_mov_b64 exec, 1\nds_add_u32 v254, v255 offset:{4*k}\ns_mov_b64 exec, -1")
def lds_wait(a, k, lbl, slp=0):
    a(f"""{lbl}:
    {"s_sleep %d" % slp if slp else ""}
    ds_read_b32 v253, v254 offset:{4*k}
    s_sub_u32 s74, s74, 1
    s_cbranch_scc1 L_END
    s_waitcnt lgkmcnt(0)
    v_cmp_ne_u32 vcc, 4, v253
    s_cbranch_vccnz {lbl}""")

def issue1w(a, c):
    a(f"""s_mul_i32 s66, s52, 196608
    s_add_u32 m0, s64, {(c & 3)*16384}
    s_add_u32 s66, s66, s61
    buffer_load_dwordx4 v6, s[32:35], s66 offen {WNT} lds
    buffer_load_dwordx4 v6, s[32:35], s66 offen offset:1024 {WNT} lds
    s_add_u32 s66, s66, 10240
    buffer_load_dwordx4 v6, s[32:35], s66 offen offset:2048 {WNT} lds
    buffer_load_dwordx4 v6, s[32:35], s66 offen offset:3072 {WNT} lds""")
def issue1x(a, c):
    a(f"""s_lshl_b32 s65, s52, 7
    s_add_u32 m0, s62, {XB + c*8192}
    s_add_u32 s65, s65, s60
    buffer_load_dwordx4 v5, s[28:31], s65 offen {XNT} lds
    s_add_u32 s65, s65, 7168
    buffer_load_dwordx4 v5, s[28:31], s65 offen offset:1024 {XNT} lds""")
def issue1(a, c):
    if MAP == 48: issue1w(a, c); issue1x(a, c)
    else: issue1x(a, c); issue1w(a, c)
    a("s_add_u32 s52, s52, 1\ns_and_b32 s52, s52, 7")
def issue2(a, gam):
    for k2 in range(2):
        a(f"""s_mul_i32 s66, s52, 196608
        s_add_u32 m0, s62, {gam*16384 + k2*8192}
        s_add_u32 s66, s66, s61
        s_add_u32 s52, s52, 1
        buffer_load_dwordx4 v6, s[32:35], s66 offen {WNT} lds
        s_add_u32 s66, s66, 11264
        s_and_b32 s52, s52, 7
        buffer_load_dwordx4 v6, s[32:35], s66 offen offset:1024 {WNT} lds""")

def waddr(a, slot, conj, step, row0, wq_, gq_):
    a(f"""s_and_b32 {slot}, s48, 3
    s_cmp_eq_u32 s48, 4
    s_cselect_b32 {row0}, 4, {slot}
    s_and_b32 {wq_}, s49, 7
    s_lshl4_add_u32 {row0}, {wq_}, {row0}
    s_lshr_b32 {gq_}, s49, 3
    s_lshl_b32 s22, {gq_}, 9
    s_add_u32 {row0}, {row0}, s22
    s_sub_u32 s22, 2048, {row0}
    s_cmp_ge_u32 s48, 4
    s_cselect_b32 {row0}, s22, {row0}
    s_cselect_b32 {conj}, 0x80000000, 0
    s_movk_i32 {step}, {8*514}
    s_cmovk_i32 {step}, {-8*514}
    s_mulk_i32 {row0}, 514""")

def entry(a, st):
    a(f".globl {NAME}\n.p2align 8\n.type {NAME},@function\n{NAME}:")
    st.start()
    a(f"""s_cmp_ge_u32 s2, {0 if EXIT0 else 256}
    s_cbranch_scc1 L_END
    s_load_dwordx16 s[4:19], s[0:1], 0
    s_load_dwordx2 s[20:21], s[0:1], 64
    {"s_memtime s[80:81]" if EARLY else ""}
    v_lshrrev_b32 v4, 6, v0
    s_lshr_b32 s49, s2, 3
    v_readfirstlane_b32 s3, v4
    v_and_b32 v0, 63, v0
    {"s_memtime s[82:83]" if EARLY else ""}
    {"s_getpc_b64 s[60:61]" if PFS else ""}
    {"v_lshl_add_u32 v1, v4, 6, v0" if PFS else ""}
    {"v_mul_u32_u24 v1, %d, v1" % PFS if PFS else ""}
    {"global_load_dword v1, v1, s[60:61]" if PFS else ""}
    s_cmp_eq_u32 s3, 0
    s_cbranch_scc0 C_NOPF
    s_mov_b32 exec_lo, 0xfffff
    s_mov_b32 exec_hi, 0
    s_getpc_b64 s[60:61]
    L_PC:
    s_mul_i32 s62, s49, 768
    v_min_u32 v1, 5, v0
    v_lshlrev_b32 v1, 7, v1
    v_add_u32 v1, s62, v1
    v_min_u32 v1, L_END-L_PC, v1
    {"" if PFS else "global_load_dword v1, v1, s[60:61]"}
    v_lshlrev_b32 v2, 2, v0
    v_add_u32 v2, {CNT}, v2
    v_mov_b32 v3, 0
    ds_write_b32 v2, v3
    s_mov_b64 exec, -1
    C_NOPF:
    {"s_memtime s[84:85]" if EARLY else ""}
    s_and_b32 s48, s2, 7
    v_lshlrev_b32 v7, 4, v0
    s_mov_b32 s30, 0x200000
    s_mov_b32 s31, 0x20000""")
    if MAP == 48:
        a("""s_and_b32 s52, s49, 3
        s_lshl2_add_u32 s50, s48, s52
        s_lshr_b32 s51, s49, 2
        s_lshl1_add_u32 s52, s52, s51""")
    else:
        a("""s_and_b32 s52, s49, 7
        s_lshr_b32 s50, s48, 1
        s_lshl3_add_u32 s50, s50, s52
        s_lshr_b32 s22, s49, 3
        s_and_b32 s51, s48, 1
        s_lshl2_add_u32 s51, s51, s22
        s_lshl1_add_u32 s52, s22, s52""")
    a(f"""s_cmp_ge_u32 s3, 4
    s_cbranch_scc1 L_START
    s_lshl_b32 s69, s3, 11
    s_lshl_b32 s58, s3, 19
    s_lshl_b32 s59, s2, 10
    s_add_u32 s58, s58, s59
    s_add_u32 s59, s58, {0x40000-1024}
    s_add_u32 m0, s69, {BXB}
    s_cmp_ge_u32 s2, 209
    s_cselect_b32 s22, 0, -1
    v_mov_b32 v208, s22
    v_mov_b32 v209, s22
    v_mov_b32 v210, s22
    v_mov_b32 v211, s22
    s_sub_u32 s52, s2, 129
    s_cmp_eq_u32 s3, 3
    s_cselect_b32 s52, s52, -1
    s_lshl_b32 s65, s52, 13
    s_add_u32 s65, s65, {KVF_OFF}
    s_mov_b32 s26, {wsz()}
    s_mov_b32 s27, s31
    s_cmp_lt_u32 s52, {nclr()}
    {"s_memtime s[86:87]" if EARLY else ""}
    s_waitcnt lgkmcnt(0)
    {"s_memtime s[88:89]" if EARLY else ""}
    s_mov_b64 s[28:29], s[10:11]
    s_cselect_b32 s23, 1, 0
    s_add_u32 s24, s20, {WSB << 20}
    s_addc_u32 s25, s21, 0
    s_cmp_eq_u32 s23, 1
    s_cbranch_scc1 C_CLR
    C_NOCLR:
    buffer_load_dwordx4 v7, s[28:31], s58 offen {BNT} lds
    buffer_load_dwordx4 v7, s[28:31], s59 offen offset:1024 {BNT} lds
    {"s_memtime s[90:91]" if EARLY else ""}
    s_barrier
    {"s_memtime s[92:93]" if EARLY else ""}
    s_branch C_MAIN
    C_CLR:
    buffer_store_dwordx4 v[208:211], v7, {WS}, s65 offen sc1
    buffer_store_dwordx4 v[208:211], v7, {WS}, s65 offen offset:1024 sc1
    buffer_store_dwordx4 v[208:211], v7, {WS}, s65 offen offset:2048 sc1
    buffer_store_dwordx4 v[208:211], v7, {WS}, s65 offen offset:3072 sc1
    s_bitset1_b32 s65, 12
    buffer_store_dwordx4 v[208:211], v7, {WS}, s65 offen sc1
    buffer_store_dwordx4 v[208:211], v7, {WS}, s65 offen offset:1024 sc1
    buffer_store_dwordx4 v[208:211], v7, {WS}, s65 offen offset:2048 sc1
    buffer_store_dwordx4 v[208:211], v7, {WS}, s65 offen offset:3072 sc1
    s_branch C_NOCLR
    L_START:
    {"s_memtime s[86:87]" if EARLY else ""}
    s_sub_u32 s58, s3, 4
    {"s_and_b32 s52, s52, %d" % ROTM if ROTM != 7 else ""}
    {"s_add_u32 s52, s52, s48" if XROT == 1 else ""}
    {"s_lshr_b32 s22, s48, 1" if XROT == 2 else ""}
    {"s_add_u32 s52, s52, s22" if XROT == 2 else ""}
    s_and_b32 s52, s52, 7
    v_lshrrev_b32 v8, 3, v0
    v_and_b32 v9, 7, v0
    v_and_b32 v10, 6, v8
    v_xor_b32 v9, v9, v10
    v_lshlrev_b32 v9, 4, v9
    v_lshl_add_u32 v5, v8, 10, v9
    v_and_b32 v10, 4, v8
    v_add_u32 v10, v10, v8
    v_mul_u32_u24 v6, 3072, v10
    v_add_u32 v6, v6, v9
    s_lshl2_add_u32 s60, s50, s58
    s_lshl_b32 s60, s60, 14
    s_lshl_b32 s61, s51, 7
    s_mul_i32 s62, s58, 49152
    s_add_u32 s61, s61, s62
    s_addk_i32 s61, 1024
    s_lshl_b32 s62, s58, 11
    s_lshl_b32 s64, s58, 12
    s_mov_b32 s34, 0x180000
    s_mov_b32 s35, s31
    s_mov_b32 s38, {2048*514}
    s_mov_b32 s39, s31
    s_mov_b32 s42, s38
    s_mov_b32 s43, s31""")
    waddr(a, "s75", "s59", "s67", "s68", "s56", "s57")
    a(f"""s_lshl_b32 s22, s58, 4
    s_mul_i32 s22, s22, s67
    s_add_u32 s22, s22, s68
    s_and_b32 s22, s22, -16
    s_add_u32 s23, s22, s67
    s_mul_i32 s73, s58, {4*576}
    s_add_u32 m0, s73, {WRB}
    {"s_memtime s[88:89]" if EARLY else ""}
    s_waitcnt lgkmcnt(0)
    {"s_memtime s[90:91]" if EARLY else ""}
    s_mov_b64 s[36:37], s[12:13]
    s_mov_b64 s[40:41], s[14:15]
    s_mov_b64 s[32:33], s[6:7]
    s_mov_b64 s[28:29], s[4:5]
    s_barrier
    {"s_memtime s[92:93]" if EARLY else ""}
    s_mov_b32 exec_hi, 3
    buffer_load_dwordx4 v7, s[36:39], s22 offen {BNT} lds
    s_add_u32 m0, s73, {WRB+576}
    s_nop 0
    buffer_load_dwordx4 v7, s[40:43], s22 offen {BNT} lds
    s_add_u32 m0, s73, {WRB+2*576}
    s_nop 0
    buffer_load_dwordx4 v7, s[36:39], s23 offen {BNT} lds
    s_add_u32 m0, s73, {WRB+3*576}
    s_nop 0
    buffer_load_dwordx4 v7, s[40:43], s23 offen {BNT} lds
    s_mov_b32 exec_hi, -1
    s_cmp_eq_u32 s58, 0
    s_cbranch_scc0 L_NOSP
    v_and_b32 v12, 3, v0
    v_lshlrev_b32 v12, 4, v12
    v_lshrrev_b32 v11, 2, v0
    v_add_u32 v12, v12, v11
    v_mul_i32_i24 v12, s67, v12
    v_add_u32 v12, s68, v12
    v_sub_u32 v11, {2048*514}, v12
    s_lshr_b32 s23, s59, 22
    s_sub_u32 s22, 512, s23
    s_cmp_eq_u32 s75, 0
    s_cselect_b64 vcc, -1, 0
    s_cselect_b32 s22, s22, s23
    v_cndmask_b32 v11, v11, v12, vcc
    s_mov_b32 m0, {SPB}
    s_mov_b64 exec, 0xff
    buffer_load_ushort v11, s[36:39], s22 offen lds
    s_mov_b32 m0, {SPB+32}
    s_nop 0
    buffer_load_ushort v11, s[40:43], s22 offen lds
    s_mov_b64 exec, -1
    L_NOSP:""")
    issue1(a, 0)
    st.mark("iss")

def common_setup(a, st, keep):
    st.clear(keep)
    a(f"s_add_u32 s24, s20, {WSB << 20}\ns_addc_u32 s25, s21, 0\ns_mov_b64 s[40:41], s[16:17]\ns_mov_b64 s[44:45], s[18:19]")
    srd_const(a, 24, wsz()); srd_const(a, 40, 0 if NOOUT else 0x400000); srd_const(a, 44, 256)
    a(f"""s_mov_b32 s72, {SPIN}
    s_mov_b32 s74, {SPIN*16}
    v_mov_b32 v254, {CNT}
    v_mov_b32 v255, 1
    v_and_b32 v2, 15, v0
    v_lshrrev_b32 v3, 4, v0
    v_cvt_f32_u32 v8, v2
    v_cvt_f32_u32 v9, v3
    v_lshrrev_b32 v12, 1, v0
    v_lshrrev_b32 v13, 2, v0
    v_and_b32 v13, 4, v13
    v_xor_b32 v12, v12, v13
    v_and_b32 v15, 7, v12
    s_and_b32 s57, s49, 3
    s_lshl2_add_u32 s54, s48, s57
    s_lshr_b32 s55, s49, 2
    s_lshl1_add_u32 s57, s57, s55
    s_and_b32 s19, s2, 15
    s_lshl_b32 s19, s19, 7
    s_add_u32 s19, s19, {F0_OFF}""")

RWR, RWI, SPC = 176, 184, 192

def l_main(a, st):
    C1, C2, TWC, TWS, C3, DAT, AC1, OP2, AC2, INI = 16, 40, 48, 56, 64, 80, 112, 144, 160, 192
    TMP, OP3, AC3, OUT = 80, 112, 128, 144
    CA, CB = 208, 240
    OP, WPK, AC, PK, WRI, T0 = 80, 96, 112, 144, 160, 176
    seq = ["w"]*4 + ["F0"]*6
    a("v_lshl_add_u32 v4, v10, 10, v9\ns_mov_b64 s[36:37], s[8:9]")
    srd_const(a, 36, 0x80000)
    common_setup(a, st, st.idx("iss"))
    CT = 194
    def b3_consts():
        a(f"""s_lshl_b32 s67, s58, 9
        s_add_u32 s67, s67, s2
        v_and_b32 v10, 1, v0
        v_lshlrev_b32 v10, 8, v10
        v_add_u32 v10, s67, v10
        v_cvt_f32_u32 v10, v10
        v_mul_f32 v10, {fhex(1/2048)}, v10
        v_lshrrev_b32 v11, 5, v0
        v_cvt_f32_u32 v11, v11""")
        MK = 196
        for r in range(4): a(f"v_cmp_eq_u32 vcc, {r}, v15\nv_cndmask_b32 v{MK+r}, 0, -1, vcc")
        a(f"""v_mul_f32 v12, v11, v10
        v_mov_b32 v13, 0xc0400000
        v_fma_f32 v13, v13, v11, 4.0
        v_mul_f32 v13, v13, v10
        v_add_f32 v14, 2.0, v11
        v_mul_f32 v14, v14, v10""")
        for k in range(3):
            b = C1 + 8*k
            a(f"""v_cos_f32 v{CT}, v{12+k}
            v_sin_f32 v{CT+1}, v{12+k}
            v_mul_f32 v{CT}, {fhex(2.0**-19)}, v{CT}
            v_mul_f32 v{CT+1}, {fhex(2.0**-19)}, v{CT+1}
            v_cvt_pk_bf16_f32 v{b+3}, v{CT}, -v{CT+1}
            v_cvt_pk_bf16_f32 v{b+7}, v{CT+1}, v{CT}""")
            for c in range(2):
                for r in range(4): a(f"v_and_b32 v{b+4*c+r}, v{b+4*c+3}, v{MK+r}")
        a(f"v_mul_f32 v12, {fhex(1/16)}, v8\nv_mul_f32 v13, v9, v12\nv_mul_f32 v12, 4.0, v12")
        for v in range(4):
            a(f"v_cos_f32 v{CT}, v13\nv_sin_f32 v{CT+1}, v13")
            if v < 3: a("v_add_f32 v13, v13, v12")
            a(f"v_cvt_pk_bf16_f32 v{C2+v}, v{CT}, -v{CT+1}\nv_cvt_pk_bf16_f32 v{C2+4+v}, v{CT+1}, v{CT}")
        a(f"""v_bfe_u32 v12, v0, 4, 1
        v_cvt_f32_u32 v12, v12
        v_add_f32 v12, v12, v12
        v_mov_b32 v13, 0x41800000
        v_fma_f32 v12, v11, v13, v12
        v_mul_f32 v13, {fhex(1/512)}, v8
        v_mul_f32 v14, v12, v13
        v_mul_f32 v15, {fhex(3.0)}, v13""")
        for i in range(4):
            for ph in range(2):
                k = i*2 + ph; kap = i >> 1; r = (i & 1)*2 + ph
                a(f"""v_cos_f32 v{TWC+k}, v14
                v_sin_f32 v{TWS+k}, v14
                v_mul_f32 v12, 0x41800000, v14
                v_cos_f32 v{CT}, v12
                v_sin_f32 v{CT+1}, v12""")
                if k < 7: a(f"v_add_f32 v14, v14, v{15 if ph else 13}")
                a(f"v_cvt_pk_bf16_f32 v{C3+kap*8+r}, v{CT}, -v{CT+1}")
                if ph: a(f"v_cvt_pk_bf16_f32 v{C3+kap*8+4+r}, -v{CT}, v{CT+1}")
                else: a(f"v_cvt_pk_bf16_f32 v{C3+kap*8+4+r}, v{CT}, -v{CT+1}")
        a(f"""v_cvt_f32_u32 v12, s2
        v_mul_f32 v12, {fhex(1/512)}, v12
        v_cos_f32 v13, v12
        v_sin_f32 v14, v12
        v_lshlrev_b32 v10, 10, v3
        v_lshl_add_u32 v10, v2, 4, v10
        v_mul_f32 v13, {fhex(2.0**-20)}, v13
        v_mul_f32 v14, {fhex(2.0**-20)}, v14
        v_lshlrev_b32 v11, 5, v2
        v_lshl_add_u32 v11, v3, 3, v11
        v_mov_b32 v15, 0""")
    def b2_consts():
        a(f"""s_lshl_b32 s22, s58, 2
        v_cvt_f32_u32 v146, s22
        v_mul_f32 v144, {fhex(1/16)}, v8
        v_mul_f32 v145, 4.0, v9
        v_mul_f32 v145, v145, v144
        v_mul_f32 v147, {fhex(1/16)}, v144
        v_mul_f32 v146, v146, v147""")
        for r in range(4):
            a(f"""v_cos_f32 v154, v145
            v_sin_f32 v155, v145
            v_add_f32 v148, v145, v146
            v_cvt_pk_bf16_f32 v{CB+r}, v154, v155
            v_cvt_pk_bf16_f32 v{CB+4+r}, -v155, v154""")
            for j in range(4):
                t = 150 + 2*(j & 1)
                a(f"v_cos_f32 v{t}, v148\nv_sin_f32 v{t+1}, v148")
                if j < 3: a("v_add_f32 v148, v148, v147")
                elif r < 3: a("v_add_f32 v145, v145, v144")
                a(f"v_cvt_pk_bf16_f32 v{CA+8*j+r}, v{t}, v{t+1}\nv_cvt_pk_bf16_f32 v{CA+8*j+4+r}, -v{t+1}, v{t}")
        a(f"""s_lshl_b32 s23, s58, 8
        v_lshlrev_b32 v200, 12, v3
        v_lshl_add_u32 v200, v2, 4, v200
        v_add_u32 v200, s23, v200
        v_add_u32 v201, s64, v7
        v_add_u32 v251, {EB}, v200
        v_add_u32 v252, {EB}, v201
        s_cmp_eq_u32 s58, 3
        s_cselect_b32 s16, 0xffff, -1
        s_mov_b32 s15, 0xffff0000""")
    def misc_addr():
        a(f"""s_and_b32 s53, s2, 15
        s_lshl_b32 s53, s53, 4
        s_bfe_u32 s22, s2, 0x20004
        s_lshl2_add_u32 s53, s22, s53
        s_lshr_b32 s22, s2, 6
        s_add_u32 s53, s53, s22
        s_lshl_b32 s53, s53, 6
        v_lshlrev_b32 v12, 7, v0
        v_add_u32 v250, {F0_OFF}, v12
        v_mov_b32 v207, 4
        v_lshlrev_b32 v248, 2, v0
        v_mov_b32 v206, 0
        s_lshl_b32 s22, s51, 11
        s_add_u32 s22, s22, s60
        s_add_u32 s22, s22, {O_OFF}
        v_add_u32 v202, s22, v12
        s_lshl_b32 s22, s50, 7
        s_add_u32 s22, s22, {F0_OFF + OF_OFF}
        v_writelane_b32 v202, s22, 16
        v_mov_b32 v249, v12
        s_lshl_b32 s21, s58, 14
        s_lshl_b32 s22, s55, 7
        s_add_u32 s21, s21, s22
        s_cmp_eq_u32 s58, 0
        s_cselect_b32 s17, 0, 0x40000000""")
    def wo_dma(poss):
        for pos in poss:
            a(f"""s_add_u32 s5, s57, {(pos+2) & 7}
            s_and_b32 s5, s5, 7
            s_lshl_b32 s5, s5, 16
            s_add_u32 m0, s62, {XB + 16384 + pos*8192}
            s_add_u32 s5, s5, s21
            buffer_load_dwordx4 v4, s[36:39], s5 offen lds
            s_add_u32 s5, s5, 3072
            buffer_load_dwordx4 v4, s[36:39], s5 offen offset:1024 lds""")
    def opf():
        if MAP == 48: a(f"s_mov_b64 exec, 0x1ffff\nbuffer_load_dword v203, v202, {WS}, 0 offen {PFL.replace('_', ' ')}\ns_mov_b64 exec, -1"); seq.append("p")
    def younger(tag): return len(seq) - 1 - max(i for i, x in enumerate(seq) if x == tag)
    misc_addr()
    def mall_warm():
        a(f"""s_lshl2_add_u32 s22, s2, s58
        s_lshl_b32 s23, s22, 9
        s_lshr_b32 s5, s22, 1
        s_mulk_i32 s5, 3072
        s_and_b32 s22, s23, 512
        s_add_u32 s5, s5, s22
        s_mov_b64 exec, 15
        buffer_load_dword v198, v12, s[36:39], s23 offen
        {"buffer_load_dword v197, v12, s[32:35], s5 offen" if MWQ else ""}
        s_mov_b64 exec, -1"""); seq.extend(["m"]*(1+MWQ))
    def repack_all():
        a(f"""v_lshrrev_b32 v109, 5, v0
        v_lshlrev_b32 v108, 2, v2
        s_lshr_b32 s69, s49, 3
    v_and_b32 v100, 1, v3
    v_lshlrev_b32 v100, 18, v100
    v_lshl_add_u32 v100, v109, 14, v100
    v_lshl_add_u32 v100, v2, 4, v100
    s_lshl_b32 s14, s56, 11
    s_lshl_b32 s22, s69, 8
    s_add_u32 s14, s14, s22
    s_add_u32 s14, s14, {WP_OFF}
    s_lshl_b32 s15, s75, 19
    s_lshr_b32 s22, s59, 14
    s_add_u32 s15, s15, s22
    s_lshl_b32 s22, s58, 15
    s_add_u32 s15, s15, s22
    s_add_u32 s15, s15, s14
    s_lshr_b32 s22, s59, 24
    s_sub_u32 s14, s14, s22
    s_add_u32 s14, s14, {128*16384 + 128}
    s_lshl_b32 s23, s58, 6
    v_add_u32 v102, s23, v0
    v_sub_u32 v103, 0x100, v102
    s_cmp_ge_u32 s48, 4
    s_cselect_b64 vcc, -1, 0
    s_and_b32 s22, s68, 15
    s_add_u32 s22, s22, {WRB}
    v_cndmask_b32 v102, v102, v103, vcc
    v_lshlrev_b32 v102, 1, v102
    v_add_u32 v102, s22, v102
    s_lshr_b32 s23, s59, 22
    s_add_u32 s22, s22, s23
    v_and_b32 v103, 3, v0
    v_mul_u32_u24 v103, {4*576}, v103
    v_and_b32 v104, 1, v3
    v_mul_u32_u24 v104, {2*576}, v104
    v_add3_u32 v103, v103, v104, s22
    v_lshl_add_u32 v101, v3, 10, v108
    v_and_b32 v104, 3, v0
    v_and_b32 v105, 16, v0
    v_lshl_add_u32 v104, v104, 2, v105
    v_add_u32 v104, {SPB}, v104""")
        if RP >= 2: issue1(a, 1); seq.extend(["F1"]*6)
        a(f"s_waitcnt vmcnt({younger('w')})")
        lds_signal(a, 5)
        if RP == 1: issue1(a, 1); seq.extend(["F1"]*6)
        if RP >= 2: issue1(a, 2); seq.extend(["F2"]*6)
        if RP >= 3: issue1(a, 3); seq.extend(["F3"]*6)
        lds_wait(a, 5, "L_WRW")
        st.mark("lbar")
        for j in range(2):
            if j: a("s_waitcnt lgkmcnt(4)")
            for i in range(4):
                a(f"ds_read_u16 v{RWR+4*j+i}, v102 offset:{(i*4+j*2)*576}\nds_read_u16 v{RWI+4*j+i}, v102 offset:{(i*4+j*2+1)*576}")
        a(f"s_waitcnt lgkmcnt(8)\nds_read_u16 v{SPC}, v103\nds_read_u16 v{SPC+1}, v103 offset:576\nds_read_u16 v106, v104\nds_read_u16 v107, v104 offset:32")
        a("s_waitcnt lgkmcnt(0)")
        for k in range(8): a(f"v_lshl_or_b32 v{RWR+k}, v{RWI+k}, 16, v{RWR+k}\nv_xor_b32 v{RWR+k}, s59, v{RWR+k}")
        a(f"""s_cmp_eq_u32 s58, 0
        s_cbranch_scc0 L_NOSP2
        s_cmp_eq_u32 s75, 0
        s_cselect_b32 s22, 0, 1.0
        v_lshl_or_b32 v{SPC+4}, v107, 16, v106
        v_lshlrev_b32 v{SPC}, 16, v{SPC}
        v_lshlrev_b32 v{SPC+1}, 16, v{SPC+1}
        v_lshlrev_b32 v106, 16, v106
        v_lshlrev_b32 v107, 16, v107
        v_fma_f32 v{SPC}, v106, s22, v{SPC}
        v_fma_f32 v{SPC+1}, -v107, s22, v{SPC+1}
        v_mul_f32 v{SPC}, 0.5, v{SPC}
        v_mul_f32 v{SPC+1}, 0.5, v{SPC+1}
        v_cvt_pk_bf16_f32 v{SPC}, v{SPC}, v{SPC+1}
        v_xor_b32 v{SPC+4}, s59, v{SPC+4}
        v_xor_b32 v{SPC}, s59, v{SPC}""")
        for k in range(8): a(f"v_readlane_b32 s{4+k}, v{SPC}, {16*(k>>2) + (k&3)}")
        for k in range(8): a(f"v_writelane_b32 v{RWR+k}, s{4+k}, 0")
        a("L_NOSP2:")
        a(f"""s_or_b32 s22, s58, s75
        s_cbranch_scc1 L_NOSP3
        s_mov_b32 exec_hi, 0
        buffer_store_dword v{SPC+4}, v101, {WS}, s14 offen sc1
        s_mov_b32 exec_hi, -1
        L_NOSP3:
        buffer_store_dwordx4 {q(RWR)}, v100, {WS}, s15 offen sc1
        buffer_store_dwordx4 {q(RWR+4)}, v100, {WS}, s15 offen offset:1024 sc1""")
        seq.extend(["s"]*2)
    st.mark("lw")
    repack_all()
    st.mark("lwp")
    if RP == 0: issue1(a, 1); seq += ["F1"]*6
    if RP < 2: issue1(a, 2); seq += ["F2"]*6
    if F3E and RP < 3: issue1(a, 3); seq += ["F3"]*6
    if QPF:
        a("""s_and_b32 s22, s49, 3
        s_lshl2_add_u32 s22, s22, s58
        s_lshl_b32 s22, s22, 5
        v_add_u32 v110, s22, v0
        v_mul_u32_u24 v110, 3072, v110
        s_lshl_b32 s22, s51, 7
        s_mov_b32 exec_hi, 0
        buffer_load_dword v111, v110, s[32:35], s22 offen
        s_mov_b32 exec_hi, -1"""); seq.append("p")
    if B2POS == 0: b2_consts()
    st.mark("lconst")
    for c in range(8):
        n = younger(f"F{c}")
        if c == SIG1: n = min(n, younger("g"))
        a(f"s_waitcnt vmcnt({n})")
        if c == SIG1: a(f"s_cmp_eq_u32 s58, 0\ns_cbranch_scc0 L_GOD\ns_mov_b64 exec, 3\nL_GO:\nv_cmp_gt_u32 vcc, {nclr()//2}, v204\ns_cbranch_vccnz L_GORE\ns_mov_b64 exec, -1\nL_GOD:")
        a("s_barrier")
        st.mark(f"lf{c}")
        if c == GPOS: a("s_mov_b64 exec, 3\nbuffer_load_dword v204, v249, s[44:47], s17 offen sc1\ns_mov_b64 exec, -1"); seq += ["g"]
        if F3E <= c < 5: issue1(a, c+3); seq += [f"F{c+3}"]*6
        if c == 5: a("s_sub_u32 s61, s61, 1024")
        if c >= 5: issue2(a, c-5); seq += [f"F{c+3}"]*4
        if c == OPF: opf()
    def arrive(k):
        a(f"s_waitcnt vmcnt({younger('F%d' % k)})"); lds_signal(a, k); st.mark(f"la{k}")
    def h1(): a(f"s_mov_b64 exec, 0xffff\nbuffer_load_dword v205, v250, {WS}, s17 offen sc1\ns_mov_b64 exec, -1"); seq.append("h")
    def late_pf():
        if W67 and RCL:
            a("s_cmp_lt_u32 s13, 288\ns_cbranch_scc1 L_R67" if not TFIRST else "s_cmp_lt_u32 s56, 201\ns_cbranch_scc1 L_R67")
            wo_dma((6, 7)); seq.extend(["p"]*4)
            a("L_R68:")
        elif W67: wo_dma((6, 7)); seq.extend(["p"]*4)
        if OPF == 9: opf()
    def reducer():
        R0 = 160
        a("s_cmp_lt_u32 s13, 288\ns_cbranch_scc0 L_NORED\nL_RED:\ns_mov_b32 s22, s8")
        for t in range(8):
            a(f"buffer_load_dword v{R0+t}, v193, {WS}, s22 offen sc1")
            if t < 7: a("s_add_u32 s22, s22, s9")
        a(f"""s_waitcnt vmcnt(0)
        v_max3_u32 v1, v{R0}, v{R0+1}, v{R0+2}
        v_max3_u32 v{R0+8}, v{R0+3}, v{R0+4}, v{R0+5}
        v_max3_u32 v1, v1, v{R0+6}, v{R0+7}
        v_max_u32 v1, v1, v{R0+8}
        v_cmp_eq_u32 vcc, -1, v1
        s_cbranch_vccnz L_REDRE""")
        for t in range(8): a(f"v_lshlrev_b32 v{R0+8+2*t}, 16, v{R0+t}\nv_and_b32 v{R0+9+2*t}, s11, v{R0+t}")
        for st_ in (8, 4, 2):
            for t in range(0, st_, 2): a(f"v_pk_add_f32 {d(R0+8+t)}, {d(R0+8+t)}, {d(R0+8+t+st_)}")
        for sw in ("32", "16"):
            a(f"""v_mov_b32 v{R0+10}, v{R0+8}
            v_mov_b32 v{R0+11}, v{R0+9}
            v_permlane{sw}_swap_b32 v{R0+8}, v{R0+10}
            v_permlane{sw}_swap_b32 v{R0+9}, v{R0+11}
            v_pk_add_f32 {d(R0+8)}, {d(R0+8)}, {d(R0+10)}""")
        a(f"""v_cvt_pk_bf16_f32 v{R0+8}, v{R0+8}, v{R0+9}
        v_cndmask_b32 v{R0+8}, v{R0+9}, v{R0+8}, s[14:15]
        v_min_u32 v{R0+8}, -2, v{R0+8}
        s_mov_b64 exec, 0xffff
        buffer_store_dword v{R0+8}, v193, {WS}, s10 offen sc1
        s_mov_b64 exec, 1
        ds_add_u32 v254, v255 offset:{4*K_RD}
        s_mov_b64 exec, -1
        L_NORED:""")
        st.mark("lred")
    arrive(8)
    if PFB == 3: late_pf()
    lds_wait(a, K_C7, "L_C7A", LSLP)
    a(f"ds_read_b32 v1, v254 offset:{4*K_TASK}")
    issue2(a, 3); seq += ["F11"]*4
    a(f"""s_waitcnt lgkmcnt(0)
    v_readfirstlane_b32 s56, v1
    s_lshl_b32 s20, s56, 14
    s_add_u32 s20, s20, s64
    s_sub_u32 s13, s56, 129
    s_lshl2_add_u32 s13, s13, s58
    s_mul_i32 s22, s13, 7282
    s_lshr_b32 s22, s22, 16
    s_mul_i32 s23, s22, 9
    s_sub_u32 s23, s13, s23
    s_lshl_b32 s8, s22, 14
    s_lshl_b32 s9, s23, 6
    s_add_u32 s8, s8, s9
    s_add_u32 s8, s8, {KVP_OFF}
    s_lshl_b32 s9, s22, 11
    s_lshl_b32 s10, s23, 7
    s_add_u32 s10, s10, s9
    s_add_u32 s10, s10, {KVF_OFF}
    s_add_u32 s9, s9, {ZP_OFF}
    s_cmp_lt_u32 s23, 8
    s_cselect_b32 s8, s8, s9
    s_cselect_b32 s11, 0xffff0000, -1
    s_cselect_b32 s12, 9, 6
    s_cselect_b64 s[14:15], -1, 0
    s_lshl_b32 s9, 4, s12
    v_lshlrev_b32 v193, s12, v3
    v_lshl_add_u32 v193, v2, 2, v193""")
    for k in (9, 10, 11):
        arrive(k)
        if HPOS == k - 9:
            h1()
            if not PFB: late_pf()
    st.mark("lq3")
    if PFB == 2: late_pf()
    if PFB == 1:
        a("s_cmp_gt_u32 s56, 128\ns_cbranch_scc0 L_NOPF2")
        sv = list(seq); late_pf(); seq[:] = sv
        a("L_NOPF2:")
    a(f"""s_cmp_eq_u32 s58, 0
    s_cbranch_scc0 L_H1OK
    s_waitcnt vmcnt({younger('h')})
    s_mov_b64 exec, 0xffff
    L_H1:
    v_and_b32 v1, 0xffff, v205
    v_cmp_ne_u32 vcc, 16, v1
    s_cbranch_vccnz L_H1RE
    v_cmp_ne_u32 vcc, 16, v205
    v_mov_b32 v1, vcc_lo
    s_mov_b64 exec, 1
    ds_write_b32 v254, v1 offset:{4*K_MODE}
    ds_add_u32 v254, v207 offset:{4*K_H1}
    s_mov_b64 exec, -1
    L_H1OK:
    s_setprio {LPRIO}""")
    if RPOS == 0: reducer()
    a("""s_cmp_gt_u32 s56, 128
    s_cbranch_scc1 L_NOT""")
    lds_wait(a, K_H1, "L_H1W", LSLP)
    st.mark("lh1")
    for j in range(4):
        for r in range(4): a(f"buffer_load_dword v{OP+j*4+r}, v248, {WS}, s20 offen offset:{j*1024+r*256} {TFL}")
    a(f"s_add_u32 s23, s20, {WP_OFF}")
    for j in range(4): a(f"buffer_load_dwordx4 {q(WPK+4*j)}, v7, {WS}, s23 offen offset:{j*1024} {TFL}")
    npf = 0
    if TFIRST: wo_dma((6, 7)); npf = 4
    if PFB == 1: n0 = len(seq); late_pf(); npf = len(seq) - n0
    if B2POS == 1: b2_consts()
    a("L_NOT:")
    if RPOS == 1: reducer()
    def b3blk():
        a(f"""s_setprio 0
        s_lshl_b32 s61, s58, 19
        s_add_u32 s61, s61, s53
        s_add_u32 s68, s61, 0x40000
        s_add_u32 s63, s53, {128*16384}
        v_lshrrev_b32 v249, 2, v0
        v_lshlrev_b32 v249, 14, v249
        v_and_b32 v250, 3, v0
        v_lshl_add_u32 v249, v250, 4, v249
        v_add_u32 v250, s62, v7
        v_add_u32 v250, {EB}, v250""")
        b3_consts()
        a("""s_lshl_b32 s65, s67, 11
        s_add_u32 s65, s65, 1024
        s_add_u32 s66, s65, 0x80000""")
        st.mark("lb3c")
        a(f"v_add_u32 v10, {EB}, v10")
    if B2POS == 0: b3blk()
    a("s_cmp_gt_u32 s56, 128")
    if W67:
        if TFIRST:
            a("s_cbranch_scc0 L_W67\ns_waitcnt vmcnt(0)")
            lds_signal(a, K_W67)
            a("L_W67:")
        else:
            a("s_cbranch_scc0 L_W67\ns_waitcnt vmcnt(0)\nL_W67:\ns_waitcnt vmcnt(20)")
            lds_signal(a, K_W67)
    a(f"s_cbranch_scc1 L_NOB2\ns_setprio {LPRIO}")
    def exchange(vw, vr, k, lbl):
        for j in range(4):
            for i in range(4): a(f"v_cvt_pk_bf16_f32 v{PK+4*i+j}, v{AC+j*8+i}, v{AC+j*8+4+i}")
        if k == K_E2: lds_wait(a, K_G0, "L_XW")
        for i in range(4):
            if k == K_E1 and i == 3: a("s_mov_b32 exec_hi, s16")
            a(f"ds_write_b128 {vw}, {q(PK+4*i)} offset:{i*1024}")
        lds_signal(a, k)
        if k == K_E1 and PREU:
            a(f"s_waitcnt vmcnt({npf})")
            for kk in range(16): a(f"v_lshlrev_b32 v{16+(kk>>2)*8+(kk&3)}, 16, v{WPK+kk}\nv_and_b32 v{20+(kk>>2)*8+(kk&3)}, s15, v{WPK+kk}")
        if k == K_E2 and TFIRST: a("s_waitcnt vmcnt(0)"); lds_signal(a, K_W67)
        lds_wait(a, k, lbl)
        for j in range(4):
            if k == K_E1 and j == 3:
                for r in range(4): a(f"v_mov_b32 v{OP+12+r}, v{PK+12+r}")
                a("s_mov_b32 exec_hi, s16")
            a(f"ds_read_b128 {q(OP+4*j)}, {vr} offset:{j*1024}")
        a("s_mov_b32 exec_hi, -1")
    def stage_w(consts):
        for j in range(4):
            a(f"s_waitcnt lgkmcnt({3-j})")
            for c in range(2): a(f"{MF} {q(AC+(j*2+c)*4)}, {q(consts(j)+4*c)}, {q(OP+4*j)}, 0")
    for j in range(4):
        a(f"s_waitcnt vmcnt({16-4*j+npf})")
        for c in range(2): a(f"{MF} {q(AC+(j*2+c)*4)}, {q(CA+8*j+4*c)}, {q(OP+4*j)}, 0")
    st.mark("lt")
    exchange("v251", "v252", K_E1, "L_E1")
    st.mark("b2x1")
    stage_w(lambda j: CB)
    a(f"s_waitcnt vmcnt({npf})\nL_WPOK:")
    for j in range(4):
        xr = AC + j*8; xi = xr + 4; t = T0 + (j & 1)*8; wr = WRI + (j & 1)*8; wi = wr + 4
        if PREU: wr = 16 + 8*j; wi = wr + 4
        else:
            for i in range(4): a(f"v_lshlrev_b32 v{wr+i}, 16, v{WPK+4*j+i}\nv_and_b32 v{wi+i}, 0xffff0000, v{WPK+4*j+i}")
        for h in (0, 2):
            a(f"v_pk_mul_f32 {d(t+h)}, {d(xr+h)}, {d(wr+h)}")
            a(f"v_pk_mul_f32 {d(t+4+h)}, {d(xi+h)}, {d(wr+h)}")
        for h in (0, 2):
            a(f"v_pk_fma_f32 {d(t+h)}, {d(xi+h)}, {d(wi+h)}, {d(t+h)} neg_lo:[1,0,0] neg_hi:[1,0,0]")
            a(f"v_pk_fma_f32 {d(t+4+h)}, {d(xr+h)}, {d(wi+h)}, {d(t+4+h)}")
        for i in range(4): a(f"v_cvt_pk_bf16_f32 v{OP+4*j+i}, v{t+i}, -v{t+4+i}")
        if j > 0:
            for c in range(2): a(f"{MF} {q(AC+((j-1)*2+c)*4)}, {q(CA+8*(j-1)+4*c)}, {q(OP+4*(j-1))}, 0")
    for c in range(2): a(f"{MF} {q(AC+(6+c)*4)}, {q(CA+24+4*c)}, {q(OP+12)}, 0")
    exchange("v200", "v201", K_E2, "L_E2")
    st.mark("b2x2")
    stage_w(lambda j: CB)
    for j in range(4):
        for i in range(4):
            a(f"v_cvt_pk_bf16_f32 v{PK+j*4+i}, v{AC+j*8+i}, -v{AC+j*8+4+i}")
            a(f"v_or_b32 v{PK+j*4+i}, 1, v{PK+j*4+i}")
            a(f"buffer_store_dword v{PK+j*4+i}, v248, {WS}, s20 offen offset:{j*1024+i*256} sc1")
    st.mark("lb2")
    a("L_NOB2:")
    if B2POS == 1: b3blk()
    a(f"s_setprio {UPRIO}")
    if UGATE == 1: lds_wait(a, K_OI, "L_H2G", 1)
    if UGATE >= 2: lds_wait(a, K_CO, "L_H2G", 1 if UGATE == 2 else 0)
    st.mark("lul")
    a(f"""L_UL:
    buffer_load_dwordx4 {q(AC1)}, v249, {WS}, s61 offen sc1
    buffer_load_dwordx4 {q(AC1+4)}, v249, {WS}, s68 offen sc1
    buffer_load_dword v9, v15, {WS}, s63 offen sc1
    buffer_load_dword v8, v15, {WS}, s63 offen offset:32 sc1
    s_waitcnt vmcnt(3)
    ds_write_b128 v250, {q(AC1)}
    v_and_b32 v1, v{AC1}, v{AC1+1}
    v_and_b32 v12, v{AC1+2}, v{AC1+3}
    s_waitcnt vmcnt(2)
    ds_write_b128 v250, {q(AC1+4)} offset:1024
    v_and_b32 v1, v1, v{AC1+4}
    v_and_b32 v12, v12, v{AC1+5}
    v_and_b32 v1, v1, v{AC1+6}
    v_and_b32 v12, v12, v{AC1+7}
    s_waitcnt vmcnt(0)
    v_and_b32 v1, v1, v8
    v_and_b32 v12, v12, v9
    v_and_b32 v1, v1, v12
    v_and_b32 v1, 1, v1
    v_cmp_eq_u32 vcc, 0, v1
    s_cbranch_vccnz L_URE""")
    st.mark("lua")
    lds_signal(a, K_U); lds_wait(a, K_U, "L_UW")
    for v in range(4):
        for t in range(2): a(f"ds_read_b128 {q(DAT+(v*2+t)*4)}, v10 offset:{t*4096+v*256}")
    a(f"""s_waitcnt vmcnt(0)
    v_lshlrev_b32 v8, 16, v8
    v_and_b32 v12, 0xffff0000, v9
    v_lshlrev_b32 v9, 16, v9
    v_mul_f32 v8, {fhex(2.0**-20)}, v8
    v_mul_f32 v9, v9, v13
    v_fma_f32 v9, -v12, v14, v9
    v_add_f32 v{INI}, v9, v8
    v_sub_f32 v{INI+1}, v9, v8
    v_add_f32 v{INI+2}, v9, v8
    v_sub_f32 v{INI+3}, v9, v8
    v_sub_f32 v{INI+4}, v8, v9
    v_sub_f32 v{INI+5}, -v9, v8
    v_sub_f32 v{INI+6}, v8, v9
    v_sub_f32 v{INI+7}, -v9, v8""")
    for v in range(4):
        for t in range(2):
            b = DAT + (v*2+t)*4
            a(f"s_waitcnt lgkmcnt({7-(v*2+t)})")
            cs = C1 + (16 if t else 8*(v >> 1))
            for c in range(2):
                acc = AC1 + (v*2+c)*4
                a(f"{MF} {q(acc)}, {q(b)}, {q(cs+4*c)}, {q(acc) if t else 0}")
    st.mark("luok")
    for v in range(4):
        for i in range(4): a(f"v_cvt_pk_bf16_f32 v{OP2+i*4+v}, v{AC1+v*8+i}, v{AC1+v*8+4+i}")
    for i in range(4):
        for c in range(2): a(f"{MF} {q(AC2+(i*2+c)*4)}, {q(OP2+i*4)}, {q(C2+4*c)}, 0")
    for i in range(4):
        xr = AC2 + i*8; xi = xr + 4; t0 = TMP + (i & 1)*8
        for ph in range(2):
            sel = "op_sel:[0,1] op_sel_hi:[1,1]" if ph else "op_sel_hi:[1,0]"
            a(f"v_pk_mul_f32 {d(t0+2*ph)}, {d(xr+2*ph)}, {d(TWC+2*i)} {sel}")
            a(f"v_pk_mul_f32 {d(t0+4+2*ph)}, {d(xi+2*ph)}, {d(TWC+2*i)} {sel}")
        for ph in range(2):
            sel = "op_sel:[0,1,0] op_sel_hi:[1,1,1]" if ph else "op_sel_hi:[1,0,1]"
            a(f"v_pk_fma_f32 {d(t0+2*ph)}, {d(xi+2*ph)}, {d(TWS+2*i)}, {d(t0+2*ph)} {sel} neg_lo:[1,0,0] neg_hi:[1,0,0]")
            a(f"v_pk_fma_f32 {d(t0+4+2*ph)}, {d(xr+2*ph)}, {d(TWS+2*i)}, {d(t0+4+2*ph)} {sel}")
        for ph in range(2):
            for rho in range(2):
                a(f"v_cvt_pk_bf16_f32 v{OP3+(rho*2+(i>>1))*4+(i&1)*2+ph}, v{t0+2*ph+rho}, v{t0+4+2*ph+rho}")
    for kap in range(2):
        for rho in range(2):
            for th in range(2):
                acc = AC3 + (rho*2+th)*4
                a(f"{MF} {q(acc)}, {q(OP3+(rho*2+kap)*4)}, {q(C3+kap*8+th*4)}, {q(acc) if kap else q(INI+4*rho)}")
    for rho in range(2):
        for th in range(2):
            acc = AC3 + (rho*2+th)*4; o = OUT + (rho*2+th)*2
            a(f"v_cvt_pk_bf16_f32 v{o}, v{acc}, v{acc+1}\nv_cvt_pk_bf16_f32 v{o+1}, v{acc+2}, v{acc+3}")
            a(f"buffer_store_dwordx2 {d(o)}, v11, s[40:43], s{65+rho} offen offset:{th*512} {YFL.replace('_', ' ')}")
    st.mark("lend")
    st.dump()
    a("s_endpgm")

def c_main(a, st):
    C1, C2, TWC, TWS, C3A, C3B, DAT, AC1, OP2, AC2 = 16, 48, 64, 80, 96, 104, 112, 144, 160, 168
    OP3, TMP, AC3, ACE, OUT, MSK = 112, 128, 144, 160, 200, 228
    a(f"C_MAIN:\ns_setprio {CPRIO}")
    common_setup(a, st, -1)
    a(f"""s_lshl_b32 s60, s3, 8
    s_mul_i32 s61, s2, s3
    s_add_u32 s59, s61, 512
    s_cmp_eq_u32 s3, 0
    s_cselect_b32 s62, 1024, s60
    s_cselect_b32 s59, 0, s59
    s_cselect_b32 s58, s2, 0
    s_cselect_b32 s65, 0, 0xbe800000
    s_cselect_b64 s[66:67], -1, 0
    v_and_b32 v14, 1, v0
    v_cmp_eq_u32 vcc, 1, v14
    v_mov_b32 v4, 0xffff
    v_mov_b32 v5, 0xffff0000
    v_cndmask_b32 v14, v4, v5, vcc""")
    for r in range(4): a(f"v_cmp_eq_u32 vcc, {r}, v15\nv_cndmask_b32 v{MSK+r}, 0, v14, vcc")
    a(f"""v_lshrrev_b32 v10, 5, v0
    v_mov_b32 v11, s61
    v_mov_b32 v12, s59
    v_mad_u32_u24 v11, v10, s60, v11
    v_mad_u32_u24 v12, v10, s62, v12
    v_cvt_f32_u32 v11, v11
    v_cvt_f32_u32 v12, v12
    v_cvt_f32_u32 v13, s60
    v_cvt_f32_u32 v14, s62
    v_mul_f32 v11, {fhex(1/2048)}, v11
    v_mul_f32 v12, {fhex(1/2048)}, v12
    v_mul_f32 v13, {fhex(2/2048)}, v13
    v_mul_f32 v14, {fhex(2/2048)}, v14""")
    for t in range(4):
        for c in range(2):
            b = C1 + (t*2 + c)*4
            a(f"v_cos_f32 v{b+3}, v{11+c}")
            if t < 3: a(f"v_add_f32 v{11+c}, v{11+c}, v{13+c}")
            a(f"v_cvt_pk_bf16_f32 v{b+3}, v{b+3}, v{b+3}")
            for r in range(4): a(f"v_and_b32 v{b+r}, v{b+3}, v{MSK+r}")
    a(f"v_mul_f32 v10, {fhex(1/32)}, v8\nv_mul_f32 v11, 4.0, v9\nv_mul_f32 v12, v11, v10")
    for i in range(4):
        a(f"v_cos_f32 v{TMP+i}, v12\nv_sin_f32 v{TMP+4+i}, v12")
        if i < 3: a("v_add_f32 v12, v12, v10")
    a("v_lshlrev_b32 v13, 31, v0\nv_lshrrev_b32 v14, 16, v13\nv_or_b32 v13, v13, v14")
    a(f"""v_cvt_pk_bf16_f32 v{C2}, v{TMP}, v{TMP+1}
    v_cvt_pk_bf16_f32 v{C2+1}, v{TMP+2}, v{TMP+3}
    v_cvt_pk_bf16_f32 v{C2+4}, -v{TMP+4}, -v{TMP+5}
    v_cvt_pk_bf16_f32 v{C2+5}, -v{TMP+6}, -v{TMP+7}
    s_brev_b32 s68, 1""")
    for c in range(2):
        b = C2 + 4*c
        a(f"v_xor_b32 v{b+2}, v{b}, v13\nv_xor_b32 v{b+3}, v{b+1}, v13")
        for r in range(4): a(f"v_xor_b32 v{b+8+r}, s68, v{b+r}")
    a("v_add_f32 v10, v10, v10\nv_mul_f32 v12, v11, v10")
    a("""v_cmp_gt_u32 vcc, 8, v2
    s_andn2_b64 s[22:23], s[66:67], vcc
    s_and_b64 s[66:67], s[66:67], vcc
    v_cndmask_b32 v13, -1, 0, s[22:23]
    v_cndmask_b32 v14, -1, 0, s[66:67]""")
    for i in range(4):
        a(f"""v_cos_f32 v{TMP}, v12
        v_sin_f32 v{TMP+1}, v12
        v_add_f32 v15, s65, v12
        v_cos_f32 v{TMP+2}, v15
        v_sin_f32 v{TMP+3}, v15""")
        if i < 3: a("v_add_f32 v12, v12, v10")
        a(f"""v_cvt_pk_bf16_f32 v{C3A+i}, v{TMP}, v{TMP+1}
        v_cvt_pk_bf16_f32 v{C3A+4+i}, -v{TMP+1}, v{TMP}
        v_cvt_pk_bf16_f32 v{C3B+i}, v{TMP+2}, v{TMP+3}
        v_cvt_pk_bf16_f32 v{C3B+4+i}, -v{TMP+3}, v{TMP+2}""")
    for r in range(8): a(f"v_and_b32 v{C3A+r}, v{C3A+r}, v13\nv_and_b32 v{C3B+r}, v{C3B+r}, v14")
    a(f"""s_cmp_lt_u32 s52, {nclr()}
    s_cbranch_scc0 C_NOGO
    s_and_b32 s22, s52, 1
    s_lshl_b32 s22, s22, 7
    s_mov_b64 exec, 1
    s_waitcnt vmcnt(2)
    buffer_atomic_add v255, v7, s[44:47], s22 offen sc1
    s_mov_b64 exec, -1
    s_waitcnt vmcnt(1)
    s_mov_b32 s52, 0
    C_NOGO:""")
    a(f"v_cvt_f32_u32 v14, s58\nv_mul_f32 v14, {fhex(1/512)}, v14")
    for tau in range(2):
        a(f"v_mul_f32 v10, {fhex(1/512)}, v8")
        if tau: a(f"v_add_f32 v10, {fhex(16/512)}, v10")
        a("v_mul_f32 v12, v11, v10")
        for i in range(4):
            k0 = tau*4 + i; k1 = 8 + k0
            a(f"""v_cos_f32 v{TWC+k0}, v12
            v_sin_f32 v{TWS+k0}, v12
            v_add_f32 v15, v12, v14
            v_cos_f32 v{TWC+k1}, v15
            v_sin_f32 v{TWS+k1}, v15""")
            if i < 3: a("v_add_f32 v12, v12, v10")
    a(f"""v_lshrrev_b32 v14, 5, v0
    v_lshlrev_b32 v10, 10, v14
    v_lshl_add_u32 v10, v2, 5, v10
    v_and_b32 v12, 16, v0
    v_add_u32 v10, v10, v12
    v_add_u32 v10, {BXB}, v10""")
    a(f"""v_lshlrev_b32 v11, 16, v3
    v_lshl_add_u32 v11, v2, 2, v11
    v_and_b32 v12, 6, v2
    v_xor_b32 v12, v12, v3
    v_lshlrev_b32 v12, 4, v12
    v_lshl_add_u32 v4, v2, 7, v12
    v_add_u32 v4, {XB}, v4
    v_xor_b32 v5, 64, v4
    v_bfe_u32 v12, v0, 2, 3
    v_bfe_u32 v13, v0, 1, 1
    v_and_b32 v15, 6, v12
    v_xor_b32 v13, v13, v15
    v_lshlrev_b32 v13, 4, v13
    v_lshl_add_u32 v13, v12, 7, v13
    v_and_b32 v15, 1, v0
    v_lshl_add_u32 v13, v15, 3, v13
    s_lshl_b32 s22, s3, 5
    v_xor_b32 v13, s22, v13
    v_lshl_add_u32 v6, v14, 12, v13
    v_lshl_add_u32 v8, v14, 11, v13
    v_lshlrev_b32 v9, 8, v14
    v_lshl_add_u32 v9, v2, 4, v9
    s_and_b32 s60, s2, 15
    s_lshl_b32 s60, s60, 4
    s_bfe_u32 s61, s2, 0x20004
    s_lshl2_add_u32 s60, s61, s60
    s_lshr_b32 s61, s2, 6
    s_add_u32 s60, s60, s61
    s_lshl_b32 s60, s60, 6
    s_lshl_b32 s61, s3, 19
    s_add_u32 s61, s61, s60
    s_add_u32 s60, s60, {128*16384}
    s_lshl2_add_u32 s53, s51, s3
    s_lshl_b32 s58, s53, 14
    s_add_u32 s58, s58, {KVP_OFF}
    s_lshl_b32 s59, s53, 11
    s_add_u32 s59, s59, {ZP_OFF}
    s_lshl_b32 s63, s50, 9
    s_add_u32 s63, s63, s58
    s_lshl_b32 s64, s50, 6
    s_add_u32 s64, s64, s59
    s_getreg_b32 s23, hwreg(HW_REG_XCC_ID)
    s_and_b32 s23, s23, 15
    s_cmp_eq_u32 s23, {'s48' if not FORCESLOW else '15'}
    s_cselect_b32 s23, 1, 0x10001
    v_mov_b32 v240, s23
    s_cmp_eq_u32 s3, 0
    s_cselect_b32 s18, {SIG1-1}, -1
    v_lshlrev_b32 v241, 2, v2
    v_lshl_add_u32 v13, v14, 5, v241
    s_mov_b32 s22, 0x3f803f80
    v_mov_b32 v232, s22
    v_mov_b32 v233, s22
    v_mov_b32 v234, s22
    v_mov_b32 v235, s22
    s_mov_b32 s66, {fhex(1.4426950408889634)}
    s_mov_b32 s67, s66
    s_mov_b32 s65, {fhex(1e-6)}
    s_mov_b64 s[36:37], s[8:9]
    s_mov_b32 s38, 0x80000
    s_mov_b32 s39, s31
    s_lshl_b32 s21, s3, 14
    s_lshl_b32 s22, s55, 7
    s_add_u32 s21, s21, s22
    v_lshrrev_b32 v242, 3, v0
    v_and_b32 v243, 7, v0
    v_and_b32 v230, 6, v242
    v_xor_b32 v243, v243, v230
    v_lshlrev_b32 v243, 4, v243
    v_and_b32 v230, 4, v242
    v_add_u32 v242, v242, v230
    v_lshl_add_u32 v242, v242, 10, v243
    v_lshlrev_b32 v243, 4, v3
    v_lshrrev_b32 v231, 2, v2
    v_lshl_add_u32 v231, v14, 2, v231
    v_lshlrev_b32 v231, 7, v231
    v_and_b32 v230, 3, v2
    v_lshl_add_u32 v231, v230, 4, v231
    v_and_b32 v230, 1, v3
    v_lshl_add_u32 v231, v230, 3, v231""")
    st.mark("cconst")
    a("s_cmp_eq_u32 s52, 0\ns_cbranch_scc1 C_BXOK\ns_waitcnt vmcnt(0)\nC_BXOK:")
    lds_signal(a, K_BX)
    lds_wait(a, K_BX, "C_BXW")
    st.mark("cbx")
    for u in range(2):
        for t in range(4): a(f"ds_read_b128 {q(DAT+(u*4+t)*4)}, v10 offset:{t*2048+u*512}")
    for u in range(2):
        for t in range(4):
            a(f"s_waitcnt lgkmcnt({7-(u*4+t)})")
            for c in range(2):
                acc = AC1 + (u*2+c)*4
                a(f"{MF} {q(acc)}, {q(DAT+(u*4+t)*4)}, {q(C1+(t*2+c)*4)}, {q(acc) if t else 0}")
    for u in range(2):
        for rho in range(2):
            s = AC1 + (u*2+rho)*4
            a(f"v_cvt_pk_bf16_f32 v{OP2+rho*4+u*2}, v{s}, v{s+1}\nv_cvt_pk_bf16_f32 v{OP2+rho*4+u*2+1}, v{s+2}, v{s+3}")
    for rho in range(2):
        for tau in range(2):
            for c in range(2): a(f"{MF} {q(AC2+((rho*2+tau)*2+c)*4)}, {q(OP2+rho*4)}, {q(C2+(tau*2+c)*4)}, 0")
    def st3(rho, tau):
        for c in range(2):
            acc = AC3 + (tau*2+c)*4
            a(f"{MF} {q(acc)}, {q((C3B if rho else C3A)+4*c)}, {q(OP3+(rho*2+tau)*4)}, {q(acc) if rho else 0}")
        if tau == 0:
            for c in range(2):
                acc = ACE + 4*c
                a(f"{MF} {q(acc)}, {q((C3A if rho else C3B)+4*c)}, {q(OP3+(rho*2)*4)}, {q(acc) if rho else 0}")
    prev = None
    for rho in range(2):
        for tau in range(2):
            xr = AC2 + ((rho*2+tau)*2)*4; xi = xr + 4; k = rho*8 + tau*4
            t0 = TMP + ((rho*2+tau) & 1)*8
            for h in (0, 2):
                a(f"v_pk_mul_f32 {d(t0+h)}, {d(xr+h)}, {d(TWC+k+h)}")
                a(f"v_pk_mul_f32 {d(t0+4+h)}, {d(xi+h)}, {d(TWC+k+h)}")
            if prev: st3(*prev)
            for h in (0, 2):
                a(f"v_pk_fma_f32 {d(t0+h)}, {d(xi+h)}, {d(TWS+k+h)}, {d(t0+h)}")
                a(f"v_pk_fma_f32 {d(t0+4+h)}, {d(xr+h)}, {d(TWS+k+h)}, {d(t0+4+h)} neg_lo:[1,0,0] neg_hi:[1,0,0]")
            for i in range(4): a(f"v_cvt_pk_bf16_f32 v{OP3+(rho*2+tau)*4+i}, v{t0+i}, v{t0+4+i}")
            prev = (rho, tau)
    st3(*prev)
    st.mark("cb1")
    for tau in range(2):
        for i in range(4): a(f"v_cvt_pk_bf16_f32 v{OUT+tau*4+i}, v{AC3+tau*8+i}, v{AC3+tau*8+4+i}")
    a(f"v_cvt_pk_bf16_f32 v14, v{ACE}, v{ACE+4}")
    for k in range(8): a(f"v_and_b32 v{OUT+k}, -2, v{OUT+k}")
    a("v_and_b32 v14, -2, v14")
    AK, AV, AQ = 144, 160, 112
    for r in range(0, 32, 2): a(f"v_pk_mul_f32 {d(AK+r)}, {d(232)}, 0")
    if TPOS == 0: a("s_branch C_TST\nC_TRET:")
    st.mark("cst")
    SET = [0]
    XF = lambda ks, R: 16 + SET[0]*48 + (ks*4 + R)*4
    WF = lambda ks, p: 48 + SET[0]*48 + (ks*2 + p)*4
    def reads(ks):
        L = []
        o = SET[0]
        def w(p):
            for eta in range(2): L.append(f"ds_read_b64_tr_b16 {d(WF(ks,p)+2*eta)}, v6 offset:{o*16384 + (4*ks+eta)*2048 + p*1024}")
        w(0)
        for R in range(4): L.append(f"ds_read_b128 {q(XF(ks,R))}, v{4+ks} offset:{o*8192 + R*2048}")
        w(1)
        return L
    def mf(ks, p): return [f"{MF} {q(AK+(p*4+R)*4)}, {q(XF(ks,R))}, {q(WF(ks,p))}, {q(AK+(p*4+R)*4)}" for R in range(4)]
    def chunk(newset, extra=""):
        SET[0] = 1 - newset; M = mf(0, 0) + mf(0, 1) + mf(1, 0) + mf(1, 1)
        SET[0] = newset; Rd = reads(0) + reads(1)
        k = 0
        for i, m in enumerate(M):
            a(m)
            for _ in range(RPM):
                if Rd:
                    if k == 14: a("s_waitcnt lgkmcnt(8)")
                    a(Rd.pop(0)); k += 1
            if i == 11: a(extra)
        a("s_waitcnt lgkmcnt(0)")
    adv = "v_add_u32 v4, 0x4000, v4\nv_add_u32 v5, 0x4000, v5\nv_xor_b32 v6, 0x8000, v6"
    a("s_mov_b32 s68, 1\ns_barrier")
    st.mark("cf0")
    SET[0] = 0
    for k, r in enumerate(reads(0) + reads(1)):
        if k == 14: a("s_waitcnt lgkmcnt(8)")
        a(r)
    a("s_waitcnt lgkmcnt(0)\nC_LOOP:\ns_barrier")
    assert TPOS in (0, 1) and SIG1 in (4, 6)
    chunk(1, adv)
    if TPOS == 1: a("s_cmp_eq_u32 s68, 1\ns_cbranch_scc1 C_TST\nC_TRET:")
    a(f"""s_cmp_lg_u32 s68, {SIG1-1}
    s_cbranch_scc1 C_NOW
    s_waitcnt vmcnt(0)
    C_NOW:
    s_barrier
    s_cmp_eq_u32 s68, s18
    s_cbranch_scc1 C_SIG
    C_MID:""")
    chunk(0, "s_add_u32 s68, s68, 2\ns_cmp_lt_u32 s68, 7")
    a("s_cbranch_scc1 C_LOOP")
    SET[0] = 0
    for m in mf(0, 0) + mf(1, 0): a(m)
    V6 = mf(0, 1) + mf(1, 1)
    SET[0] = 1
    a(f"""s_cmp_eq_u32 s3, 0
    s_cbranch_scc0 C_NOTK
    s_waitcnt vmcnt(0)
    v_readfirstlane_b32 s22, v240
    s_and_b32 s22, s22, 0xffff
    s_and_b32 s23, s2, 15
    s_lshl4_add_u32 s22, s22, s23
    {"" if DYN else "s_mov_b32 s22, s2"}
    v_mov_b32 v240, s22
    ds_write_b32 v254, v240 offset:{4*K_TASK}
    C_NOTK:
    s_barrier""")
    st.mark("cl1")
    R0, R1 = reads(0), reads(1)
    RR = R0[:6] + R1[:6]
    for i, m in enumerate(V6):
        for r in RR[2*i:2*i+2]: a(r)
        a(m)
    M = mf(0, 0)
    for i in range(4): a(f"s_waitcnt lgkmcnt({9-i})"); a(M[i])
    for r in R0[6:] + R1[6:]: a(r)
    M = mf(1, 0)
    for i in range(4): a(f"s_waitcnt lgkmcnt({7-i})"); a(M[i])
    a("s_waitcnt lgkmcnt(0)")
    lds_signal(a, K_C7)
    KP, VP, KV, ZZ, KO = 208, 216, 236, 244, 248
    MV = mf(0, 1) + mf(1, 1)
    for m in MV[:2]: a(m)
    MV = MV[2:]
    def phi_list(src, dst, tmp):
        L = []
        for g4 in range(0, 16, 4):
            L += [f"v_pk_mul_f32 {d(tmp+g4+h)}, {d(src+g4+h)}, s[66:67]" for h in (0, 2)]
        for h in range(16):
            L += [f"v_exp_f32 v{tmp+h}, v{tmp+h} clamp", f"v_max_f32 v{src+h}, s65, v{src+h}"]
        for h in range(0, 16, 2): L += [f"v_pk_add_f32 {d(src+h)}, {d(src+h)}, {d(tmp+h)}"]
        for h in range(8): L += [f"v_cvt_pk_bf16_f32 v{dst+h}, v{src+2*h}, v{src+2*h+1}"]
        return L
    P = phi_list(AK, KP, 128)
    V = [f"v_cvt_pk_bf16_f32 v{VP+h}, v{AV+2*h}, v{AV+2*h+1}" for h in range(8)]
    P = P[:40] + V + P[40:]
    for i, x in enumerate(P):
        a(x)
        if i % 2 == 1 and MV: a(MV.pop(0))
        if i == len(P) - 3: a(f"{MF} {q(KV)}, {q(KP)}, {q(VP)}, 0")
    a(f"""{MF} {q(ZZ)}, v[232:235], {q(KP)}, 0
    {MF} {q(KV)}, {q(KP+4)}, {q(VP+4)}, {q(KV)}
    {MF} {q(ZZ)}, v[232:235], {q(KP+4)}, {q(ZZ)}
    v_subrev_u32 v4, 0xc000, v4
    v_subrev_u32 v5, 0xc000, v5
    v_mov_b32 v11, v231
    s_lshl_b32 s58, s53, 11
    s_add_u32 s58, s58, {KVF_OFF}
    v_cvt_pk_bf16_f32 v{KO}, v{KV}, v{KV+1}
    v_cvt_pk_bf16_f32 v{KO+1}, v{KV+2}, v{KV+3}
    v_min_u32 v{KO+2}, -2, v{KO}
    v_min_u32 v{KO+3}, -2, v{KO+1}
    v_min_u32 v{KO}, -2, v{KO}
    v_min_u32 v{KO+1}, -2, v{KO+1}
    v_min_u32 v{ZZ}, -2, v{ZZ}
    v_permlane16_swap_b32 v{KO+1}, v{KO+3}
    v_permlane16_swap_b32 v{KO}, v{KO+2}
    s_mov_b32 exec_lo, 0xffff
    s_mov_b32 exec_hi, 0xffff
    buffer_store_dwordx4 {q(KO)}, v9, {WS}, s63 offen sc1
    s_mov_b32 exec_hi, 0
    buffer_store_dword v{ZZ}, v241, {WS}, s64 offen sc1
    s_mov_b64 exec, -1""")
    st.mark("t0")
    class LQ:
        def __init__(self): self.o = []; self.seen = set()
        def issue(self, txt, tag):
            if len(self.o) >= 15: self.drain(10)
            a(txt); self.o.append(tag); self.seen.add(tag)
        def drain(self, n):
            if len(self.o) > n: a(f"s_waitcnt lgkmcnt({n})"); self.o = self.o[len(self.o)-n:] if n else []
        def need(self, *tags):
            idx = [i for i, t in enumerate(self.o) if t in tags]
            if idx: self.drain(len(self.o) - 1 - max(idx))
    lq = LQ()
    XS = [16 + 16*k for k in range(6)] + [144 + 16*k for k in range(4)]
    xs = lambda s_: XS[s_ % NPRE]
    wq = lambda s_: (128 if (s_ >> 2) % 2 == 0 else 208) + 4*(s_ & 3)
    def xr(s_): return [(f"ds_read_b128 {q(xs(s_)+4*R)}, v{4+(s_&1)} offset:{(s_>>1)*8192 + R*2048}", f"x{s_}") for R in range(4)]
    def wr_(g_): return [(f"ds_read_b64_tr_b16 {d(wq(s_)+2*eta)}, v8 offset:{g_*16384 + ((s_>>1)&1)*8192 + (4*(s_&1)+eta)*1024}", f"w{s_}") for s_ in range(4*g_, 4*g_+4) for eta in range(2)]
    lq.issue(f"ds_read_b32 v253, v254 offset:{4*K_Q}", "c")
    for s_ in range(2):
        for t in xr(s_): lq.issue(*t)
    lq.need("c")
    a("v_cmp_ne_u32 vcc, 4, v253\ns_cbranch_vccnz C_QS0\nC_QR0:")
    st.mark("cq0")
    for t in wr_(0): lq.issue(*t)
    pend = []
    for s_ in range(2, NPRE): pend += xr(s_)
    for g_ in range(4):
        if g_ < 3: lq.issue(f"ds_read_b32 v253, v254 offset:{4*(K_Q+1+g_)}", "c")
        for s_ in range(4*g_, 4*g_+4):
            if s_ & 3 == 1 and g_ < 3:
                lq.need("c")
                a(f"v_cmp_ne_u32 vcc, 4, v253\ns_cbranch_vccnz C_QS{g_+1}\nC_QR{g_+1}:")
                st.mark(f"cq{g_+1}")
                pend += wr_(g_+1)
            while any(t[1] in (f"x{s_}", f"w{s_}") for t in pend): lq.issue(*pend.pop(0))
            lq.need(f"x{s_}", f"w{s_}")
            if s_ == 4: lq.issue(f"s_mov_b64 exec, 1\nds_add_u32 v254, v255 offset:{4*K_G0}\ns_mov_b64 exec, -1", "a")
            if s_ >= 1 and s_ - 1 + NPRE < 16: pend += xr(s_ - 1 + NPRE)
            for R in range(4):
                a(f"{MF} {q(AQ+R*4)}, {q(wq(s_))}, {q(xs(s_)+4*R)}, {q(AQ+R*4) if s_ else 0}")
                for _ in range(2):
                    if pend: lq.issue(*pend.pop(0))
    assert not lq.o and not pend
    st.mark("cp2")
    QP, PP, ZL = 96, 16, 80
    def pl(p0, p1, fl):
        for p in range(p0, p1):
            if p % 2 == 0: a(f"s_add_u32 s22, s60, {p*1024}\ns_and_b32 s22, s22, 0x3fff\ns_add_u32 s22, s22, s58")
            a(f"buffer_load_dwordx4 {q(PP+4*p)}, v7, {WS}, s22 offen offset:{(p&1)*1024} {fl}")
    lds_signal(a, K_X)
    a(f"ds_read_b32 v1, v254 offset:{4*K_TASK}")
    for x in phi_list(AQ, QP, 128): a(x)
    lds_wait(a, K_X, "C_XW")
    def cwo(poss):
        for pos in poss:
            a(f"""s_add_u32 s5, s57, {(pos+2) & 7}
            s_and_b32 s5, s5, 7
            s_lshl_b32 s5, s5, 16
            s_add_u32 m0, s69, {XB + 16384 + pos*8192}
            s_add_u32 s5, s5, s21
            buffer_load_dwordx4 v242, s[36:39], s5 offen lds
            s_add_u32 s5, s5, 3072
            buffer_load_dwordx4 v242, s[36:39], s5 offen offset:1024 lds""")
    if RCL:
        a("v_readfirstlane_b32 s56, v1\ns_sub_u32 s22, s56, 129\ns_cmp_lt_u32 s22, 72\ns_cbranch_scc0 C_NORD")
        lds_wait(a, K_RD, "C_RDW", 1)
        cwo((6, 7))
        a("C_NORD:")
    cwo(range(6))
    st.mark("cpi")
    DEN, NUM = 112, 128
    a(f"v_and_b32 v12, 1, v3\nv_lshl_add_u32 v12, v12, 14, v9")
    FS = 2 if MAP == 48 else 7
    FO = F0_OFF + (OF_OFF if MAP == 48 else OF2_OFF)
    a(f"""s_lshl_b32 s61, s50, 16
    s_lshl_b32 s62, s53, 9
    s_add_u32 s61, s61, s62
    s_add_u32 s61, s61, {O_OFF}
    s_add_u32 s62, s61, 0x8000
    s_lshl_b32 s6, s54, {5+FS}
    s_add_u32 s6, s6, {FO}
    s_lshl_b32 s7, s50, 5
    s_add_u32 s7, s7, s53
    s_lshl_b32 s7, s7, {FS}
    s_add_u32 s7, s7, {FO}""")
    if MAP == 48: a(f"ds_read_b64 v[238:239], v254 offset:{4*K_MODE}")
    a(f"""C_PF:
    buffer_load_dwordx4 {q(ZL)}, v243, {WS}, s58 offen offset:1024 sc1
    buffer_load_dwordx2 {d(ZL+6)}, v11, {WS}, s58 offen sc1
    s_waitcnt vmcnt(0)
    v_max3_u32 v1, v{ZL}, v{ZL+1}, v{ZL+2}
    v_max3_u32 v14, v{ZL+3}, v{ZL+6}, v{ZL+7}
    v_cvt_pk_bf16_f32 v{ZL+4}, v{ZL}, v{ZL+1}
    v_max_u32 v1, v1, v14
    v_cvt_pk_bf16_f32 v{ZL+5}, v{ZL+2}, v{ZL+3}
    v_cmp_eq_u32 vcc, -1, v1
    s_cbranch_vccnz C_PFRE""")
    st.mark("ckv")
    for R in range(4): a(f"{M16} {q(DEN+4*R)}, {d(ZL+4)}, {d(QP+2*R)}, 0")
    for R in range(4): a(f"{M16} {q(NUM+4*R)}, {d(ZL+6)}, {d(QP+2*R)}, 0")
    lds_signal(a, K_WO)
    if MAP == 48: a("s_waitcnt lgkmcnt(1)\nv_readfirstlane_b32 s75, v238\nv_readfirstlane_b32 s73, v239")
    for R in range(4): a(f"v_add_f32 v{DEN+4*R}, s65, v{DEN+4*R}")
    for R in range(4): a(f"v_rcp_f32 v{DEN+4*R}, v{DEN+4*R}")
    if MAP == 48: a("s_cmp_eq_u32 s73, 4\ns_cbranch_scc0 C_MW\nC_MWR:\ns_nop 2")
    OO = 244
    for pr in range(2):
        for R in (2*pr, 2*pr+1):
            for h in (0, 2): a(f"v_pk_mul_f32 {d(NUM+4*R+h)}, {d(NUM+4*R+h)}, {d(DEN+4*R)} op_sel_hi:[1,0]")
            a(f"v_cvt_pk_bf16_f32 v{OO+2*R}, v{NUM+4*R}, v{NUM+4*R+1}\nv_cvt_pk_bf16_f32 v{OO+2*R+1}, v{NUM+4*R+2}, v{NUM+4*R+3}")
        o = OO + 4*pr
        a(f"v_permlane16_swap_b32 v{o}, v{o+2}\nv_permlane16_swap_b32 v{o+1}, v{o+3}")
        if MAP != 48: a(f"buffer_store_dwordx4 {q(o)}, v12, {WS}, s{61+pr} offen sc1")
    if MAP == 48:
        a(f"""s_cmp_eq_u32 s75, 0
        s_cbranch_scc0 C_OSLOW
        buffer_store_dwordx4 {q(OO)}, v12, {WS}, s61 offen
        buffer_store_dwordx4 {q(OO+4)}, v12, {WS}, s62 offen
        C_OST:""")
    st.mark("co")
    a(f"""s_lshl_b32 s22, s3, 5
    v_xor_b32 v8, s22, v8
    v_add_u32 v8, {XB + 16384}, v8
    v_xor_b32 v9, 32, v8
    v_xor_b32 v10, 64, v8
    v_xor_b32 v11, 96, v8
    v_lshlrev_b32 v13, {FS}, v0
    s_lshl2_add_u32 s58, s54, s3
    s_lshl_b32 s61, s58, 15
    s_lshl_b32 s58, s58, 14
    s_add_u32 s58, s58, {O_OFF}
    s_lshl_b32 s60, s57, 11
    s_add_u32 s60, s60, 4096
    s_lshl_b32 s22, s55, 7
    s_add_u32 s61, s61, s22
    v_lshlrev_b32 v12, 11, v2
    v_and_b32 v14, 1, v3
    v_lshl_add_u32 v12, v14, 5, v12
    v_lshrrev_b32 v14, 1, v3
    v_lshl_add_u32 v12, v14, 4, v12""")
    OF, ACC = 16, 128
    WB = [80, 96, 112, 160, 176, 192, 208, 224, 144]
    wb = lambda p: WB[p % NWO]
    def wreads(p): return [(f"ds_read_b64_tr_b16 {d(wb(p)+4*t+2*eta)}, v{8+t} offset:{p*4096 + eta*1024}", f"o{p}") for t in range(4) for eta in range(2)]
    a("s_cmp_eq_u32 s75, 0\ns_waitcnt vmcnt(0)")
    st.mark("cab")
    if MAP == 48:
        a(f"""s_mov_b64 exec, 1
        s_cbranch_scc0 C_FSLOW
        buffer_store_dword v255, v7, {WS}, s7 offen
        C_FST:
        s_mov_b64 exec, -1""")
    else: a(f"s_mov_b64 exec, 1\nbuffer_store_dword v255, v7, {WS}, s7 offen sc1\ns_mov_b64 exec, -1")
    if UGATE == 2: lds_signal(a, K_CO)
    lds_wait(a, K_WO, "C_WW")
    if W67: lds_wait(a, K_W67, "C_WW2")
    st.mark("cww")
    for p in range(0, 4):
        for t in wreads(p): lq.issue(*t)
    a(f"s_mov_b32 exec_hi, 0\nbuffer_load_dword v1, v13, {WS}, s6 offen sc1\ns_mov_b32 exec_hi, -1")
    for p in range(4, NWO):
        for t in wreads(p): lq.issue(*t)
    a(f"""s_mov_b32 exec_hi, 0
    C_OP:
    s_waitcnt vmcnt(0)
    v_cmp_ne_u32 vcc, 1, v1
    s_cbranch_vccnz C_OPRE
    s_mov_b64 exec, -1""")
    st.mark("cof")
    if UGATE == 3: lq.issue(f"s_mov_b64 exec, 1\nds_add_u32 v254, v255 offset:{4*K_CO}\ns_mov_b64 exec, -1", "a")
    pl(0, OIL, OFL)
    iss = OIL
    for p in range(16):
        if p >= 1 and iss < 16: pl(iss, iss+2, OFL); iss += 2
        if iss == 16:
            lq.issue(f"s_mov_b64 exec, 1\nds_add_u32 v254, v255 offset:{4*K_OI}\ns_mov_b64 exec, -1", "a")
            st.mark("coi"); iss = 17
        a(f"s_waitcnt vmcnt({min(iss, 16)-1-p})")
        lq.need(f"o{p}")
        if p == 0: st.mark("cg0")
        R = wreads(p-1+NWO) if p >= 1 and p-1+NWO < 16 else []
        for t in range(4):
            a(f"{MF} {q(ACC+4*t)}, {q(wb(p)+4*t)}, {q(OF+4*p)}, {q(ACC+4*t) if p else 0}")
            for r in R[2*t:2*t+2]: lq.issue(*r)
    st.mark("cg")
    for pr in range(2):
        o = 144 + pr*4
        for t in range(2):
            acc = ACC + (pr*2+t)*4
            a(f"v_cvt_pk_bf16_f32 v{o+2*t}, v{acc}, v{acc+1}\nv_cvt_pk_bf16_f32 v{o+2*t+1}, v{acc+2}, v{acc+3}")
        a(f"v_permlane16_swap_b32 v{o}, v{o+2}\nv_permlane16_swap_b32 v{o+1}, v{o+3}")
        a(f"buffer_store_dwordx4 {q(o)}, v12, s[40:43], s61 offen offset:{64*pr} {OUTFL.replace('_', ' ')}")
    st.dump()
    a("s_endpgm")
    a("C_TST:")
    for k in range(8): a(f"buffer_store_dword v{OUT+k}, v11, {WS}, s61 offen sc1\ns_add_u32 s61, s61, {0x4000 if k != 3 else 0x40000-3*0x4000}")
    a(f"""s_cmp_eq_u32 s3, 0
    s_cbranch_scc0 C_TRET
    s_mov_b32 exec_lo, 0xff
    s_mov_b32 exec_hi, 0xff
    buffer_store_dword v14, v13, {WS}, s60 offen sc1
    s_mov_b64 exec, -1
    s_branch C_TRET
    C_SIG:
    s_mov_b64 exec, 1
    buffer_atomic_add v240, v7, {WS}, s19 offen sc0 sc1
    s_mov_b64 exec, -1
    s_branch C_MID
    C_OPRE:""")
    spin_check(a, 0 if MAP == 48 else 2)
    a(f"buffer_load_dword v1, v13, {WS}, s6 offen sc1\ns_branch C_OP")
    for g_ in range(4):
        lds_wait(a, K_Q+g_, f"C_QS{g_}")
        a(f"s_branch C_QR{g_}")
    if RCL:
        a("L_R67:\ns_mov_b64 exec, 1\ns_brev_b32 s5, 2")
        for k in range(4): a(f"buffer_load_dword v203, v206, {WS}, s5 offen")
        a("s_mov_b64 exec, -1\ns_branch L_R68")
    a("L_REDRE:")
    spin_check(a, RSLP, 100)
    a("s_branch L_RED")
    a("L_URE:")
    if UGATE != 1: lds_wait(a, K_OI, "L_URG", 1)
    spin_check(a, USLP)
    a("s_waitcnt lgkmcnt(0)\ns_branch L_UL\nL_H1RE:")
    spin_check(a, PSLEEP)
    a(f"buffer_load_dword v205, v250, {WS}, 0 offen sc1\ns_waitcnt vmcnt(0)\ns_branch L_H1")
    a("C_PFRE:")
    spin_check(a, FSLP, 100)
    a("s_branch C_PF")
    if MAP == 48:
        lds_wait(a, K_H1, "C_MW")
        a(f"""ds_read_b32 v238, v254 offset:{4*K_MODE}
        s_waitcnt lgkmcnt(0)
        v_readfirstlane_b32 s75, v238
        s_branch C_MWR
        C_OSLOW:
        buffer_store_dwordx4 {q(OO)}, v12, {WS}, s61 offen sc1
        buffer_store_dwordx4 {q(OO+4)}, v12, {WS}, s62 offen sc1
        s_branch C_OST
        C_FSLOW:
        buffer_store_dword v255, v7, {WS}, s7 offen sc1
        s_branch C_FST""")
    a("L_GORE:")
    spin_check(a, RESLEEP)
    a("buffer_load_dword v204, v249, s[44:47], 0 offen sc1\ns_waitcnt vmcnt(0)\ns_branch L_GO\nL_END:\ns_endpgm")
    a(f".fill (33280-(.-{NAME}))/4, 4, 0xbf810000")

HEADER = open("concat_heads__linear_attn_block__spectral_gfnet__prompt.s.ref").read().split("; Override")[0]

def main(out):
    a = Asm(); st = Stamps(a)
    entry(a, st); l_main(a, st); c_main(a, st)
    txt = HEADER + f"""; @launch grid=(256,1,1) block=(512,1,1) lds={LDS_SIZE}
.amdgcn_target "amdgcn-amd-amdhsa--gfx950"
.text
""" + a.finalize() + f""".section .rodata,"a"
.p2align 6
.amdhsa_kernel {NAME}
  .amdhsa_next_free_vgpr 256
  .amdhsa_next_free_sgpr 102
  .amdhsa_accum_offset 256
  .amdhsa_group_segment_fixed_size 0
  .amdhsa_kernarg_size 72
  .amdhsa_user_sgpr_count 2
  .amdhsa_user_sgpr_kernarg_segment_ptr 1
  .amdhsa_system_sgpr_workgroup_id_x 1
.end_amdhsa_kernel
"""
    open(out, "w").write(txt)

if __name__ == "__main__":
    for arg in sys.argv[2:]:
        if arg == "stamp": STAMP = True
        elif "=" in arg:
            k, v = arg.split("=", 1)
            globals()[k] = int(v) if v.lstrip("-").isdigit() else v
    main(sys.argv[1])
```

```python
import sys, struct
from asm import Asm

T_OFF = 0; ROW = 8320; U_OFF = 0x240000; WP_OFF = 0x480000; KVP_OFF = 0x6C0000; ZP_OFF = 0x740000
KVF_OFF = 0x6B0000; F0_OFF = 0x750000; O_OFF = 0x800000; WS_SIZE = 0xA00000; DBG_OFF = 0xA00000
XB = 65536; BXB = 131072; EB = 147456; CNT = 163584; WRB = EB; SPB = WRB + 16*576; LDS_SIZE = 163840
OF_OFF = 4096; H2_OFF = 8192; OF2_OFF = 16384
STAMP = False
NAME = "concat_heads__linear_attn_block__spectral_gfnet__prompt_kernel"
SPIN = 0x40000
MAP = 48; GPOS = 1; SIG1 = 4; TPOS = 1; RCL = 1; TFIRST = 0; OIL = 10; PFS = 0; EXIT0 = 0; EARLY = 0; NOOUT = 0; PREU = 1; PSLEEP = 2; RESLEEP = 2; CPRIO = 2; LPRIO = 3; FORCESLOW = 0
OUTFL = ""; TFL = "sc1"; UFL = "sc1"; OFL = "sc1"; NPRE = 5; NWO = 9; PSPLIT = 8; HPOS = 0; XROT = 1; BNT = ""; XNT = ""; QPF = 0; RP = 2; PT = 0; DLY = 0; DLE = 0; DLM = 0; WSB = 0; ROTM = 7; F3E = 0; RPM = 2; B2POS = 1; WNT = ""; PFL = "sc1"; YFL = ""; SFL = "sc1"; LBAR = 0; WOX = 1; WOAT = 2; DYN = 1; PFB = 0; UGATE = 1; USLP = 4; PROT = 0; PEXP = 0; RPOS = 0; RSLP = 2; FSLP = 2; UPRIO = 3; MW = 0; MWQ = 0; OPF = 7; W67 = 1; B3LATE = 0; NOPF = 0; LSLP = 1; NBSLP = 0
MC = "cbx,cst,cf0,t0,cp2,ckv,co,cww,cof,coi,cg"; ML = "iss,lf0,lf7,lq3,lh1,lt,lb2,lack,lul,luok,lend"
K_BX, K_X, K_WO, K_E1, K_E2, K_MODE, K_H1, K_Q, K_H2, K_OI, K_C7, K_TASK, K_G0, K_U, K_CO, K_W67 = 0, 1, 2, 3, 4, 6, 7, 8, 12, 13, 14, 15, 16, 17, 18, 19
K_RD = 12

def fhex(x): return "0x%08x" % struct.unpack("<I", struct.pack("<f", x))[0]
def q(b): return "v[%d:%d]" % (b, b + 3)
def d(b): return "v[%d:%d]" % (b, b + 1)
MF = "v_mfma_f32_16x16x32_bf16"
M16 = "v_mfma_f32_16x16x16_bf16"
WS = "s[24:27]"
def WREST(): return (6, 7, 0, 1, 2, 3, 4, 5) if PFB == 4 else (0, 1, 2, 3, 4, 5)
def nclr(): return 82 if MAP == 48 else 98

def srd_ptr(a, r, lo): a(f"s_mov_b32 s{r}, s{lo}\ns_mov_b32 s{r+1}, s{lo+1}")
def srd_const(a, r, size): a(f"s_mov_b32 s{r+2}, {size}\ns_mov_b32 s{r+3}, 0x20000")
def wsz(): return WS_SIZE + (0x100000 if STAMP else 0)

class Stamps:
    def __init__(self, a): self.a = a
    def start(self):
        if STAMP: self.a("s_memtime s[76:77]\ns_memrealtime s[78:79]")
    def clear(self, keep):
        if STAMP:
            for lst in (MC.split(","), ML.split(",")):
                pass
            for i in range(11):
                if i != keep and not (EARLY and i < 7): self.a(f"s_mov_b32 s{80+2*i}, 0")
    def idx(self, name):
        for lst in (MC.split(","), ML.split(",")):
            if name in lst: return lst.index(name)
        return -1
    def mark(self, name):
        if STAMP and self.idx(name) >= 0:
            i = self.idx(name); self.a(f"s_memtime s[{80+2*i}:{81+2*i}]")
    def dump(self):
        if not STAMP: return
        a = self.a
        a("v_mov_b32 v28, s56\ns_memrealtime s[74:75]\ns_waitcnt vmcnt(0) lgkmcnt(0)\ns_mov_b64 exec, 1")
        for i in range(11): a(f"s_sub_u32 s73, s{80+2*i}, s76\ns_cmp_eq_u32 s{80+2*i}, 0\ns_cselect_b32 s73, 0, s73\nv_mov_b32 v{16+i}, s73")
        a(f"s_sub_u32 s73, {SPIN}, s72\nv_mov_b32 v27, s73\nv_mov_b32 v29, 0\nv_mov_b32 v30, s78\nv_mov_b32 v31, s74")
        a(f"s_lshl_b32 s73, s2, 3\ns_add_u32 s73, s73, s3\ns_lshl_b32 s73, s73, 6\ns_add_u32 s73, s73, {DBG_OFF}\nv_mov_b32 v15, s73")
        for j in range(4): a(f"buffer_store_dwordx4 {q(16+4*j)}, v15, {WS}, 0 offen offset:{16*j}")

def spin_check(a, slp, w=1):
    a(f"s_sub_u32 s72, s72, {w if STAMP else 1}\ns_cbranch_scc1 L_END")
    if slp: a(f"s_sleep {slp}")

def lds_signal(a, k): a(f"s_mov_b64 exec, 1\nds_add_u32 v254, v255 offset:{4*k}\ns_mov_b64 exec, -1")
def lds_wait(a, k, lbl, slp=0):
    a(f"""{lbl}:
    {"s_sleep %d" % slp if slp else ""}
    ds_read_b32 v253, v254 offset:{4*k}
    s_sub_u32 s74, s74, 1
    s_cbranch_scc1 L_END
    s_waitcnt lgkmcnt(0)
    v_cmp_ne_u32 vcc, 4, v253
    s_cbranch_vccnz {lbl}""")

def issue1w(a, c):
    a(f"""s_mul_i32 s66, s52, 196608
    s_add_u32 m0, s64, {(c & 3)*16384}
    s_add_u32 s66, s66, s61
    buffer_load_dwordx4 v6, s[32:35], s66 offen {WNT} lds
    buffer_load_dwordx4 v6, s[32:35], s66 offen offset:1024 {WNT} lds
    s_add_u32 s66, s66, 10240
    buffer_load_dwordx4 v6, s[32:35], s66 offen offset:2048 {WNT} lds
    buffer_load_dwordx4 v6, s[32:35], s66 offen offset:3072 {WNT} lds""")
def issue1x(a, c):
    a(f"""s_lshl_b32 s65, s52, 7
    s_add_u32 m0, s62, {XB + c*8192}
    s_add_u32 s65, s65, s60
    buffer_load_dwordx4 v5, s[28:31], s65 offen {XNT} lds
    s_add_u32 s65, s65, 7168
    buffer_load_dwordx4 v5, s[28:31], s65 offen offset:1024 {XNT} lds""")
def issue1(a, c):
    if MAP == 48: issue1w(a, c); issue1x(a, c)
    else: issue1x(a, c); issue1w(a, c)
    a("s_add_u32 s52, s52, 1\ns_and_b32 s52, s52, 7")
def issue2(a, gam):
    for k2 in range(2):
        a(f"""s_mul_i32 s66, s52, 196608
        s_add_u32 m0, s62, {gam*16384 + k2*8192}
        s_add_u32 s66, s66, s61
        s_add_u32 s52, s52, 1
        buffer_load_dwordx4 v6, s[32:35], s66 offen {WNT} lds
        s_add_u32 s66, s66, 11264
        s_and_b32 s52, s52, 7
        buffer_load_dwordx4 v6, s[32:35], s66 offen offset:1024 {WNT} lds""")

def waddr(a, slot, conj, step, row0, wq_, gq_):
    a(f"""s_and_b32 {slot}, s48, 3
    s_cmp_eq_u32 s48, 4
    s_cselect_b32 {row0}, 4, {slot}
    s_and_b32 {wq_}, s49, 7
    s_lshl4_add_u32 {row0}, {wq_}, {row0}
    s_lshr_b32 {gq_}, s49, 3
    s_lshl_b32 s22, {gq_}, 9
    s_add_u32 {row0}, {row0}, s22
    s_sub_u32 s22, 2048, {row0}
    s_cmp_ge_u32 s48, 4
    s_cselect_b32 {row0}, s22, {row0}
    s_cselect_b32 {conj}, 0x80000000, 0
    s_movk_i32 {step}, {8*514}
    s_cmovk_i32 {step}, {-8*514}
    s_mulk_i32 {row0}, 514""")

def entry(a, st):
    a(f".globl {NAME}\n.p2align 8\n.type {NAME},@function\n{NAME}:")
    st.start()
    a(f"""s_cmp_ge_u32 s2, {0 if EXIT0 else 256}
    s_cbranch_scc1 L_END
    s_load_dwordx16 s[4:19], s[0:1], 0
    s_load_dwordx2 s[20:21], s[0:1], 64
    {"s_memtime s[80:81]" if EARLY else ""}
    v_lshrrev_b32 v4, 6, v0
    s_lshr_b32 s49, s2, 3
    v_readfirstlane_b32 s3, v4
    v_and_b32 v0, 63, v0
    {"s_memtime s[82:83]" if EARLY else ""}
    {"s_getpc_b64 s[60:61]" if PFS else ""}
    {"v_lshl_add_u32 v1, v4, 6, v0" if PFS else ""}
    {"v_mul_u32_u24 v1, %d, v1" % PFS if PFS else ""}
    {"global_load_dword v1, v1, s[60:61]" if PFS else ""}
    s_cmp_eq_u32 s3, 0
    s_cbranch_scc0 C_NOPF
    s_mov_b32 exec_lo, 0xfffff
    s_mov_b32 exec_hi, 0
    s_getpc_b64 s[60:61]
    L_PC:
    s_mul_i32 s62, s49, 768
    v_min_u32 v1, 5, v0
    v_lshlrev_b32 v1, 7, v1
    v_add_u32 v1, s62, v1
    v_min_u32 v1, L_END-L_PC, v1
    {"" if PFS else "global_load_dword v1, v1, s[60:61]"}
    v_lshlrev_b32 v2, 2, v0
    v_add_u32 v2, {CNT}, v2
    v_mov_b32 v3, 0
    ds_write_b32 v2, v3
    s_mov_b64 exec, -1
    C_NOPF:
    {"s_sleep %d" % DLY if DLY else ""}
    {"s_memtime s[84:85]" if EARLY else ""}
    s_and_b32 s48, s2, 7
    v_lshlrev_b32 v7, 4, v0
    s_mov_b32 s30, 0x200000
    s_mov_b32 s31, 0x20000""")
    if MAP == 48:
        a("""s_and_b32 s52, s49, 3
        s_lshl2_add_u32 s50, s48, s52
        s_lshr_b32 s51, s49, 2
        s_lshl1_add_u32 s52, s52, s51""")
    else:
        a("""s_and_b32 s52, s49, 7
        s_lshr_b32 s50, s48, 1
        s_lshl3_add_u32 s50, s50, s52
        s_lshr_b32 s22, s49, 3
        s_and_b32 s51, s48, 1
        s_lshl2_add_u32 s51, s51, s22
        s_lshl1_add_u32 s52, s22, s52""")
    a(f"""s_cmp_ge_u32 s3, 4
    s_cbranch_scc1 L_START
    s_lshl_b32 s69, s3, 11
    s_lshl_b32 s58, s3, 19
    s_lshl_b32 s59, s2, 10
    s_add_u32 s58, s58, s59
    s_add_u32 s59, s58, {0x40000-1024}
    s_add_u32 m0, s69, {BXB}
    s_cmp_ge_u32 s2, 209
    s_cselect_b32 s22, 0, -1
    v_mov_b32 v208, s22
    v_mov_b32 v209, s22
    v_mov_b32 v210, s22
    v_mov_b32 v211, s22
    s_sub_u32 s52, s2, 129
    s_cmp_eq_u32 s3, 3
    s_cselect_b32 s52, s52, -1
    s_lshl_b32 s65, s52, 13
    s_add_u32 s65, s65, {KVF_OFF}
    s_mov_b32 s26, {wsz()}
    s_mov_b32 s27, s31
    s_cmp_lt_u32 s52, {nclr()}
    {"s_memtime s[86:87]" if EARLY else ""}
    s_waitcnt lgkmcnt(0)
    {"s_memtime s[88:89]" if EARLY else ""}
    s_mov_b64 s[28:29], s[10:11]
    s_cselect_b32 s23, 1, 0
    s_add_u32 s24, s20, {WSB << 20}
    s_addc_u32 s25, s21, 0
    s_cmp_eq_u32 s23, 1
    s_cbranch_scc1 C_CLR
    C_NOCLR:
    buffer_load_dwordx4 v7, s[28:31], s58 offen {BNT} lds
    buffer_load_dwordx4 v7, s[28:31], s59 offen offset:1024 {BNT} lds
    {"s_memtime s[90:91]" if EARLY else ""}
    s_barrier
    {"s_memtime s[92:93]" if EARLY else ""}
    s_branch C_MAIN
    C_CLR:
    buffer_store_dwordx4 v[208:211], v7, {WS}, s65 offen sc1
    buffer_store_dwordx4 v[208:211], v7, {WS}, s65 offen offset:1024 sc1
    buffer_store_dwordx4 v[208:211], v7, {WS}, s65 offen offset:2048 sc1
    buffer_store_dwordx4 v[208:211], v7, {WS}, s65 offen offset:3072 sc1
    s_bitset1_b32 s65, 12
    buffer_store_dwordx4 v[208:211], v7, {WS}, s65 offen sc1
    buffer_store_dwordx4 v[208:211], v7, {WS}, s65 offen offset:1024 sc1
    buffer_store_dwordx4 v[208:211], v7, {WS}, s65 offen offset:2048 sc1
    buffer_store_dwordx4 v[208:211], v7, {WS}, s65 offen offset:3072 sc1
    s_branch C_NOCLR
    L_START:
    {"s_memtime s[86:87]" if EARLY else ""}
    s_sub_u32 s58, s3, 4
    {"s_and_b32 s52, s52, %d" % ROTM if ROTM != 7 else ""}
    {"s_add_u32 s52, s52, s48" if XROT == 1 else ""}
    {"s_lshr_b32 s22, s48, 1" if XROT == 2 else ""}
    {"s_add_u32 s52, s52, s22" if XROT == 2 else ""}
    s_and_b32 s52, s52, 7
    v_lshrrev_b32 v8, 3, v0
    v_and_b32 v9, 7, v0
    v_and_b32 v10, 6, v8
    v_xor_b32 v9, v9, v10
    v_lshlrev_b32 v9, 4, v9
    v_lshl_add_u32 v5, v8, 10, v9
    v_and_b32 v10, 4, v8
    v_add_u32 v10, v10, v8
    v_mul_u32_u24 v6, 3072, v10
    v_add_u32 v6, v6, v9
    s_lshl2_add_u32 s60, s50, s58
    s_lshl_b32 s60, s60, 14
    s_lshl_b32 s61, s51, 7
    s_mul_i32 s62, s58, 49152
    s_add_u32 s61, s61, s62
    s_addk_i32 s61, 1024
    s_lshl_b32 s62, s58, 11
    s_lshl_b32 s64, s58, 12
    s_mov_b32 s34, 0x180000
    s_mov_b32 s35, s31
    s_mov_b32 s38, {2048*514}
    s_mov_b32 s39, s31
    s_mov_b32 s42, s38
    s_mov_b32 s43, s31""")
    waddr(a, "s75", "s59", "s67", "s68", "s56", "s57")
    a(f"""s_lshl_b32 s22, s58, 4
    s_mul_i32 s22, s22, s67
    s_add_u32 s22, s22, s68
    s_and_b32 s22, s22, -16
    s_add_u32 s23, s22, s67
    s_mul_i32 s73, s58, {4*576}
    s_add_u32 m0, s73, {WRB}
    {"s_memtime s[88:89]" if EARLY else ""}
    s_waitcnt lgkmcnt(0)
    {"s_memtime s[90:91]" if EARLY else ""}
    s_mov_b64 s[36:37], s[12:13]
    s_mov_b64 s[40:41], s[14:15]
    s_mov_b64 s[32:33], s[6:7]
    s_mov_b64 s[28:29], s[4:5]
    s_barrier
    {"s_memtime s[92:93]" if EARLY else ""}
    s_mov_b32 exec_hi, 3
    buffer_load_dwordx4 v7, s[36:39], s22 offen {BNT} lds
    s_add_u32 m0, s73, {WRB+576}
    s_nop 0
    buffer_load_dwordx4 v7, s[40:43], s22 offen {BNT} lds
    s_add_u32 m0, s73, {WRB+2*576}
    s_nop 0
    buffer_load_dwordx4 v7, s[36:39], s23 offen {BNT} lds
    s_add_u32 m0, s73, {WRB+3*576}
    s_nop 0
    buffer_load_dwordx4 v7, s[40:43], s23 offen {BNT} lds
    s_mov_b32 exec_hi, -1
    s_cmp_eq_u32 s58, 0
    s_cbranch_scc0 L_NOSP
    v_and_b32 v12, 3, v0
    v_lshlrev_b32 v12, 4, v12
    v_lshrrev_b32 v11, 2, v0
    v_add_u32 v12, v12, v11
    v_mul_i32_i24 v12, s67, v12
    v_add_u32 v12, s68, v12
    v_sub_u32 v11, {2048*514}, v12
    s_lshr_b32 s23, s59, 22
    s_sub_u32 s22, 512, s23
    s_cmp_eq_u32 s75, 0
    s_cselect_b64 vcc, -1, 0
    s_cselect_b32 s22, s22, s23
    v_cndmask_b32 v11, v11, v12, vcc
    s_mov_b32 m0, {SPB}
    s_mov_b64 exec, 0xff
    buffer_load_ushort v11, s[36:39], s22 offen lds
    s_mov_b32 m0, {SPB+32}
    s_nop 0
    buffer_load_ushort v11, s[40:43], s22 offen lds
    s_mov_b64 exec, -1
    L_NOSP:""")
    issue1(a, 0)
    st.mark("iss")

def common_setup(a, st, keep):
    st.clear(keep)
    a(f"s_add_u32 s24, s20, {WSB << 20}\ns_addc_u32 s25, s21, 0\ns_mov_b64 s[40:41], s[16:17]\ns_mov_b64 s[44:45], s[18:19]")
    srd_const(a, 24, wsz()); srd_const(a, 40, 0 if NOOUT else 0x400000); srd_const(a, 44, 256)
    a(f"""s_mov_b32 s72, {SPIN}
    s_mov_b32 s74, {SPIN*16}
    v_mov_b32 v254, {CNT}
    v_mov_b32 v255, 1
    v_and_b32 v2, 15, v0
    v_lshrrev_b32 v3, 4, v0
    v_cvt_f32_u32 v8, v2
    v_cvt_f32_u32 v9, v3
    v_lshrrev_b32 v12, 1, v0
    v_lshrrev_b32 v13, 2, v0
    v_and_b32 v13, 4, v13
    v_xor_b32 v12, v12, v13
    v_and_b32 v15, 7, v12
    s_and_b32 s57, s49, 3
    s_lshl2_add_u32 s54, s48, s57
    s_lshr_b32 s55, s49, 2
    s_lshl1_add_u32 s57, s57, s55
    s_and_b32 s19, s2, 15
    s_lshl_b32 s19, s19, 7
    s_add_u32 s19, s19, {F0_OFF}""")

RWR, RWI, SPC = 176, 184, 192

def l_main(a, st):
    C1, C2, TWC, TWS, C3, DAT, AC1, OP2, AC2, INI = 16, 40, 48, 56, 64, 80, 112, 144, 160, 192
    TMP, OP3, AC3, OUT = 80, 112, 128, 144
    CA, CB = 208, 240
    OP, WPK, AC, PK, WRI, T0 = 80, 96, 112, 144, 160, 176
    seq = ["w"]*4 + ["F0"]*6
    a("v_lshl_add_u32 v4, v10, 10, v9\ns_mov_b64 s[36:37], s[8:9]")
    srd_const(a, 36, 0x80000)
    common_setup(a, st, st.idx("iss"))
    CT = 194
    def b3_consts():
        a(f"""s_lshl_b32 s67, s58, 9
        s_add_u32 s67, s67, s2
        v_and_b32 v10, 1, v0
        v_lshlrev_b32 v10, 8, v10
        v_add_u32 v10, s67, v10
        v_cvt_f32_u32 v10, v10
        v_mul_f32 v10, {fhex(1/2048)}, v10
        v_lshrrev_b32 v11, 5, v0
        v_cvt_f32_u32 v11, v11""")
        MK = 196
        for r in range(4): a(f"v_cmp_eq_u32 vcc, {r}, v15\nv_cndmask_b32 v{MK+r}, 0, -1, vcc")
        a(f"""v_mul_f32 v12, v11, v10
        v_mov_b32 v13, 0xc0400000
        v_fma_f32 v13, v13, v11, 4.0
        v_mul_f32 v13, v13, v10
        v_add_f32 v14, 2.0, v11
        v_mul_f32 v14, v14, v10""")
        for k in range(3):
            b = C1 + 8*k
            a(f"""v_cos_f32 v{CT}, v{12+k}
            v_sin_f32 v{CT+1}, v{12+k}
            v_mul_f32 v{CT}, {fhex(2.0**-19)}, v{CT}
            v_mul_f32 v{CT+1}, {fhex(2.0**-19)}, v{CT+1}
            v_cvt_pk_bf16_f32 v{b+3}, v{CT}, -v{CT+1}
            v_cvt_pk_bf16_f32 v{b+7}, v{CT+1}, v{CT}""")
            for c in range(2):
                for r in range(4): a(f"v_and_b32 v{b+4*c+r}, v{b+4*c+3}, v{MK+r}")
        a(f"v_mul_f32 v12, {fhex(1/16)}, v8\nv_mul_f32 v13, v9, v12\nv_mul_f32 v12, 4.0, v12")
        for v in range(4):
            a(f"v_cos_f32 v{CT}, v13\nv_sin_f32 v{CT+1}, v13")
            if v < 3: a("v_add_f32 v13, v13, v12")
            a(f"v_cvt_pk_bf16_f32 v{C2+v}, v{CT}, -v{CT+1}\nv_cvt_pk_bf16_f32 v{C2+4+v}, v{CT+1}, v{CT}")
        a(f"""v_bfe_u32 v12, v0, 4, 1
        v_cvt_f32_u32 v12, v12
        v_add_f32 v12, v12, v12
        v_mov_b32 v13, 0x41800000
        v_fma_f32 v12, v11, v13, v12
        v_mul_f32 v13, {fhex(1/512)}, v8
        v_mul_f32 v14, v12, v13
        v_mul_f32 v15, {fhex(3.0)}, v13""")
        for i in range(4):
            for ph in range(2):
                k = i*2 + ph; kap = i >> 1; r = (i & 1)*2 + ph
                a(f"""v_cos_f32 v{TWC+k}, v14
                v_sin_f32 v{TWS+k}, v14
                v_mul_f32 v12, 0x41800000, v14
                v_cos_f32 v{CT}, v12
                v_sin_f32 v{CT+1}, v12""")
                if k < 7: a(f"v_add_f32 v14, v14, v{15 if ph else 13}")
                a(f"v_cvt_pk_bf16_f32 v{C3+kap*8+r}, v{CT}, -v{CT+1}")
                if ph: a(f"v_cvt_pk_bf16_f32 v{C3+kap*8+4+r}, -v{CT}, v{CT+1}")
                else: a(f"v_cvt_pk_bf16_f32 v{C3+kap*8+4+r}, v{CT}, -v{CT+1}")
        a(f"""v_cvt_f32_u32 v12, s2
        v_mul_f32 v12, {fhex(1/512)}, v12
        v_cos_f32 v13, v12
        v_sin_f32 v14, v12
        v_lshlrev_b32 v10, 10, v3
        v_lshl_add_u32 v10, v2, 4, v10
        v_mul_f32 v13, {fhex(2.0**-20)}, v13
        v_mul_f32 v14, {fhex(2.0**-20)}, v14
        v_lshlrev_b32 v11, 5, v2
        v_lshl_add_u32 v11, v3, 3, v11
        v_mov_b32 v15, 0""")
    def b2_consts():
        a(f"""s_lshl_b32 s22, s58, 2
        v_cvt_f32_u32 v146, s22
        v_mul_f32 v144, {fhex(1/16)}, v8
        v_mul_f32 v145, 4.0, v9
        v_mul_f32 v145, v145, v144
        v_mul_f32 v147, {fhex(1/16)}, v144
        v_mul_f32 v146, v146, v147""")
        for r in range(4):
            a(f"""v_cos_f32 v154, v145
            v_sin_f32 v155, v145
            v_add_f32 v148, v145, v146
            v_cvt_pk_bf16_f32 v{CB+r}, v154, v155
            v_cvt_pk_bf16_f32 v{CB+4+r}, -v155, v154""")
            for j in range(4):
                t = 150 + 2*(j & 1)
                a(f"v_cos_f32 v{t}, v148\nv_sin_f32 v{t+1}, v148")
                if j < 3: a("v_add_f32 v148, v148, v147")
                elif r < 3: a("v_add_f32 v145, v145, v144")
                a(f"v_cvt_pk_bf16_f32 v{CA+8*j+r}, v{t}, v{t+1}\nv_cvt_pk_bf16_f32 v{CA+8*j+4+r}, -v{t+1}, v{t}")
        a(f"""s_lshl_b32 s23, s58, 8
        v_lshlrev_b32 v200, 12, v3
        v_lshl_add_u32 v200, v2, 4, v200
        v_add_u32 v200, s23, v200
        v_add_u32 v201, s64, v7
        v_add_u32 v251, {EB}, v200
        v_add_u32 v252, {EB}, v201
        s_cmp_eq_u32 s58, 3
        s_cselect_b32 s16, 0xffff, -1
        s_mov_b32 s15, 0xffff0000""")
    def misc_addr():
        a(f"""s_and_b32 s53, s2, 15
        s_lshl_b32 s53, s53, 4
        s_bfe_u32 s22, s2, 0x20004
        s_lshl2_add_u32 s53, s22, s53
        s_lshr_b32 s22, s2, 6
        s_add_u32 s53, s53, s22
        s_lshl_b32 s53, s53, 6
        v_lshlrev_b32 v12, 7, v0
        v_add_u32 v250, {F0_OFF}, v12
        v_mov_b32 v207, 4
        v_lshlrev_b32 v248, 2, v0
        v_mov_b32 v206, 0
        s_lshl_b32 s22, s51, 11
        s_add_u32 s22, s22, s60
        s_add_u32 s22, s22, {O_OFF}
        v_add_u32 v202, s22, v12
        s_lshl_b32 s22, s50, 7
        s_add_u32 s22, s22, {F0_OFF + OF_OFF}
        v_writelane_b32 v202, s22, 16
        v_mov_b32 v249, v12
        s_lshl_b32 s21, s58, 14
        s_lshl_b32 s22, s55, 7
        s_add_u32 s21, s21, s22
        s_cmp_eq_u32 s58, 0
        s_cselect_b32 s17, 0, 0x40000000""")
    def wo_dma(poss):
        for pos in poss:
            a(f"""s_add_u32 s5, s57, {(pos+2) & 7}
            s_and_b32 s5, s5, 7
            s_lshl_b32 s5, s5, 16
            s_add_u32 m0, s62, {XB + 16384 + pos*8192}
            s_add_u32 s5, s5, s21
            buffer_load_dwordx4 v4, s[36:39], s5 offen lds
            s_add_u32 s5, s5, 3072
            buffer_load_dwordx4 v4, s[36:39], s5 offen offset:1024 lds""")
    def opf():
        if MAP == 48: a(f"s_mov_b64 exec, 0x1ffff\nbuffer_load_dword v203, v202, {WS}, 0 offen {PFL.replace('_', ' ')}\ns_mov_b64 exec, -1"); seq.append("p")
    def younger(tag): return len(seq) - 1 - max(i for i, x in enumerate(seq) if x == tag)
    misc_addr()
    def mall_warm():
        a(f"""s_lshl2_add_u32 s22, s2, s58
        s_lshl_b32 s23, s22, 9
        s_lshr_b32 s5, s22, 1
        s_mulk_i32 s5, 3072
        s_and_b32 s22, s23, 512
        s_add_u32 s5, s5, s22
        s_mov_b64 exec, 15
        buffer_load_dword v198, v12, s[36:39], s23 offen
        {"buffer_load_dword v197, v12, s[32:35], s5 offen" if MWQ else ""}
        s_mov_b64 exec, -1"""); seq.extend(["m"]*(1+MWQ))
    def repack_all():
        a(f"""v_lshrrev_b32 v109, 5, v0
        v_lshlrev_b32 v108, 2, v2
        s_lshr_b32 s69, s49, 3
    v_and_b32 v100, 1, v3
    v_lshlrev_b32 v100, 18, v100
    v_lshl_add_u32 v100, v109, 14, v100
    v_lshl_add_u32 v100, v2, 4, v100
    s_lshl_b32 s14, s56, 11
    s_lshl_b32 s22, s69, 8
    s_add_u32 s14, s14, s22
    s_add_u32 s14, s14, {WP_OFF}
    s_lshl_b32 s15, s75, 19
    s_lshr_b32 s22, s59, 14
    s_add_u32 s15, s15, s22
    s_lshl_b32 s22, s58, 15
    s_add_u32 s15, s15, s22
    s_add_u32 s15, s15, s14
    s_lshr_b32 s22, s59, 24
    s_sub_u32 s14, s14, s22
    s_add_u32 s14, s14, {128*16384 + 128}
    s_lshl_b32 s23, s58, 6
    v_add_u32 v102, s23, v0
    v_sub_u32 v103, 0x100, v102
    s_cmp_ge_u32 s48, 4
    s_cselect_b64 vcc, -1, 0
    s_and_b32 s22, s68, 15
    s_add_u32 s22, s22, {WRB}
    v_cndmask_b32 v102, v102, v103, vcc
    v_lshlrev_b32 v102, 1, v102
    v_add_u32 v102, s22, v102
    s_lshr_b32 s23, s59, 22
    s_add_u32 s22, s22, s23
    v_and_b32 v103, 3, v0
    v_mul_u32_u24 v103, {4*576}, v103
    v_and_b32 v104, 1, v3
    v_mul_u32_u24 v104, {2*576}, v104
    v_add3_u32 v103, v103, v104, s22
    v_lshl_add_u32 v101, v3, 10, v108
    v_and_b32 v104, 3, v0
    v_and_b32 v105, 16, v0
    v_lshl_add_u32 v104, v104, 2, v105
    v_add_u32 v104, {SPB}, v104""")
        if RP >= 2: issue1(a, 1); seq.extend(["F1"]*6)
        a(f"s_waitcnt vmcnt({younger('w')})")
        lds_signal(a, 5)
        if RP == 1: issue1(a, 1); seq.extend(["F1"]*6)
        if RP >= 2: issue1(a, 2); seq.extend(["F2"]*6)
        if RP >= 3: issue1(a, 3); seq.extend(["F3"]*6)
        lds_wait(a, 5, "L_WRW")
        st.mark("lbar")
        for j in range(2):
            if j: a("s_waitcnt lgkmcnt(4)")
            for i in range(4):
                a(f"ds_read_u16 v{RWR+4*j+i}, v102 offset:{(i*4+j*2)*576}\nds_read_u16 v{RWI+4*j+i}, v102 offset:{(i*4+j*2+1)*576}")
        a(f"s_waitcnt lgkmcnt(8)\nds_read_u16 v{SPC}, v103\nds_read_u16 v{SPC+1}, v103 offset:576\nds_read_u16 v106, v104\nds_read_u16 v107, v104 offset:32")
        a("s_waitcnt lgkmcnt(0)")
        for k in range(8): a(f"v_lshl_or_b32 v{RWR+k}, v{RWI+k}, 16, v{RWR+k}\nv_xor_b32 v{RWR+k}, s59, v{RWR+k}")
        a(f"""s_cmp_eq_u32 s58, 0
        s_cbranch_scc0 L_NOSP2
        s_cmp_eq_u32 s75, 0
        s_cselect_b32 s22, 0, 1.0
        v_lshl_or_b32 v{SPC+4}, v107, 16, v106
        v_lshlrev_b32 v{SPC}, 16, v{SPC}
        v_lshlrev_b32 v{SPC+1}, 16, v{SPC+1}
        v_lshlrev_b32 v106, 16, v106
        v_lshlrev_b32 v107, 16, v107
        v_fma_f32 v{SPC}, v106, s22, v{SPC}
        v_fma_f32 v{SPC+1}, -v107, s22, v{SPC+1}
        v_mul_f32 v{SPC}, 0.5, v{SPC}
        v_mul_f32 v{SPC+1}, 0.5, v{SPC+1}
        v_cvt_pk_bf16_f32 v{SPC}, v{SPC}, v{SPC+1}
        v_xor_b32 v{SPC+4}, s59, v{SPC+4}
        v_xor_b32 v{SPC}, s59, v{SPC}""")
        for k in range(8): a(f"v_readlane_b32 s{4+k}, v{SPC}, {16*(k>>2) + (k&3)}")
        for k in range(8): a(f"v_writelane_b32 v{RWR+k}, s{4+k}, 0")
        a("L_NOSP2:")
        a(f"""s_or_b32 s22, s58, s75
        s_cbranch_scc1 L_NOSP3
        s_mov_b32 exec_hi, 0
        buffer_store_dword v{SPC+4}, v101, {WS}, s14 offen sc1
        s_mov_b32 exec_hi, -1
        L_NOSP3:
        buffer_store_dwordx4 {q(RWR)}, v100, {WS}, s15 offen sc1
        buffer_store_dwordx4 {q(RWR+4)}, v100, {WS}, s15 offen offset:1024 sc1""")
        seq.extend(["s"]*2)
    st.mark("lw")
    repack_all()
    st.mark("lwp")
    if RP == 0: issue1(a, 1); seq += ["F1"]*6
    if RP < 2: issue1(a, 2); seq += ["F2"]*6
    if F3E and RP < 3: issue1(a, 3); seq += ["F3"]*6
    if QPF:
        a("""s_and_b32 s22, s49, 3
        s_lshl2_add_u32 s22, s22, s58
        s_lshl_b32 s22, s22, 5
        v_add_u32 v110, s22, v0
        v_mul_u32_u24 v110, 3072, v110
        s_lshl_b32 s22, s51, 7
        s_mov_b32 exec_hi, 0
        buffer_load_dword v111, v110, s[32:35], s22 offen
        s_mov_b32 exec_hi, -1"""); seq.append("p")
    if B2POS == 0: b2_consts()
    st.mark("lconst")
    for c in range(8):
        n = younger(f"F{c}")
        if c == SIG1: n = min(n, younger("g"))
        a(f"s_waitcnt vmcnt({n})")
        if c == SIG1: a(f"s_cmp_eq_u32 s58, 0\ns_cbranch_scc0 L_GOD\ns_mov_b64 exec, 3\nL_GO:\nv_cmp_gt_u32 vcc, {nclr()//2}, v204\ns_cbranch_vccnz L_GORE\ns_mov_b64 exec, -1\nL_GOD:")
        a("s_barrier")
        st.mark(f"lf{c}")
        if c == GPOS: a("s_mov_b64 exec, 3\nbuffer_load_dword v204, v249, s[44:47], s17 offen sc1\ns_mov_b64 exec, -1"); seq += ["g"]
        if F3E <= c < 5: issue1(a, c+3); seq += [f"F{c+3}"]*6
        if c == 5: a("s_sub_u32 s61, s61, 1024")
        if c >= 5: issue2(a, c-5); seq += [f"F{c+3}"]*4
        if c == OPF: opf()
    def arrive(k):
        a(f"s_waitcnt vmcnt({younger('F%d' % k)})"); lds_signal(a, k); st.mark(f"la{k}")
    def h1(): a(f"s_mov_b64 exec, 0xffff\nbuffer_load_dword v205, v250, {WS}, s17 offen sc1\ns_mov_b64 exec, -1"); seq.append("h")
    def late_pf():
        if W67 and RCL:
            a("s_cmp_lt_u32 s13, 288\ns_cbranch_scc1 L_R67" if not TFIRST else "s_cmp_lt_u32 s56, 201\ns_cbranch_scc1 L_R67")
            wo_dma((6, 7)); seq.extend(["p"]*4)
            a("L_R68:")
        elif W67: wo_dma((6, 7)); seq.extend(["p"]*4)
        if OPF == 9: opf()
    def reducer():
        R0 = 160
        a("s_cmp_lt_u32 s13, 288\ns_cbranch_scc0 L_NORED\nL_RED:\ns_mov_b32 s22, s8")
        for t in range(8):
            a(f"buffer_load_dword v{R0+t}, v193, {WS}, s22 offen sc1")
            if t < 7: a("s_add_u32 s22, s22, s9")
        a(f"""s_waitcnt vmcnt(0)
        v_max3_u32 v1, v{R0}, v{R0+1}, v{R0+2}
        v_max3_u32 v{R0+8}, v{R0+3}, v{R0+4}, v{R0+5}
        v_max3_u32 v1, v1, v{R0+6}, v{R0+7}
        v_max_u32 v1, v1, v{R0+8}
        v_cmp_eq_u32 vcc, -1, v1
        s_cbranch_vccnz L_REDRE""")
        for t in range(8): a(f"v_lshlrev_b32 v{R0+8+2*t}, 16, v{R0+t}\nv_and_b32 v{R0+9+2*t}, s11, v{R0+t}")
        for st_ in (8, 4, 2):
            for t in range(0, st_, 2): a(f"v_pk_add_f32 {d(R0+8+t)}, {d(R0+8+t)}, {d(R0+8+t+st_)}")
        for sw in ("32", "16"):
            a(f"""v_mov_b32 v{R0+10}, v{R0+8}
            v_mov_b32 v{R0+11}, v{R0+9}
            v_permlane{sw}_swap_b32 v{R0+8}, v{R0+10}
            v_permlane{sw}_swap_b32 v{R0+9}, v{R0+11}
            v_pk_add_f32 {d(R0+8)}, {d(R0+8)}, {d(R0+10)}""")
        a(f"""v_cvt_pk_bf16_f32 v{R0+8}, v{R0+8}, v{R0+9}
        v_cndmask_b32 v{R0+8}, v{R0+9}, v{R0+8}, s[14:15]
        v_min_u32 v{R0+8}, -2, v{R0+8}
        s_mov_b64 exec, 0xffff
        buffer_store_dword v{R0+8}, v193, {WS}, s10 offen sc1
        s_mov_b64 exec, 1
        ds_add_u32 v254, v255 offset:{4*K_RD}
        s_mov_b64 exec, -1
        L_NORED:""")
        st.mark("lred")
    arrive(8)
    if PFB == 3: late_pf()
    lds_wait(a, K_C7, "L_C7A", LSLP)
    a(f"ds_read_b32 v1, v254 offset:{4*K_TASK}")
    issue2(a, 3); seq += ["F11"]*4
    a(f"""s_waitcnt lgkmcnt(0)
    v_readfirstlane_b32 s56, v1
    s_lshl_b32 s20, s56, 14
    s_add_u32 s20, s20, s64
    s_sub_u32 s13, s56, 129
    s_lshl2_add_u32 s13, s13, s58
    s_mul_i32 s22, s13, 7282
    s_lshr_b32 s22, s22, 16
    s_mul_i32 s23, s22, 9
    s_sub_u32 s23, s13, s23
    s_lshl_b32 s8, s22, 14
    s_lshl_b32 s9, s23, 6
    s_add_u32 s8, s8, s9
    s_add_u32 s8, s8, {KVP_OFF}
    s_lshl_b32 s9, s22, 11
    s_lshl_b32 s10, s23, 7
    s_add_u32 s10, s10, s9
    s_add_u32 s10, s10, {KVF_OFF}
    s_add_u32 s9, s9, {ZP_OFF}
    s_cmp_lt_u32 s23, 8
    s_cselect_b32 s8, s8, s9
    s_cselect_b32 s11, 0xffff0000, -1
    s_cselect_b32 s12, 9, 6
    s_cselect_b64 s[14:15], -1, 0
    s_lshl_b32 s9, 4, s12
    v_lshlrev_b32 v193, s12, v3
    v_lshl_add_u32 v193, v2, 2, v193""")
    for k in (9, 10, 11):
        arrive(k)
        if HPOS == k - 9:
            h1()
            if not PFB: late_pf()
    st.mark("lq3")
    if PFB == 2: late_pf()
    if PFB == 1:
        a("s_cmp_gt_u32 s56, 128\ns_cbranch_scc0 L_NOPF2")
        sv = list(seq); late_pf(); seq[:] = sv
        a("L_NOPF2:")
    a(f"""s_cmp_eq_u32 s58, 0
    s_cbranch_scc0 L_H1OK
    s_waitcnt vmcnt({younger('h')})
    s_mov_b64 exec, 0xffff
    L_H1:
    v_and_b32 v1, 0xffff, v205
    v_cmp_ne_u32 vcc, 16, v1
    s_cbranch_vccnz L_H1RE
    v_cmp_ne_u32 vcc, 16, v205
    v_mov_b32 v1, vcc_lo
    s_mov_b64 exec, 1
    ds_write_b32 v254, v1 offset:{4*K_MODE}
    ds_add_u32 v254, v207 offset:{4*K_H1}
    s_mov_b64 exec, -1
    L_H1OK:
    s_setprio {LPRIO}""")
    if RPOS == 0: reducer()
    a("""s_cmp_gt_u32 s56, 128
    s_cbranch_scc1 L_NOT""")
    lds_wait(a, K_H1, "L_H1W", LSLP)
    st.mark("lh1")
    for j in range(4):
        for r in range(4): a(f"buffer_load_dword v{OP+j*4+r}, v248, {WS}, s20 offen offset:{j*1024+r*256} {TFL}")
    a(f"s_add_u32 s23, s20, {WP_OFF}")
    for j in range(4): a(f"buffer_load_dwordx4 {q(WPK+4*j)}, v7, {WS}, s23 offen offset:{j*1024} {TFL}")
    npf = 0
    if TFIRST: wo_dma((6, 7)); npf = 4
    if PFB == 1: n0 = len(seq); late_pf(); npf = len(seq) - n0
    if B2POS == 1: b2_consts()
    a("L_NOT:")
    if RPOS == 1: reducer()
    def b3blk():
        a(f"""s_setprio 0
        s_lshl_b32 s61, s58, 19
        s_add_u32 s61, s61, s53
        s_add_u32 s68, s61, 0x40000
        s_add_u32 s63, s53, {128*16384}
        v_lshrrev_b32 v249, 2, v0
        v_lshlrev_b32 v249, 14, v249
        v_and_b32 v250, 3, v0
        v_lshl_add_u32 v249, v250, 4, v249
        v_add_u32 v250, s62, v7
        v_add_u32 v250, {EB}, v250""")
        b3_consts()
        a("""s_lshl_b32 s65, s67, 11
        s_add_u32 s65, s65, 1024
        s_add_u32 s66, s65, 0x80000""")
        st.mark("lb3c")
        a(f"v_add_u32 v10, {EB}, v10")
    if B2POS == 0: b3blk()
    a("s_cmp_gt_u32 s56, 128")
    if W67:
        if TFIRST:
            a("s_cbranch_scc0 L_W67\ns_waitcnt vmcnt(0)")
            lds_signal(a, K_W67)
            a("L_W67:")
        else:
            a("s_cbranch_scc0 L_W67\ns_waitcnt vmcnt(0)\nL_W67:\ns_waitcnt vmcnt(20)")
            lds_signal(a, K_W67)
    a(f"s_cbranch_scc1 L_NOB2\ns_setprio {LPRIO}")
    def exchange(vw, vr, k, lbl):
        for j in range(4):
            for i in range(4): a(f"v_cvt_pk_bf16_f32 v{PK+4*i+j}, v{AC+j*8+i}, v{AC+j*8+4+i}")
        if k == K_E2: lds_wait(a, K_G0, "L_XW")
        for i in range(4):
            if k == K_E1 and i == 3: a("s_mov_b32 exec_hi, s16")
            a(f"ds_write_b128 {vw}, {q(PK+4*i)} offset:{i*1024}")
        lds_signal(a, k)
        if k == K_E1 and PREU:
            a(f"s_waitcnt vmcnt({npf})")
            for kk in range(16): a(f"v_lshlrev_b32 v{16+(kk>>2)*8+(kk&3)}, 16, v{WPK+kk}\nv_and_b32 v{20+(kk>>2)*8+(kk&3)}, s15, v{WPK+kk}")
        if k == K_E2 and TFIRST: a("s_waitcnt vmcnt(0)"); lds_signal(a, K_W67)
        lds_wait(a, k, lbl)
        for j in range(4):
            if k == K_E1 and j == 3:
                for r in range(4): a(f"v_mov_b32 v{OP+12+r}, v{PK+12+r}")
                a("s_mov_b32 exec_hi, s16")
            a(f"ds_read_b128 {q(OP+4*j)}, {vr} offset:{j*1024}")
        a("s_mov_b32 exec_hi, -1")
    def stage_w(consts):
        for j in range(4):
            a(f"s_waitcnt lgkmcnt({3-j})")
            for c in range(2): a(f"{MF} {q(AC+(j*2+c)*4)}, {q(consts(j)+4*c)}, {q(OP+4*j)}, 0")
    for j in range(4):
        a(f"s_waitcnt vmcnt({16-4*j+npf})")
        for c in range(2): a(f"{MF} {q(AC+(j*2+c)*4)}, {q(CA+8*j+4*c)}, {q(OP+4*j)}, 0")
    st.mark("lt")
    exchange("v251", "v252", K_E1, "L_E1")
    st.mark("b2x1")
    stage_w(lambda j: CB)
    a(f"s_waitcnt vmcnt({npf})\nL_WPOK:")
    for j in range(4):
        xr = AC + j*8; xi = xr + 4; t = T0 + (j & 1)*8; wr = WRI + (j & 1)*8; wi = wr + 4
        if PREU: wr = 16 + 8*j; wi = wr + 4
        else:
            for i in range(4): a(f"v_lshlrev_b32 v{wr+i}, 16, v{WPK+4*j+i}\nv_and_b32 v{wi+i}, 0xffff0000, v{WPK+4*j+i}")
        for h in (0, 2):
            a(f"v_pk_mul_f32 {d(t+h)}, {d(xr+h)}, {d(wr+h)}")
            a(f"v_pk_mul_f32 {d(t+4+h)}, {d(xi+h)}, {d(wr+h)}")
        for h in (0, 2):
            a(f"v_pk_fma_f32 {d(t+h)}, {d(xi+h)}, {d(wi+h)}, {d(t+h)} neg_lo:[1,0,0] neg_hi:[1,0,0]")
            a(f"v_pk_fma_f32 {d(t+4+h)}, {d(xr+h)}, {d(wi+h)}, {d(t+4+h)}")
        for i in range(4): a(f"v_cvt_pk_bf16_f32 v{OP+4*j+i}, v{t+i}, -v{t+4+i}")
        if j > 0:
            for c in range(2): a(f"{MF} {q(AC+((j-1)*2+c)*4)}, {q(CA+8*(j-1)+4*c)}, {q(OP+4*(j-1))}, 0")
    for c in range(2): a(f"{MF} {q(AC+(6+c)*4)}, {q(CA+24+4*c)}, {q(OP+12)}, 0")
    exchange("v200", "v201", K_E2, "L_E2")
    st.mark("b2x2")
    stage_w(lambda j: CB)
    for j in range(4):
        for i in range(4):
            a(f"v_cvt_pk_bf16_f32 v{PK+j*4+i}, v{AC+j*8+i}, -v{AC+j*8+4+i}")
            a(f"v_or_b32 v{PK+j*4+i}, 1, v{PK+j*4+i}")
            a(f"buffer_store_dword v{PK+j*4+i}, v248, {WS}, s20 offen offset:{j*1024+i*256} sc1")
    st.mark("lb2")
    a("L_NOB2:")
    if B2POS == 1: b3blk()
    a(f"s_setprio {UPRIO}")
    if UGATE == 1: lds_wait(a, K_OI, "L_H2G", 1)
    if UGATE >= 2: lds_wait(a, K_CO, "L_H2G", 1 if UGATE == 2 else 0)
    st.mark("lul")
    a(f"""L_UL:
    buffer_load_dwordx4 {q(AC1)}, v249, {WS}, s61 offen sc1
    buffer_load_dwordx4 {q(AC1+4)}, v249, {WS}, s68 offen sc1
    buffer_load_dword v9, v15, {WS}, s63 offen sc1
    buffer_load_dword v8, v15, {WS}, s63 offen offset:32 sc1
    s_waitcnt vmcnt(3)
    ds_write_b128 v250, {q(AC1)}
    v_and_b32 v1, v{AC1}, v{AC1+1}
    v_and_b32 v12, v{AC1+2}, v{AC1+3}
    s_waitcnt vmcnt(2)
    ds_write_b128 v250, {q(AC1+4)} offset:1024
    v_and_b32 v1, v1, v{AC1+4}
    v_and_b32 v12, v12, v{AC1+5}
    v_and_b32 v1, v1, v{AC1+6}
    v_and_b32 v12, v12, v{AC1+7}
    s_waitcnt vmcnt(0)
    v_and_b32 v1, v1, v8
    v_and_b32 v12, v12, v9
    v_and_b32 v1, v1, v12
    v_and_b32 v1, 1, v1
    v_cmp_eq_u32 vcc, 0, v1
    s_cbranch_vccnz L_URE""")
    st.mark("lua")
    lds_signal(a, K_U); lds_wait(a, K_U, "L_UW")
    for v in range(4):
        for t in range(2): a(f"ds_read_b128 {q(DAT+(v*2+t)*4)}, v10 offset:{t*4096+v*256}")
    a(f"""s_waitcnt vmcnt(0)
    v_lshlrev_b32 v8, 16, v8
    v_and_b32 v12, 0xffff0000, v9
    v_lshlrev_b32 v9, 16, v9
    v_mul_f32 v8, {fhex(2.0**-20)}, v8
    v_mul_f32 v9, v9, v13
    v_fma_f32 v9, -v12, v14, v9
    v_add_f32 v{INI}, v9, v8
    v_sub_f32 v{INI+1}, v9, v8
    v_add_f32 v{INI+2}, v9, v8
    v_sub_f32 v{INI+3}, v9, v8
    v_sub_f32 v{INI+4}, v8, v9
    v_sub_f32 v{INI+5}, -v9, v8
    v_sub_f32 v{INI+6}, v8, v9
    v_sub_f32 v{INI+7}, -v9, v8""")
    for v in range(4):
        for t in range(2):
            b = DAT + (v*2+t)*4
            a(f"s_waitcnt lgkmcnt({7-(v*2+t)})")
            cs = C1 + (16 if t else 8*(v >> 1))
            for c in range(2):
                acc = AC1 + (v*2+c)*4
                a(f"{MF} {q(acc)}, {q(b)}, {q(cs+4*c)}, {q(acc) if t else 0}")
    st.mark("luok")
    for v in range(4):
        for i in range(4): a(f"v_cvt_pk_bf16_f32 v{OP2+i*4+v}, v{AC1+v*8+i}, v{AC1+v*8+4+i}")
    for i in range(4):
        for c in range(2): a(f"{MF} {q(AC2+(i*2+c)*4)}, {q(OP2+i*4)}, {q(C2+4*c)}, 0")
    for i in range(4):
        xr = AC2 + i*8; xi = xr + 4; t0 = TMP + (i & 1)*8
        for ph in range(2):
            sel = "op_sel:[0,1] op_sel_hi:[1,1]" if ph else "op_sel_hi:[1,0]"
            a(f"v_pk_mul_f32 {d(t0+2*ph)}, {d(xr+2*ph)}, {d(TWC+2*i)} {sel}")
            a(f"v_pk_mul_f32 {d(t0+4+2*ph)}, {d(xi+2*ph)}, {d(TWC+2*i)} {sel}")
        for ph in range(2):
            sel = "op_sel:[0,1,0] op_sel_hi:[1,1,1]" if ph else "op_sel_hi:[1,0,1]"
            a(f"v_pk_fma_f32 {d(t0+2*ph)}, {d(xi+2*ph)}, {d(TWS+2*i)}, {d(t0+2*ph)} {sel} neg_lo:[1,0,0] neg_hi:[1,0,0]")
            a(f"v_pk_fma_f32 {d(t0+4+2*ph)}, {d(xr+2*ph)}, {d(TWS+2*i)}, {d(t0+4+2*ph)} {sel}")
        for ph in range(2):
            for rho in range(2):
                a(f"v_cvt_pk_bf16_f32 v{OP3+(rho*2+(i>>1))*4+(i&1)*2+ph}, v{t0+2*ph+rho}, v{t0+4+2*ph+rho}")
    for kap in range(2):
        for rho in range(2):
            for th in range(2):
                acc = AC3 + (rho*2+th)*4
                a(f"{MF} {q(acc)}, {q(OP3+(rho*2+kap)*4)}, {q(C3+kap*8+th*4)}, {q(acc) if kap else q(INI+4*rho)}")
    for rho in range(2):
        for th in range(2):
            acc = AC3 + (rho*2+th)*4; o = OUT + (rho*2+th)*2
            a(f"v_cvt_pk_bf16_f32 v{o}, v{acc}, v{acc+1}\nv_cvt_pk_bf16_f32 v{o+1}, v{acc+2}, v{acc+3}")
            a(f"buffer_store_dwordx2 {d(o)}, v11, s[40:43], s{65+rho} offen offset:{th*512} {YFL.replace('_', ' ')}")
    st.mark("lend")
    if DLE: a(f"s_sleep {DLE}")
    st.dump()
    a("s_endpgm")

def c_main(a, st):
    C1, C2, TWC, TWS, C3A, C3B, DAT, AC1, OP2, AC2 = 16, 48, 64, 80, 96, 104, 112, 144, 160, 168
    OP3, TMP, AC3, ACE, OUT, MSK = 112, 128, 144, 160, 200, 228
    a(f"C_MAIN:\ns_setprio {CPRIO}")
    common_setup(a, st, -1)
    if PT:
        a(f"""s_cmp_eq_u32 s3, 1
        s_cbranch_scc0 C_NOPT
        v_lshlrev_b32 v247, {PT}, v0
        s_lshl_b32 s22, s49, 7
        buffer_load_dword v245, v247, {WS}, s22 offen
        buffer_load_dword v246, v247, s[40:43], s22 offen
        s_load_dword s70, s[8:9], 0
        C_NOPT:""")
    a(f"""s_lshl_b32 s60, s3, 8
    s_mul_i32 s61, s2, s3
    s_add_u32 s59, s61, 512
    s_cmp_eq_u32 s3, 0
    s_cselect_b32 s62, 1024, s60
    s_cselect_b32 s59, 0, s59
    s_cselect_b32 s58, s2, 0
    s_cselect_b32 s65, 0, 0xbe800000
    s_cselect_b64 s[66:67], -1, 0
    v_and_b32 v14, 1, v0
    v_cmp_eq_u32 vcc, 1, v14
    v_mov_b32 v4, 0xffff
    v_mov_b32 v5, 0xffff0000
    v_cndmask_b32 v14, v4, v5, vcc""")
    for r in range(4): a(f"v_cmp_eq_u32 vcc, {r}, v15\nv_cndmask_b32 v{MSK+r}, 0, v14, vcc")
    a(f"""v_lshrrev_b32 v10, 5, v0
    v_mov_b32 v11, s61
    v_mov_b32 v12, s59
    v_mad_u32_u24 v11, v10, s60, v11
    v_mad_u32_u24 v12, v10, s62, v12
    v_cvt_f32_u32 v11, v11
    v_cvt_f32_u32 v12, v12
    v_cvt_f32_u32 v13, s60
    v_cvt_f32_u32 v14, s62
    v_mul_f32 v11, {fhex(1/2048)}, v11
    v_mul_f32 v12, {fhex(1/2048)}, v12
    v_mul_f32 v13, {fhex(2/2048)}, v13
    v_mul_f32 v14, {fhex(2/2048)}, v14""")
    for t in range(4):
        for c in range(2):
            b = C1 + (t*2 + c)*4
            a(f"v_cos_f32 v{b+3}, v{11+c}")
            if t < 3: a(f"v_add_f32 v{11+c}, v{11+c}, v{13+c}")
            a(f"v_cvt_pk_bf16_f32 v{b+3}, v{b+3}, v{b+3}")
            for r in range(4): a(f"v_and_b32 v{b+r}, v{b+3}, v{MSK+r}")
    a(f"v_mul_f32 v10, {fhex(1/32)}, v8\nv_mul_f32 v11, 4.0, v9\nv_mul_f32 v12, v11, v10")
    for i in range(4):
        a(f"v_cos_f32 v{TMP+i}, v12\nv_sin_f32 v{TMP+4+i}, v12")
        if i < 3: a("v_add_f32 v12, v12, v10")
    a("v_lshlrev_b32 v13, 31, v0\nv_lshrrev_b32 v14, 16, v13\nv_or_b32 v13, v13, v14")
    a(f"""v_cvt_pk_bf16_f32 v{C2}, v{TMP}, v{TMP+1}
    v_cvt_pk_bf16_f32 v{C2+1}, v{TMP+2}, v{TMP+3}
    v_cvt_pk_bf16_f32 v{C2+4}, -v{TMP+4}, -v{TMP+5}
    v_cvt_pk_bf16_f32 v{C2+5}, -v{TMP+6}, -v{TMP+7}
    s_brev_b32 s68, 1""")
    for c in range(2):
        b = C2 + 4*c
        a(f"v_xor_b32 v{b+2}, v{b}, v13\nv_xor_b32 v{b+3}, v{b+1}, v13")
        for r in range(4): a(f"v_xor_b32 v{b+8+r}, s68, v{b+r}")
    a("v_add_f32 v10, v10, v10\nv_mul_f32 v12, v11, v10")
    a("""v_cmp_gt_u32 vcc, 8, v2
    s_andn2_b64 s[22:23], s[66:67], vcc
    s_and_b64 s[66:67], s[66:67], vcc
    v_cndmask_b32 v13, -1, 0, s[22:23]
    v_cndmask_b32 v14, -1, 0, s[66:67]""")
    for i in range(4):
        a(f"""v_cos_f32 v{TMP}, v12
        v_sin_f32 v{TMP+1}, v12
        v_add_f32 v15, s65, v12
        v_cos_f32 v{TMP+2}, v15
        v_sin_f32 v{TMP+3}, v15""")
        if i < 3: a("v_add_f32 v12, v12, v10")
        a(f"""v_cvt_pk_bf16_f32 v{C3A+i}, v{TMP}, v{TMP+1}
        v_cvt_pk_bf16_f32 v{C3A+4+i}, -v{TMP+1}, v{TMP}
        v_cvt_pk_bf16_f32 v{C3B+i}, v{TMP+2}, v{TMP+3}
        v_cvt_pk_bf16_f32 v{C3B+4+i}, -v{TMP+3}, v{TMP+2}""")
    for r in range(8): a(f"v_and_b32 v{C3A+r}, v{C3A+r}, v13\nv_and_b32 v{C3B+r}, v{C3B+r}, v14")
    a(f"""s_cmp_lt_u32 s52, {nclr()}
    s_cbranch_scc0 C_NOGO
    s_and_b32 s22, s52, 1
    s_lshl_b32 s22, s22, 7
    s_mov_b64 exec, 1
    s_waitcnt vmcnt(2)
    buffer_atomic_add v255, v7, s[44:47], s22 offen sc1
    s_mov_b64 exec, -1
    s_waitcnt vmcnt(1)
    s_mov_b32 s52, 0
    C_NOGO:""")
    a(f"v_cvt_f32_u32 v14, s58\nv_mul_f32 v14, {fhex(1/512)}, v14")
    for tau in range(2):
        a(f"v_mul_f32 v10, {fhex(1/512)}, v8")
        if tau: a(f"v_add_f32 v10, {fhex(16/512)}, v10")
        a("v_mul_f32 v12, v11, v10")
        for i in range(4):
            k0 = tau*4 + i; k1 = 8 + k0
            a(f"""v_cos_f32 v{TWC+k0}, v12
            v_sin_f32 v{TWS+k0}, v12
            v_add_f32 v15, v12, v14
            v_cos_f32 v{TWC+k1}, v15
            v_sin_f32 v{TWS+k1}, v15""")
            if i < 3: a("v_add_f32 v12, v12, v10")
    a(f"""v_lshrrev_b32 v14, 5, v0
    v_lshlrev_b32 v10, 10, v14
    v_lshl_add_u32 v10, v2, 5, v10
    v_and_b32 v12, 16, v0
    v_add_u32 v10, v10, v12
    v_add_u32 v10, {BXB}, v10""")
    a(f"""v_lshlrev_b32 v11, 16, v3
    v_lshl_add_u32 v11, v2, 2, v11
    v_and_b32 v12, 6, v2
    v_xor_b32 v12, v12, v3
    v_lshlrev_b32 v12, 4, v12
    v_lshl_add_u32 v4, v2, 7, v12
    v_add_u32 v4, {XB}, v4
    v_xor_b32 v5, 64, v4
    v_bfe_u32 v12, v0, 2, 3
    v_bfe_u32 v13, v0, 1, 1
    v_and_b32 v15, 6, v12
    v_xor_b32 v13, v13, v15
    v_lshlrev_b32 v13, 4, v13
    v_lshl_add_u32 v13, v12, 7, v13
    v_and_b32 v15, 1, v0
    v_lshl_add_u32 v13, v15, 3, v13
    s_lshl_b32 s22, s3, 5
    v_xor_b32 v13, s22, v13
    v_lshl_add_u32 v6, v14, 12, v13
    v_lshl_add_u32 v8, v14, 11, v13
    v_lshlrev_b32 v9, 8, v14
    v_lshl_add_u32 v9, v2, 4, v9
    s_and_b32 s60, s2, 15
    s_lshl_b32 s60, s60, 4
    s_bfe_u32 s61, s2, 0x20004
    s_lshl2_add_u32 s60, s61, s60
    s_lshr_b32 s61, s2, 6
    s_add_u32 s60, s60, s61
    s_lshl_b32 s60, s60, 6
    s_lshl_b32 s61, s3, 19
    s_add_u32 s61, s61, s60
    s_add_u32 s60, s60, {128*16384}
    s_lshl2_add_u32 s53, s51, s3
    s_lshl_b32 s58, s53, 14
    s_add_u32 s58, s58, {KVP_OFF}
    s_lshl_b32 s59, s53, 11
    s_add_u32 s59, s59, {ZP_OFF}
    s_lshl_b32 s63, s50, 9
    s_add_u32 s63, s63, s58
    s_lshl_b32 s64, s50, 6
    s_add_u32 s64, s64, s59
    s_getreg_b32 s23, hwreg(HW_REG_XCC_ID)
    s_and_b32 s23, s23, 15
    s_cmp_eq_u32 s23, {'s48' if not FORCESLOW else '15'}
    s_cselect_b32 s23, 1, 0x10001
    v_mov_b32 v240, s23
    s_cmp_eq_u32 s3, 0
    s_cselect_b32 s18, {SIG1-1}, -1
    v_lshlrev_b32 v241, 2, v2
    v_lshl_add_u32 v13, v14, 5, v241
    s_mov_b32 s22, 0x3f803f80
    v_mov_b32 v232, s22
    v_mov_b32 v233, s22
    v_mov_b32 v234, s22
    v_mov_b32 v235, s22
    s_mov_b32 s66, {fhex(1.4426950408889634)}
    s_mov_b32 s67, s66
    s_mov_b32 s65, {fhex(1e-6)}
    s_mov_b64 s[36:37], s[8:9]
    s_mov_b32 s38, 0x80000
    s_mov_b32 s39, s31
    s_lshl_b32 s21, s3, 14
    s_lshl_b32 s22, s55, 7
    s_add_u32 s21, s21, s22
    v_lshrrev_b32 v242, 3, v0
    v_and_b32 v243, 7, v0
    v_and_b32 v230, 6, v242
    v_xor_b32 v243, v243, v230
    v_lshlrev_b32 v243, 4, v243
    v_and_b32 v230, 4, v242
    v_add_u32 v242, v242, v230
    v_lshl_add_u32 v242, v242, 10, v243
    v_lshlrev_b32 v243, 4, v3
    v_lshrrev_b32 v231, 2, v2
    v_lshl_add_u32 v231, v14, 2, v231
    v_lshlrev_b32 v231, 7, v231
    v_and_b32 v230, 3, v2
    v_lshl_add_u32 v231, v230, 4, v231
    v_and_b32 v230, 1, v3
    v_lshl_add_u32 v231, v230, 3, v231""")
    st.mark("cconst")
    a("s_cmp_eq_u32 s52, 0\ns_cbranch_scc1 C_BXOK\ns_waitcnt vmcnt(0)\nC_BXOK:")
    lds_signal(a, K_BX)
    lds_wait(a, K_BX, "C_BXW")
    st.mark("cbx")
    for u in range(2):
        for t in range(4): a(f"ds_read_b128 {q(DAT+(u*4+t)*4)}, v10 offset:{t*2048+u*512}")
    for u in range(2):
        for t in range(4):
            a(f"s_waitcnt lgkmcnt({7-(u*4+t)})")
            for c in range(2):
                acc = AC1 + (u*2+c)*4
                a(f"{MF} {q(acc)}, {q(DAT+(u*4+t)*4)}, {q(C1+(t*2+c)*4)}, {q(acc) if t else 0}")
    for u in range(2):
        for rho in range(2):
            s = AC1 + (u*2+rho)*4
            a(f"v_cvt_pk_bf16_f32 v{OP2+rho*4+u*2}, v{s}, v{s+1}\nv_cvt_pk_bf16_f32 v{OP2+rho*4+u*2+1}, v{s+2}, v{s+3}")
    for rho in range(2):
        for tau in range(2):
            for c in range(2): a(f"{MF} {q(AC2+((rho*2+tau)*2+c)*4)}, {q(OP2+rho*4)}, {q(C2+(tau*2+c)*4)}, 0")
    def st3(rho, tau):
        for c in range(2):
            acc = AC3 + (tau*2+c)*4
            a(f"{MF} {q(acc)}, {q((C3B if rho else C3A)+4*c)}, {q(OP3+(rho*2+tau)*4)}, {q(acc) if rho else 0}")
        if tau == 0:
            for c in range(2):
                acc = ACE + 4*c
                a(f"{MF} {q(acc)}, {q((C3A if rho else C3B)+4*c)}, {q(OP3+(rho*2)*4)}, {q(acc) if rho else 0}")
    prev = None
    for rho in range(2):
        for tau in range(2):
            xr = AC2 + ((rho*2+tau)*2)*4; xi = xr + 4; k = rho*8 + tau*4
            t0 = TMP + ((rho*2+tau) & 1)*8
            for h in (0, 2):
                a(f"v_pk_mul_f32 {d(t0+h)}, {d(xr+h)}, {d(TWC+k+h)}")
                a(f"v_pk_mul_f32 {d(t0+4+h)}, {d(xi+h)}, {d(TWC+k+h)}")
            if prev: st3(*prev)
            for h in (0, 2):
                a(f"v_pk_fma_f32 {d(t0+h)}, {d(xi+h)}, {d(TWS+k+h)}, {d(t0+h)}")
                a(f"v_pk_fma_f32 {d(t0+4+h)}, {d(xr+h)}, {d(TWS+k+h)}, {d(t0+4+h)} neg_lo:[1,0,0] neg_hi:[1,0,0]")
            for i in range(4): a(f"v_cvt_pk_bf16_f32 v{OP3+(rho*2+tau)*4+i}, v{t0+i}, v{t0+4+i}")
            prev = (rho, tau)
    st3(*prev)
    st.mark("cb1")
    for tau in range(2):
        for i in range(4): a(f"v_cvt_pk_bf16_f32 v{OUT+tau*4+i}, v{AC3+tau*8+i}, v{AC3+tau*8+4+i}")
    a(f"v_cvt_pk_bf16_f32 v14, v{ACE}, v{ACE+4}")
    for k in range(8): a(f"v_and_b32 v{OUT+k}, -2, v{OUT+k}")
    a("v_and_b32 v14, -2, v14")
    AK, AV, AQ = 144, 160, 112
    for r in range(0, 32, 2): a(f"v_pk_mul_f32 {d(AK+r)}, {d(232)}, 0")
    if TPOS == 0: a("s_branch C_TST\nC_TRET:")
    st.mark("cst")
    SET = [0]
    XF = lambda ks, R: 16 + SET[0]*48 + (ks*4 + R)*4
    WF = lambda ks, p: 48 + SET[0]*48 + (ks*2 + p)*4
    def reads(ks):
        L = []
        o = SET[0]
        def w(p):
            for eta in range(2): L.append(f"ds_read_b64_tr_b16 {d(WF(ks,p)+2*eta)}, v6 offset:{o*16384 + (4*ks+eta)*2048 + p*1024}")
        w(0)
        for R in range(4): L.append(f"ds_read_b128 {q(XF(ks,R))}, v{4+ks} offset:{o*8192 + R*2048}")
        w(1)
        return L
    def mf(ks, p): return [f"{MF} {q(AK+(p*4+R)*4)}, {q(XF(ks,R))}, {q(WF(ks,p))}, {q(AK+(p*4+R)*4)}" for R in range(4)]
    def chunk(newset, extra=""):
        SET[0] = 1 - newset; M = mf(0, 0) + mf(0, 1) + mf(1, 0) + mf(1, 1)
        SET[0] = newset; Rd = reads(0) + reads(1)
        k = 0
        for i, m in enumerate(M):
            a(m)
            for _ in range(RPM):
                if Rd:
                    if k == 14: a("s_waitcnt lgkmcnt(8)")
                    a(Rd.pop(0)); k += 1
            if i == 11: a(extra)
        a("s_waitcnt lgkmcnt(0)")
    adv = "v_add_u32 v4, 0x4000, v4\nv_add_u32 v5, 0x4000, v5\nv_xor_b32 v6, 0x8000, v6"
    a("s_mov_b32 s68, 1\ns_barrier")
    st.mark("cf0")
    SET[0] = 0
    for k, r in enumerate(reads(0) + reads(1)):
        if k == 14: a("s_waitcnt lgkmcnt(8)")
        a(r)
    a("s_waitcnt lgkmcnt(0)\nC_LOOP:\ns_barrier")
    assert TPOS in (0, 1) and SIG1 in (4, 6)
    chunk(1, adv)
    if TPOS == 1: a("s_cmp_eq_u32 s68, 1\ns_cbranch_scc1 C_TST\nC_TRET:")
    a(f"""s_cmp_lg_u32 s68, {SIG1-1}
    s_cbranch_scc1 C_NOW
    s_waitcnt vmcnt(0)
    C_NOW:
    s_barrier
    s_cmp_eq_u32 s68, s18
    s_cbranch_scc1 C_SIG
    C_MID:""")
    chunk(0, "s_add_u32 s68, s68, 2\ns_cmp_lt_u32 s68, 7")
    a("s_cbranch_scc1 C_LOOP")
    SET[0] = 0
    for m in mf(0, 0) + mf(1, 0): a(m)
    V6 = mf(0, 1) + mf(1, 1)
    SET[0] = 1
    a(f"""s_cmp_eq_u32 s3, 0
    s_cbranch_scc0 C_NOTK
    s_waitcnt vmcnt(0)
    v_readfirstlane_b32 s22, v240
    s_and_b32 s22, s22, 0xffff
    s_and_b32 s23, s2, 15
    s_lshl4_add_u32 s22, s22, s23
    {"" if DYN else "s_mov_b32 s22, s2"}
    v_mov_b32 v240, s22
    ds_write_b32 v254, v240 offset:{4*K_TASK}
    C_NOTK:
    s_barrier""")
    st.mark("cl1")
    if DLM: a(f"s_sleep {DLM}")
    R0, R1 = reads(0), reads(1)
    RR = R0[:6] + R1[:6]
    for i, m in enumerate(V6):
        for r in RR[2*i:2*i+2]: a(r)
        a(m)
    M = mf(0, 0)
    for i in range(4): a(f"s_waitcnt lgkmcnt({9-i})"); a(M[i])
    for r in R0[6:] + R1[6:]: a(r)
    M = mf(1, 0)
    for i in range(4): a(f"s_waitcnt lgkmcnt({7-i})"); a(M[i])
    a("s_waitcnt lgkmcnt(0)")
    lds_signal(a, K_C7)
    KP, VP, KV, ZZ, KO = 208, 216, 236, 244, 248
    MV = mf(0, 1) + mf(1, 1)
    for m in MV[:2]: a(m)
    MV = MV[2:]
    def phi_list(src, dst, tmp):
        L = []
        for g4 in range(0, 16, 4):
            L += [f"v_pk_mul_f32 {d(tmp+g4+h)}, {d(src+g4+h)}, s[66:67]" for h in (0, 2)]
        for h in range(16):
            L += [f"v_exp_f32 v{tmp+h}, v{tmp+h} clamp", f"v_max_f32 v{src+h}, s65, v{src+h}"]
        for h in range(0, 16, 2): L += [f"v_pk_add_f32 {d(src+h)}, {d(src+h)}, {d(tmp+h)}"]
        for h in range(8): L += [f"v_cvt_pk_bf16_f32 v{dst+h}, v{src+2*h}, v{src+2*h+1}"]
        return L
    P = phi_list(AK, KP, 128)
    V = [f"v_cvt_pk_bf16_f32 v{VP+h}, v{AV+2*h}, v{AV+2*h+1}" for h in range(8)]
    P = P[:40] + V + P[40:]
    for i, x in enumerate(P):
        a(x)
        if i % 2 == 1 and MV: a(MV.pop(0))
        if i == len(P) - 3: a(f"{MF} {q(KV)}, {q(KP)}, {q(VP)}, 0")
    a(f"""{MF} {q(ZZ)}, v[232:235], {q(KP)}, 0
    {MF} {q(KV)}, {q(KP+4)}, {q(VP+4)}, {q(KV)}
    {MF} {q(ZZ)}, v[232:235], {q(KP+4)}, {q(ZZ)}
    v_subrev_u32 v4, 0xc000, v4
    v_subrev_u32 v5, 0xc000, v5
    v_mov_b32 v11, v231
    s_lshl_b32 s58, s53, 11
    s_add_u32 s58, s58, {KVF_OFF}
    v_cvt_pk_bf16_f32 v{KO}, v{KV}, v{KV+1}
    v_cvt_pk_bf16_f32 v{KO+1}, v{KV+2}, v{KV+3}
    v_min_u32 v{KO+2}, -2, v{KO}
    v_min_u32 v{KO+3}, -2, v{KO+1}
    v_min_u32 v{KO}, -2, v{KO}
    v_min_u32 v{KO+1}, -2, v{KO+1}
    v_min_u32 v{ZZ}, -2, v{ZZ}
    v_permlane16_swap_b32 v{KO+1}, v{KO+3}
    v_permlane16_swap_b32 v{KO}, v{KO+2}
    s_mov_b32 exec_lo, 0xffff
    s_mov_b32 exec_hi, 0xffff
    buffer_store_dwordx4 {q(KO)}, v9, {WS}, s63 offen sc1
    s_mov_b32 exec_hi, 0
    buffer_store_dword v{ZZ}, v241, {WS}, s64 offen sc1
    s_mov_b64 exec, -1""")
    st.mark("t0")
    class LQ:
        def __init__(self): self.o = []; self.seen = set()
        def issue(self, txt, tag):
            if len(self.o) >= 15: self.drain(10)
            a(txt); self.o.append(tag); self.seen.add(tag)
        def drain(self, n):
            if len(self.o) > n: a(f"s_waitcnt lgkmcnt({n})"); self.o = self.o[len(self.o)-n:] if n else []
        def need(self, *tags):
            idx = [i for i, t in enumerate(self.o) if t in tags]
            if idx: self.drain(len(self.o) - 1 - max(idx))
    lq = LQ()
    XS = [16 + 16*k for k in range(6)] + [144 + 16*k for k in range(4)]
    xs = lambda s_: XS[s_ % NPRE]
    wq = lambda s_: (128 if (s_ >> 2) % 2 == 0 else 208) + 4*(s_ & 3)
    def xr(s_): return [(f"ds_read_b128 {q(xs(s_)+4*R)}, v{4+(s_&1)} offset:{(s_>>1)*8192 + R*2048}", f"x{s_}") for R in range(4)]
    def wr_(g_): return [(f"ds_read_b64_tr_b16 {d(wq(s_)+2*eta)}, v8 offset:{g_*16384 + ((s_>>1)&1)*8192 + (4*(s_&1)+eta)*1024}", f"w{s_}") for s_ in range(4*g_, 4*g_+4) for eta in range(2)]
    lq.issue(f"ds_read_b32 v253, v254 offset:{4*K_Q}", "c")
    for s_ in range(2):
        for t in xr(s_): lq.issue(*t)
    lq.need("c")
    a("v_cmp_ne_u32 vcc, 4, v253\ns_cbranch_vccnz C_QS0\nC_QR0:")
    st.mark("cq0")
    for t in wr_(0): lq.issue(*t)
    pend = []
    for s_ in range(2, NPRE): pend += xr(s_)
    for g_ in range(4):
        if g_ < 3: lq.issue(f"ds_read_b32 v253, v254 offset:{4*(K_Q+1+g_)}", "c")
        for s_ in range(4*g_, 4*g_+4):
            if s_ & 3 == 1 and g_ < 3:
                lq.need("c")
                a(f"v_cmp_ne_u32 vcc, 4, v253\ns_cbranch_vccnz C_QS{g_+1}\nC_QR{g_+1}:")
                st.mark(f"cq{g_+1}")
                pend += wr_(g_+1)
            while any(t[1] in (f"x{s_}", f"w{s_}") for t in pend): lq.issue(*pend.pop(0))
            lq.need(f"x{s_}", f"w{s_}")
            if s_ == 4: lq.issue(f"s_mov_b64 exec, 1\nds_add_u32 v254, v255 offset:{4*K_G0}\ns_mov_b64 exec, -1", "a")
            if s_ >= 1 and s_ - 1 + NPRE < 16: pend += xr(s_ - 1 + NPRE)
            for R in range(4):
                a(f"{MF} {q(AQ+R*4)}, {q(wq(s_))}, {q(xs(s_)+4*R)}, {q(AQ+R*4) if s_ else 0}")
                for _ in range(2):
                    if pend: lq.issue(*pend.pop(0))
    assert not lq.o and not pend
    st.mark("cp2")
    QP, PP, ZL = 96, 16, 80
    def pl(p0, p1, fl):
        for p in range(p0, p1):
            if p % 2 == 0: a(f"s_add_u32 s22, s60, {p*1024}\ns_and_b32 s22, s22, 0x3fff\ns_add_u32 s22, s22, s58")
            a(f"buffer_load_dwordx4 {q(PP+4*p)}, v7, {WS}, s22 offen offset:{(p&1)*1024} {fl}")
    lds_signal(a, K_X)
    a(f"ds_read_b32 v1, v254 offset:{4*K_TASK}")
    for x in phi_list(AQ, QP, 128): a(x)
    lds_wait(a, K_X, "C_XW")
    def cwo(poss):
        for pos in poss:
            a(f"""s_add_u32 s5, s57, {(pos+2) & 7}
            s_and_b32 s5, s5, 7
            s_lshl_b32 s5, s5, 16
            s_add_u32 m0, s69, {XB + 16384 + pos*8192}
            s_add_u32 s5, s5, s21
            buffer_load_dwordx4 v242, s[36:39], s5 offen lds
            s_add_u32 s5, s5, 3072
            buffer_load_dwordx4 v242, s[36:39], s5 offen offset:1024 lds""")
    if RCL:
        a("v_readfirstlane_b32 s56, v1\ns_sub_u32 s22, s56, 129\ns_cmp_lt_u32 s22, 72\ns_cbranch_scc0 C_NORD")
        lds_wait(a, K_RD, "C_RDW", 1)
        cwo((6, 7))
        a("C_NORD:")
    cwo(range(6))
    st.mark("cpi")
    DEN, NUM = 112, 128
    a(f"v_and_b32 v12, 1, v3\nv_lshl_add_u32 v12, v12, 14, v9")
    FS = 2 if MAP == 48 else 7
    FO = F0_OFF + (OF_OFF if MAP == 48 else OF2_OFF)
    a(f"""s_lshl_b32 s61, s50, 16
    s_lshl_b32 s62, s53, 9
    s_add_u32 s61, s61, s62
    s_add_u32 s61, s61, {O_OFF}
    s_add_u32 s62, s61, 0x8000
    s_lshl_b32 s6, s54, {5+FS}
    s_add_u32 s6, s6, {FO}
    s_lshl_b32 s7, s50, 5
    s_add_u32 s7, s7, s53
    s_lshl_b32 s7, s7, {FS}
    s_add_u32 s7, s7, {FO}""")
    if MAP == 48: a(f"ds_read_b64 v[238:239], v254 offset:{4*K_MODE}")
    a(f"""C_PF:
    buffer_load_dwordx4 {q(ZL)}, v243, {WS}, s58 offen offset:1024 sc1
    buffer_load_dwordx2 {d(ZL+6)}, v11, {WS}, s58 offen sc1
    s_waitcnt vmcnt(0)
    v_max3_u32 v1, v{ZL}, v{ZL+1}, v{ZL+2}
    v_max3_u32 v14, v{ZL+3}, v{ZL+6}, v{ZL+7}
    v_cvt_pk_bf16_f32 v{ZL+4}, v{ZL}, v{ZL+1}
    v_max_u32 v1, v1, v14
    v_cvt_pk_bf16_f32 v{ZL+5}, v{ZL+2}, v{ZL+3}
    v_cmp_eq_u32 vcc, -1, v1
    s_cbranch_vccnz C_PFRE""")
    st.mark("ckv")
    for R in range(4): a(f"{M16} {q(DEN+4*R)}, {d(ZL+4)}, {d(QP+2*R)}, 0")
    for R in range(4): a(f"{M16} {q(NUM+4*R)}, {d(ZL+6)}, {d(QP+2*R)}, 0")
    lds_signal(a, K_WO)
    if MAP == 48: a("s_waitcnt lgkmcnt(1)\nv_readfirstlane_b32 s75, v238\nv_readfirstlane_b32 s73, v239")
    for R in range(4): a(f"v_add_f32 v{DEN+4*R}, s65, v{DEN+4*R}")
    for R in range(4): a(f"v_rcp_f32 v{DEN+4*R}, v{DEN+4*R}")
    if MAP == 48: a("s_cmp_eq_u32 s73, 4\ns_cbranch_scc0 C_MW\nC_MWR:\ns_nop 2")
    OO = 244
    for pr in range(2):
        for R in (2*pr, 2*pr+1):
            for h in (0, 2): a(f"v_pk_mul_f32 {d(NUM+4*R+h)}, {d(NUM+4*R+h)}, {d(DEN+4*R)} op_sel_hi:[1,0]")
            a(f"v_cvt_pk_bf16_f32 v{OO+2*R}, v{NUM+4*R}, v{NUM+4*R+1}\nv_cvt_pk_bf16_f32 v{OO+2*R+1}, v{NUM+4*R+2}, v{NUM+4*R+3}")
        o = OO + 4*pr
        a(f"v_permlane16_swap_b32 v{o}, v{o+2}\nv_permlane16_swap_b32 v{o+1}, v{o+3}")
        if MAP != 48: a(f"buffer_store_dwordx4 {q(o)}, v12, {WS}, s{61+pr} offen sc1")
    if MAP == 48:
        a(f"""s_cmp_eq_u32 s75, 0
        s_cbranch_scc0 C_OSLOW
        buffer_store_dwordx4 {q(OO)}, v12, {WS}, s61 offen
        buffer_store_dwordx4 {q(OO+4)}, v12, {WS}, s62 offen
        C_OST:""")
    st.mark("co")
    a(f"""s_lshl_b32 s22, s3, 5
    v_xor_b32 v8, s22, v8
    v_add_u32 v8, {XB + 16384}, v8
    v_xor_b32 v9, 32, v8
    v_xor_b32 v10, 64, v8
    v_xor_b32 v11, 96, v8
    v_lshlrev_b32 v13, {FS}, v0
    s_lshl2_add_u32 s58, s54, s3
    s_lshl_b32 s61, s58, 15
    s_lshl_b32 s58, s58, 14
    s_add_u32 s58, s58, {O_OFF}
    s_lshl_b32 s60, s57, 11
    s_add_u32 s60, s60, 4096
    s_lshl_b32 s22, s55, 7
    s_add_u32 s61, s61, s22
    v_lshlrev_b32 v12, 11, v2
    v_and_b32 v14, 1, v3
    v_lshl_add_u32 v12, v14, 5, v12
    v_lshrrev_b32 v14, 1, v3
    v_lshl_add_u32 v12, v14, 4, v12""")
    OF, ACC = 16, 128
    WB = [80, 96, 112, 160, 176, 192, 208, 224, 144]
    wb = lambda p: WB[p % NWO]
    def wreads(p): return [(f"ds_read_b64_tr_b16 {d(wb(p)+4*t+2*eta)}, v{8+t} offset:{p*4096 + eta*1024}", f"o{p}") for t in range(4) for eta in range(2)]
    a("s_cmp_eq_u32 s75, 0\ns_waitcnt vmcnt(0)")
    st.mark("cab")
    if MAP == 48:
        a(f"""s_mov_b64 exec, 1
        s_cbranch_scc0 C_FSLOW
        buffer_store_dword v255, v7, {WS}, s7 offen
        C_FST:
        s_mov_b64 exec, -1""")
    else: a(f"s_mov_b64 exec, 1\nbuffer_store_dword v255, v7, {WS}, s7 offen sc1\ns_mov_b64 exec, -1")
    if UGATE == 2: lds_signal(a, K_CO)
    lds_wait(a, K_WO, "C_WW")
    if W67: lds_wait(a, K_W67, "C_WW2")
    st.mark("cww")
    for p in range(0, 4):
        for t in wreads(p): lq.issue(*t)
    a(f"s_mov_b32 exec_hi, 0\nbuffer_load_dword v1, v13, {WS}, s6 offen sc1\ns_mov_b32 exec_hi, -1")
    for p in range(4, NWO):
        for t in wreads(p): lq.issue(*t)
    a(f"""s_mov_b32 exec_hi, 0
    C_OP:
    s_waitcnt vmcnt(0)
    v_cmp_ne_u32 vcc, 1, v1
    s_cbranch_vccnz C_OPRE
    s_mov_b64 exec, -1""")
    st.mark("cof")
    if UGATE == 3: lq.issue(f"s_mov_b64 exec, 1\nds_add_u32 v254, v255 offset:{4*K_CO}\ns_mov_b64 exec, -1", "a")
    pl(0, OIL, OFL)
    iss = OIL
    for p in range(16):
        if p >= 1 and iss < 16: pl(iss, iss+2, OFL); iss += 2
        if iss == 16:
            lq.issue(f"s_mov_b64 exec, 1\nds_add_u32 v254, v255 offset:{4*K_OI}\ns_mov_b64 exec, -1", "a")
            st.mark("coi"); iss = 17
        a(f"s_waitcnt vmcnt({min(iss, 16)-1-p})")
        lq.need(f"o{p}")
        if p == 0: st.mark("cg0")
        R = wreads(p-1+NWO) if p >= 1 and p-1+NWO < 16 else []
        for t in range(4):
            a(f"{MF} {q(ACC+4*t)}, {q(wb(p)+4*t)}, {q(OF+4*p)}, {q(ACC+4*t) if p else 0}")
            for r in R[2*t:2*t+2]: lq.issue(*r)
    st.mark("cg")
    for pr in range(2):
        o = 144 + pr*4
        for t in range(2):
            acc = ACC + (pr*2+t)*4
            a(f"v_cvt_pk_bf16_f32 v{o+2*t}, v{acc}, v{acc+1}\nv_cvt_pk_bf16_f32 v{o+2*t+1}, v{acc+2}, v{acc+3}")
        a(f"v_permlane16_swap_b32 v{o}, v{o+2}\nv_permlane16_swap_b32 v{o+1}, v{o+3}")
        a(f"buffer_store_dwordx4 {q(o)}, v12, s[40:43], s61 offen offset:{64*pr} {OUTFL.replace('_', ' ')}")
    st.dump()
    a("s_endpgm")
    a("C_TST:")
    for k in range(8): a(f"buffer_store_dword v{OUT+k}, v11, {WS}, s61 offen sc1\ns_add_u32 s61, s61, {0x4000 if k != 3 else 0x40000-3*0x4000}")
    a(f"""s_cmp_eq_u32 s3, 0
    s_cbranch_scc0 C_TRET
    s_mov_b32 exec_lo, 0xff
    s_mov_b32 exec_hi, 0xff
    buffer_store_dword v14, v13, {WS}, s60 offen sc1
    s_mov_b64 exec, -1
    s_branch C_TRET
    C_SIG:
    s_mov_b64 exec, 1
    buffer_atomic_add v240, v7, {WS}, s19 offen sc0 sc1
    s_mov_b64 exec, -1
    s_branch C_MID
    C_OPRE:""")
    spin_check(a, 0 if MAP == 48 else 2)
    a(f"buffer_load_dword v1, v13, {WS}, s6 offen sc1\ns_branch C_OP")
    for g_ in range(4):
        lds_wait(a, K_Q+g_, f"C_QS{g_}")
        a(f"s_branch C_QR{g_}")
    if RCL:
        a("L_R67:\ns_mov_b64 exec, 1\ns_brev_b32 s5, 2")
        for k in range(4): a(f"buffer_load_dword v203, v206, {WS}, s5 offen")
        a("s_mov_b64 exec, -1\ns_branch L_R68")
    a("L_REDRE:")
    spin_check(a, RSLP, 100)
    a("s_branch L_RED")
    a("L_URE:")
    if UGATE != 1: lds_wait(a, K_OI, "L_URG", 1)
    spin_check(a, USLP)
    a("s_waitcnt lgkmcnt(0)\ns_branch L_UL\nL_H1RE:")
    spin_check(a, PSLEEP)
    a(f"buffer_load_dword v205, v250, {WS}, 0 offen sc1\ns_waitcnt vmcnt(0)\ns_branch L_H1")
    a("C_PFRE:")
    spin_check(a, FSLP, 100)
    a("s_branch C_PF")
    if MAP == 48:
        lds_wait(a, K_H1, "C_MW")
        a(f"""ds_read_b32 v238, v254 offset:{4*K_MODE}
        s_waitcnt lgkmcnt(0)
        v_readfirstlane_b32 s75, v238
        s_branch C_MWR
        C_OSLOW:
        buffer_store_dwordx4 {q(OO)}, v12, {WS}, s61 offen sc1
        buffer_store_dwordx4 {q(OO+4)}, v12, {WS}, s62 offen sc1
        s_branch C_OST
        C_FSLOW:
        buffer_store_dword v255, v7, {WS}, s7 offen sc1
        s_branch C_FST""")
    a("L_GORE:")
    spin_check(a, RESLEEP)
    a("buffer_load_dword v204, v249, s[44:47], 0 offen sc1\ns_waitcnt vmcnt(0)\ns_branch L_GO\nL_END:\ns_endpgm")
    a(f".fill (33280-(.-{NAME}))/4, 4, 0xbf810000")

HEADER = open("concat_heads__linear_attn_block__spectral_gfnet__prompt.s.ref").read().split("; Override")[0]

def main(out):
    a = Asm(); st = Stamps(a)
    entry(a, st); l_main(a, st); c_main(a, st)
    txt = HEADER + f"""; @launch grid=(256,1,1) block=(512,1,1) lds={LDS_SIZE}
.amdgcn_target "amdgcn-amd-amdhsa--gfx950"
.text
""" + a.finalize() + f""".section .rodata,"a"
.p2align 6
.amdhsa_kernel {NAME}
  .amdhsa_next_free_vgpr 256
  .amdhsa_next_free_sgpr 102
  .amdhsa_accum_offset 256
  .amdhsa_group_segment_fixed_size 0
  .amdhsa_kernarg_size 72
  .amdhsa_user_sgpr_count 2
  .amdhsa_user_sgpr_kernarg_segment_ptr 1
  .amdhsa_system_sgpr_workgroup_id_x 1
.end_amdhsa_kernel
"""
    open(out, "w").write(txt)

if __name__ == "__main__":
    for arg in sys.argv[2:]:
        if arg == "stamp": STAMP = True
        elif "=" in arg:
            k, v = arg.split("=", 1)
            globals()[k] = int(v) if v.lstrip("-").isdigit() else v
    main(sys.argv[1])
```

```python
import sys, struct
from asm import Asm

T_OFF = 0; ROW = 8320; U_OFF = 0x240000; WP_OFF = 0x480000; KVP_OFF = 0x6C0000; ZP_OFF = 0x740000
KVF_OFF = 0x6B0000; F0_OFF = 0x750000; O_OFF = 0x800000; WS_SIZE = 0xA00000; DBG_OFF = 0xA00000
XB = 65536; BXB = 131072; EB = 147456; CNT = 163584; WRB = EB; SPB = WRB + 16*576; LDS_SIZE = 163840
OF_OFF = 4096; H2_OFF = 8192; OF2_OFF = 16384
STAMP = False
NAME = "concat_heads__linear_attn_block__spectral_gfnet__prompt_kernel"
SPIN = 0x40000
MAP = 48; GPOS = 1; SIG1 = 4; TPOS = 1; RCL = 1; TFIRST = 0; OIL = 10; PFS = 0; EXIT0 = 0; EARLY = 0; NOOUT = 0; PREU = 1; PSLEEP = 2; RESLEEP = 2; CPRIO = 2; LPRIO = 3; FORCESLOW = 0
OUTFL = ""; TFL = "sc1"; UFL = "sc1"; OFL = "sc1"; NPRE = 5; NWO = 9; PSPLIT = 8; HPOS = 0; XROT = 1; BNT = ""; XNT = ""; QPF = 0; RP = 2; PT = 0; DLY = 0; XW = 0; XB_ = 0; DLE = 0; DLM = 0; WSB = 0; ROTM = 7; F3E = 0; RPM = 2; B2POS = 1; WNT = ""; PFL = "sc1"; YFL = ""; SFL = "sc1"; LBAR = 0; WOX = 1; WOAT = 2; DYN = 1; PFB = 0; UGATE = 1; USLP = 4; PROT = 0; PEXP = 0; RPOS = 0; RSLP = 2; FSLP = 2; UPRIO = 3; MW = 0; MWQ = 0; OPF = 7; W67 = 1; B3LATE = 0; NOPF = 0; LSLP = 1; NBSLP = 0
MC = "cbx,cst,cf0,t0,cp2,ckv,co,cww,cof,coi,cg"; ML = "iss,lf0,lf7,lq3,lh1,lt,lb2,lack,lul,luok,lend"
K_BX, K_X, K_WO, K_E1, K_E2, K_MODE, K_H1, K_Q, K_H2, K_OI, K_C7, K_TASK, K_G0, K_U, K_CO, K_W67 = 0, 1, 2, 3, 4, 6, 7, 8, 12, 13, 14, 15, 16, 17, 18, 19
K_RD = 12

def fhex(x): return "0x%08x" % struct.unpack("<I", struct.pack("<f", x))[0]
def q(b): return "v[%d:%d]" % (b, b + 3)
def d(b): return "v[%d:%d]" % (b, b + 1)
MF = "v_mfma_f32_16x16x32_bf16"
M16 = "v_mfma_f32_16x16x16_bf16"
WS = "s[24:27]"
def WREST(): return (6, 7, 0, 1, 2, 3, 4, 5) if PFB == 4 else (0, 1, 2, 3, 4, 5)
def nclr(): return 82 if MAP == 48 else 98

def srd_ptr(a, r, lo): a(f"s_mov_b32 s{r}, s{lo}\ns_mov_b32 s{r+1}, s{lo+1}")
def srd_const(a, r, size): a(f"s_mov_b32 s{r+2}, {size}\ns_mov_b32 s{r+3}, 0x20000")
def wsz(): return WS_SIZE + (0x100000 if STAMP else 0)

class Stamps:
    def __init__(self, a): self.a = a
    def start(self):
        if STAMP: self.a("s_memtime s[76:77]\ns_memrealtime s[78:79]")
    def clear(self, keep):
        if STAMP:
            for lst in (MC.split(","), ML.split(",")):
                pass
            for i in range(11):
                if i != keep and not (EARLY and i < 7): self.a(f"s_mov_b32 s{80+2*i}, 0")
    def idx(self, name):
        for lst in (MC.split(","), ML.split(",")):
            if name in lst: return lst.index(name)
        return -1
    def mark(self, name):
        if STAMP and self.idx(name) >= 0:
            i = self.idx(name); self.a(f"s_memtime s[{80+2*i}:{81+2*i}]")
    def dump(self):
        if not STAMP: return
        a = self.a
        a("v_mov_b32 v28, s56\ns_memrealtime s[74:75]\ns_waitcnt vmcnt(0) lgkmcnt(0)\ns_mov_b64 exec, 1")
        for i in range(11): a(f"s_sub_u32 s73, s{80+2*i}, s76\ns_cmp_eq_u32 s{80+2*i}, 0\ns_cselect_b32 s73, 0, s73\nv_mov_b32 v{16+i}, s73")
        a(f"s_sub_u32 s73, {SPIN}, s72\nv_mov_b32 v27, s73\nv_mov_b32 v29, 0\nv_mov_b32 v30, s78\nv_mov_b32 v31, s74")
        a(f"s_lshl_b32 s73, s2, 3\ns_add_u32 s73, s73, s3\ns_lshl_b32 s73, s73, 6\ns_add_u32 s73, s73, {DBG_OFF}\nv_mov_b32 v15, s73")
        for j in range(4): a(f"buffer_store_dwordx4 {q(16+4*j)}, v15, {WS}, 0 offen offset:{16*j}")

def spin_check(a, slp, w=1):
    a(f"s_sub_u32 s72, s72, {w if STAMP else 1}\ns_cbranch_scc1 L_END")
    if slp: a(f"s_sleep {slp}")

def lds_signal(a, k): a(f"s_mov_b64 exec, 1\nds_add_u32 v254, v255 offset:{4*k}\ns_mov_b64 exec, -1")
def lds_wait(a, k, lbl, slp=0):
    a(f"""{lbl}:
    {"s_sleep %d" % slp if slp else ""}
    ds_read_b32 v253, v254 offset:{4*k}
    s_sub_u32 s74, s74, 1
    s_cbranch_scc1 L_END
    s_waitcnt lgkmcnt(0)
    v_cmp_ne_u32 vcc, 4, v253
    s_cbranch_vccnz {lbl}""")

def issue1w(a, c):
    a(f"""s_mul_i32 s66, s52, 196608
    s_add_u32 m0, s64, {(c & 3)*16384}
    s_add_u32 s66, s66, s61
    buffer_load_dwordx4 v6, s[32:35], s66 offen {WNT} lds
    buffer_load_dwordx4 v6, s[32:35], s66 offen offset:1024 {WNT} lds
    s_add_u32 s66, s66, 10240
    buffer_load_dwordx4 v6, s[32:35], s66 offen offset:2048 {WNT} lds
    buffer_load_dwordx4 v6, s[32:35], s66 offen offset:3072 {WNT} lds""")
def issue1x(a, c):
    a(f"""s_lshl_b32 s65, s52, 7
    s_add_u32 m0, s62, {XB + c*8192}
    s_add_u32 s65, s65, s60
    buffer_load_dwordx4 v5, s[28:31], s65 offen {XNT} lds
    s_add_u32 s65, s65, 7168
    buffer_load_dwordx4 v5, s[28:31], s65 offen offset:1024 {XNT} lds""")
def issue1(a, c):
    if MAP == 48: issue1w(a, c); issue1x(a, c)
    else: issue1x(a, c); issue1w(a, c)
    a("s_add_u32 s52, s52, 1\ns_and_b32 s52, s52, 7")
def issue2(a, gam):
    for k2 in range(2):
        a(f"""s_mul_i32 s66, s52, 196608
        s_add_u32 m0, s62, {gam*16384 + k2*8192}
        s_add_u32 s66, s66, s61
        s_add_u32 s52, s52, 1
        buffer_load_dwordx4 v6, s[32:35], s66 offen {WNT} lds
        s_add_u32 s66, s66, 11264
        s_and_b32 s52, s52, 7
        buffer_load_dwordx4 v6, s[32:35], s66 offen offset:1024 {WNT} lds""")

def waddr(a, slot, conj, step, row0, wq_, gq_):
    a(f"""s_and_b32 {slot}, s48, 3
    s_cmp_eq_u32 s48, 4
    s_cselect_b32 {row0}, 4, {slot}
    s_and_b32 {wq_}, s49, 7
    s_lshl4_add_u32 {row0}, {wq_}, {row0}
    s_lshr_b32 {gq_}, s49, 3
    s_lshl_b32 s22, {gq_}, 9
    s_add_u32 {row0}, {row0}, s22
    s_sub_u32 s22, 2048, {row0}
    s_cmp_ge_u32 s48, 4
    s_cselect_b32 {row0}, s22, {row0}
    s_cselect_b32 {conj}, 0x80000000, 0
    s_movk_i32 {step}, {8*514}
    s_cmovk_i32 {step}, {-8*514}
    s_mulk_i32 {row0}, 514""")

def entry(a, st):
    a(f".globl {NAME}\n.p2align 8\n.type {NAME},@function\n{NAME}:")
    st.start()
    a(f"""s_cmp_ge_u32 s2, {0 if EXIT0 else 256}
    s_cbranch_scc1 L_END
    s_load_dwordx16 s[4:19], s[0:1], 0
    s_load_dwordx2 s[20:21], s[0:1], 64
    {"s_memtime s[80:81]" if EARLY else ""}
    v_lshrrev_b32 v4, 6, v0
    s_lshr_b32 s49, s2, 3
    v_readfirstlane_b32 s3, v4
    v_and_b32 v0, 63, v0
    {"s_memtime s[82:83]" if EARLY else ""}
    {"s_getpc_b64 s[60:61]" if PFS else ""}
    {"v_lshl_add_u32 v1, v4, 6, v0" if PFS else ""}
    {"v_mul_u32_u24 v1, %d, v1" % PFS if PFS else ""}
    {"global_load_dword v1, v1, s[60:61]" if PFS else ""}
    s_cmp_eq_u32 s3, 0
    s_cbranch_scc0 C_NOPF
    s_mov_b32 exec_lo, 0xfffff
    s_mov_b32 exec_hi, 0
    s_getpc_b64 s[60:61]
    L_PC:
    s_mul_i32 s62, s49, 768
    v_min_u32 v1, 5, v0
    v_lshlrev_b32 v1, 7, v1
    v_add_u32 v1, s62, v1
    v_min_u32 v1, L_END-L_PC, v1
    {"" if PFS else "global_load_dword v1, v1, s[60:61]"}
    v_lshlrev_b32 v2, 2, v0
    v_add_u32 v2, {CNT}, v2
    v_mov_b32 v3, 0
    ds_write_b32 v2, v3
    s_mov_b64 exec, -1
    C_NOPF:
    {"s_sleep %d" % DLY if DLY else ""}
    {"s_memtime s[84:85]" if EARLY else ""}
    s_and_b32 s48, s2, 7
    v_lshlrev_b32 v7, 4, v0
    s_mov_b32 s30, 0x200000
    s_mov_b32 s31, 0x20000""")
    if MAP == 48:
        a("""s_and_b32 s52, s49, 3
        s_lshl2_add_u32 s50, s48, s52
        s_lshr_b32 s51, s49, 2
        s_lshl1_add_u32 s52, s52, s51""")
    else:
        a("""s_and_b32 s52, s49, 7
        s_lshr_b32 s50, s48, 1
        s_lshl3_add_u32 s50, s50, s52
        s_lshr_b32 s22, s49, 3
        s_and_b32 s51, s48, 1
        s_lshl2_add_u32 s51, s51, s22
        s_lshl1_add_u32 s52, s22, s52""")
    a(f"""s_cmp_ge_u32 s3, 4
    s_cbranch_scc1 L_START
    s_lshl_b32 s69, s3, 11
    s_lshl_b32 s58, s3, 19
    s_lshl_b32 s59, s2, 10
    s_add_u32 s58, s58, s59
    {'s_bitset1_b32 s58, 30' if XB_ else ''}
    s_add_u32 s59, s58, {0x40000-1024}
    s_add_u32 m0, s69, {BXB}
    s_cmp_ge_u32 s2, 209
    s_cselect_b32 s22, 0, -1
    v_mov_b32 v208, s22
    v_mov_b32 v209, s22
    v_mov_b32 v210, s22
    v_mov_b32 v211, s22
    s_sub_u32 s52, s2, 129
    s_cmp_eq_u32 s3, 3
    s_cselect_b32 s52, s52, -1
    s_lshl_b32 s65, s52, 13
    s_add_u32 s65, s65, {KVF_OFF}
    s_mov_b32 s26, {wsz()}
    s_mov_b32 s27, s31
    s_cmp_lt_u32 s52, {nclr()}
    {"s_memtime s[86:87]" if EARLY else ""}
    s_waitcnt lgkmcnt(0)
    {"s_memtime s[88:89]" if EARLY else ""}
    s_mov_b64 s[28:29], s[10:11]
    s_cselect_b32 s23, 1, 0
    s_add_u32 s24, s20, {WSB << 20}
    s_addc_u32 s25, s21, 0
    s_cmp_eq_u32 s23, 1
    s_cbranch_scc1 C_CLR
    C_NOCLR:
    buffer_load_dwordx4 v7, s[28:31], s58 offen {BNT} lds
    buffer_load_dwordx4 v7, s[28:31], s59 offen offset:1024 {BNT} lds
    {"s_memtime s[90:91]" if EARLY else ""}
    s_barrier
    {"s_memtime s[92:93]" if EARLY else ""}
    s_branch C_MAIN
    C_CLR:
    buffer_store_dwordx4 v[208:211], v7, {WS}, s65 offen sc1
    buffer_store_dwordx4 v[208:211], v7, {WS}, s65 offen offset:1024 sc1
    buffer_store_dwordx4 v[208:211], v7, {WS}, s65 offen offset:2048 sc1
    buffer_store_dwordx4 v[208:211], v7, {WS}, s65 offen offset:3072 sc1
    s_bitset1_b32 s65, 12
    buffer_store_dwordx4 v[208:211], v7, {WS}, s65 offen sc1
    buffer_store_dwordx4 v[208:211], v7, {WS}, s65 offen offset:1024 sc1
    buffer_store_dwordx4 v[208:211], v7, {WS}, s65 offen offset:2048 sc1
    buffer_store_dwordx4 v[208:211], v7, {WS}, s65 offen offset:3072 sc1
    s_branch C_NOCLR
    L_START:
    {"s_memtime s[86:87]" if EARLY else ""}
    s_sub_u32 s58, s3, 4
    {"s_and_b32 s52, s52, %d" % ROTM if ROTM != 7 else ""}
    {"s_add_u32 s52, s52, s48" if XROT == 1 else ""}
    {"s_lshr_b32 s22, s48, 1" if XROT == 2 else ""}
    {"s_add_u32 s52, s52, s22" if XROT == 2 else ""}
    s_and_b32 s52, s52, 7
    v_lshrrev_b32 v8, 3, v0
    v_and_b32 v9, 7, v0
    v_and_b32 v10, 6, v8
    v_xor_b32 v9, v9, v10
    v_lshlrev_b32 v9, 4, v9
    v_lshl_add_u32 v5, v8, 10, v9
    v_and_b32 v10, 4, v8
    v_add_u32 v10, v10, v8
    v_mul_u32_u24 v6, 3072, v10
    v_add_u32 v6, v6, v9
    s_lshl2_add_u32 s60, s50, s58
    s_lshl_b32 s60, s60, 14
    s_lshl_b32 s61, s51, 7
    s_mul_i32 s62, s58, 49152
    s_add_u32 s61, s61, s62
    s_addk_i32 s61, 1024
    s_lshl_b32 s62, s58, 11
    s_lshl_b32 s64, s58, 12
    s_mov_b32 s34, 0x180000
    s_mov_b32 s35, s31
    s_mov_b32 s38, {0 if XW else 2048*514}
    s_mov_b32 s39, s31
    s_mov_b32 s42, s38
    s_mov_b32 s43, s31""")
    waddr(a, "s75", "s59", "s67", "s68", "s56", "s57")
    a(f"""s_lshl_b32 s22, s58, 4
    s_mul_i32 s22, s22, s67
    s_add_u32 s22, s22, s68
    s_and_b32 s22, s22, -16
    s_add_u32 s23, s22, s67
    s_mul_i32 s73, s58, {4*576}
    s_add_u32 m0, s73, {WRB}
    {"s_memtime s[88:89]" if EARLY else ""}
    s_waitcnt lgkmcnt(0)
    {"s_memtime s[90:91]" if EARLY else ""}
    s_mov_b64 s[36:37], s[12:13]
    s_mov_b64 s[40:41], s[14:15]
    s_mov_b64 s[32:33], s[6:7]
    s_mov_b64 s[28:29], s[4:5]
    s_barrier
    {"s_memtime s[92:93]" if EARLY else ""}
    s_mov_b32 exec_hi, 3
    buffer_load_dwordx4 v7, s[36:39], s22 offen {BNT} lds
    s_add_u32 m0, s73, {WRB+576}
    s_nop 0
    buffer_load_dwordx4 v7, s[40:43], s22 offen {BNT} lds
    s_add_u32 m0, s73, {WRB+2*576}
    s_nop 0
    buffer_load_dwordx4 v7, s[36:39], s23 offen {BNT} lds
    s_add_u32 m0, s73, {WRB+3*576}
    s_nop 0
    buffer_load_dwordx4 v7, s[40:43], s23 offen {BNT} lds
    s_mov_b32 exec_hi, -1
    s_cmp_eq_u32 s58, 0
    s_cbranch_scc0 L_NOSP
    v_and_b32 v12, 3, v0
    v_lshlrev_b32 v12, 4, v12
    v_lshrrev_b32 v11, 2, v0
    v_add_u32 v12, v12, v11
    v_mul_i32_i24 v12, s67, v12
    v_add_u32 v12, s68, v12
    v_sub_u32 v11, {2048*514}, v12
    s_lshr_b32 s23, s59, 22
    s_sub_u32 s22, 512, s23
    s_cmp_eq_u32 s75, 0
    s_cselect_b64 vcc, -1, 0
    s_cselect_b32 s22, s22, s23
    v_cndmask_b32 v11, v11, v12, vcc
    s_mov_b32 m0, {SPB}
    s_mov_b64 exec, 0xff
    buffer_load_ushort v11, s[36:39], s22 offen lds
    s_mov_b32 m0, {SPB+32}
    s_nop 0
    buffer_load_ushort v11, s[40:43], s22 offen lds
    s_mov_b64 exec, -1
    L_NOSP:""")
    issue1(a, 0)
    st.mark("iss")

def common_setup(a, st, keep):
    st.clear(keep)
    a(f"s_add_u32 s24, s20, {WSB << 20}\ns_addc_u32 s25, s21, 0\ns_mov_b64 s[40:41], s[16:17]\ns_mov_b64 s[44:45], s[18:19]")
    srd_const(a, 24, wsz()); srd_const(a, 40, 0 if NOOUT else 0x400000); srd_const(a, 44, 256)
    a(f"""s_mov_b32 s72, {SPIN}
    s_mov_b32 s74, {SPIN*16}
    v_mov_b32 v254, {CNT}
    v_mov_b32 v255, 1
    v_and_b32 v2, 15, v0
    v_lshrrev_b32 v3, 4, v0
    v_cvt_f32_u32 v8, v2
    v_cvt_f32_u32 v9, v3
    v_lshrrev_b32 v12, 1, v0
    v_lshrrev_b32 v13, 2, v0
    v_and_b32 v13, 4, v13
    v_xor_b32 v12, v12, v13
    v_and_b32 v15, 7, v12
    s_and_b32 s57, s49, 3
    s_lshl2_add_u32 s54, s48, s57
    s_lshr_b32 s55, s49, 2
    s_lshl1_add_u32 s57, s57, s55
    s_and_b32 s19, s2, 15
    s_lshl_b32 s19, s19, 7
    s_add_u32 s19, s19, {F0_OFF}""")

RWR, RWI, SPC = 176, 184, 192

def l_main(a, st):
    C1, C2, TWC, TWS, C3, DAT, AC1, OP2, AC2, INI = 16, 40, 48, 56, 64, 80, 112, 144, 160, 192
    TMP, OP3, AC3, OUT = 80, 112, 128, 144
    CA, CB = 208, 240
    OP, WPK, AC, PK, WRI, T0 = 80, 96, 112, 144, 160, 176
    seq = ["w"]*4 + ["F0"]*6
    a("v_lshl_add_u32 v4, v10, 10, v9\ns_mov_b64 s[36:37], s[8:9]")
    srd_const(a, 36, 0x80000)
    common_setup(a, st, st.idx("iss"))
    CT = 194
    def b3_consts():
        a(f"""s_lshl_b32 s67, s58, 9
        s_add_u32 s67, s67, s2
        v_and_b32 v10, 1, v0
        v_lshlrev_b32 v10, 8, v10
        v_add_u32 v10, s67, v10
        v_cvt_f32_u32 v10, v10
        v_mul_f32 v10, {fhex(1/2048)}, v10
        v_lshrrev_b32 v11, 5, v0
        v_cvt_f32_u32 v11, v11""")
        MK = 196
        for r in range(4): a(f"v_cmp_eq_u32 vcc, {r}, v15\nv_cndmask_b32 v{MK+r}, 0, -1, vcc")
        a(f"""v_mul_f32 v12, v11, v10
        v_mov_b32 v13, 0xc0400000
        v_fma_f32 v13, v13, v11, 4.0
        v_mul_f32 v13, v13, v10
        v_add_f32 v14, 2.0, v11
        v_mul_f32 v14, v14, v10""")
        for k in range(3):
            b = C1 + 8*k
            a(f"""v_cos_f32 v{CT}, v{12+k}
            v_sin_f32 v{CT+1}, v{12+k}
            v_mul_f32 v{CT}, {fhex(2.0**-19)}, v{CT}
            v_mul_f32 v{CT+1}, {fhex(2.0**-19)}, v{CT+1}
            v_cvt_pk_bf16_f32 v{b+3}, v{CT}, -v{CT+1}
            v_cvt_pk_bf16_f32 v{b+7}, v{CT+1}, v{CT}""")
            for c in range(2):
                for r in range(4): a(f"v_and_b32 v{b+4*c+r}, v{b+4*c+3}, v{MK+r}")
        a(f"v_mul_f32 v12, {fhex(1/16)}, v8\nv_mul_f32 v13, v9, v12\nv_mul_f32 v12, 4.0, v12")
        for v in range(4):
            a(f"v_cos_f32 v{CT}, v13\nv_sin_f32 v{CT+1}, v13")
            if v < 3: a("v_add_f32 v13, v13, v12")
            a(f"v_cvt_pk_bf16_f32 v{C2+v}, v{CT}, -v{CT+1}\nv_cvt_pk_bf16_f32 v{C2+4+v}, v{CT+1}, v{CT}")
        a(f"""v_bfe_u32 v12, v0, 4, 1
        v_cvt_f32_u32 v12, v12
        v_add_f32 v12, v12, v12
        v_mov_b32 v13, 0x41800000
        v_fma_f32 v12, v11, v13, v12
        v_mul_f32 v13, {fhex(1/512)}, v8
        v_mul_f32 v14, v12, v13
        v_mul_f32 v15, {fhex(3.0)}, v13""")
        for i in range(4):
            for ph in range(2):
                k = i*2 + ph; kap = i >> 1; r = (i & 1)*2 + ph
                a(f"""v_cos_f32 v{TWC+k}, v14
                v_sin_f32 v{TWS+k}, v14
                v_mul_f32 v12, 0x41800000, v14
                v_cos_f32 v{CT}, v12
                v_sin_f32 v{CT+1}, v12""")
                if k < 7: a(f"v_add_f32 v14, v14, v{15 if ph else 13}")
                a(f"v_cvt_pk_bf16_f32 v{C3+kap*8+r}, v{CT}, -v{CT+1}")
                if ph: a(f"v_cvt_pk_bf16_f32 v{C3+kap*8+4+r}, -v{CT}, v{CT+1}")
                else: a(f"v_cvt_pk_bf16_f32 v{C3+kap*8+4+r}, v{CT}, -v{CT+1}")
        a(f"""v_cvt_f32_u32 v12, s2
        v_mul_f32 v12, {fhex(1/512)}, v12
        v_cos_f32 v13, v12
        v_sin_f32 v14, v12
        v_lshlrev_b32 v10, 10, v3
        v_lshl_add_u32 v10, v2, 4, v10
        v_mul_f32 v13, {fhex(2.0**-20)}, v13
        v_mul_f32 v14, {fhex(2.0**-20)}, v14
        v_lshlrev_b32 v11, 5, v2
        v_lshl_add_u32 v11, v3, 3, v11
        v_mov_b32 v15, 0""")
    def b2_consts():
        a(f"""s_lshl_b32 s22, s58, 2
        v_cvt_f32_u32 v146, s22
        v_mul_f32 v144, {fhex(1/16)}, v8
        v_mul_f32 v145, 4.0, v9
        v_mul_f32 v145, v145, v144
        v_mul_f32 v147, {fhex(1/16)}, v144
        v_mul_f32 v146, v146, v147""")
        for r in range(4):
            a(f"""v_cos_f32 v154, v145
            v_sin_f32 v155, v145
            v_add_f32 v148, v145, v146
            v_cvt_pk_bf16_f32 v{CB+r}, v154, v155
            v_cvt_pk_bf16_f32 v{CB+4+r}, -v155, v154""")
            for j in range(4):
                t = 150 + 2*(j & 1)
                a(f"v_cos_f32 v{t}, v148\nv_sin_f32 v{t+1}, v148")
                if j < 3: a("v_add_f32 v148, v148, v147")
                elif r < 3: a("v_add_f32 v145, v145, v144")
                a(f"v_cvt_pk_bf16_f32 v{CA+8*j+r}, v{t}, v{t+1}\nv_cvt_pk_bf16_f32 v{CA+8*j+4+r}, -v{t+1}, v{t}")
        a(f"""s_lshl_b32 s23, s58, 8
        v_lshlrev_b32 v200, 12, v3
        v_lshl_add_u32 v200, v2, 4, v200
        v_add_u32 v200, s23, v200
        v_add_u32 v201, s64, v7
        v_add_u32 v251, {EB}, v200
        v_add_u32 v252, {EB}, v201
        s_cmp_eq_u32 s58, 3
        s_cselect_b32 s16, 0xffff, -1
        s_mov_b32 s15, 0xffff0000""")
    def misc_addr():
        a(f"""s_and_b32 s53, s2, 15
        s_lshl_b32 s53, s53, 4
        s_bfe_u32 s22, s2, 0x20004
        s_lshl2_add_u32 s53, s22, s53
        s_lshr_b32 s22, s2, 6
        s_add_u32 s53, s53, s22
        s_lshl_b32 s53, s53, 6
        v_lshlrev_b32 v12, 7, v0
        v_add_u32 v250, {F0_OFF}, v12
        v_mov_b32 v207, 4
        v_lshlrev_b32 v248, 2, v0
        v_mov_b32 v206, 0
        s_lshl_b32 s22, s51, 11
        s_add_u32 s22, s22, s60
        s_add_u32 s22, s22, {O_OFF}
        v_add_u32 v202, s22, v12
        s_lshl_b32 s22, s50, 7
        s_add_u32 s22, s22, {F0_OFF + OF_OFF}
        v_writelane_b32 v202, s22, 16
        v_mov_b32 v249, v12
        s_lshl_b32 s21, s58, 14
        s_lshl_b32 s22, s55, 7
        s_add_u32 s21, s21, s22
        s_cmp_eq_u32 s58, 0
        s_cselect_b32 s17, 0, 0x40000000""")
    def wo_dma(poss):
        for pos in poss:
            a(f"""s_add_u32 s5, s57, {(pos+2) & 7}
            s_and_b32 s5, s5, 7
            s_lshl_b32 s5, s5, 16
            s_add_u32 m0, s62, {XB + 16384 + pos*8192}
            s_add_u32 s5, s5, s21
            buffer_load_dwordx4 v4, s[36:39], s5 offen lds
            s_add_u32 s5, s5, 3072
            buffer_load_dwordx4 v4, s[36:39], s5 offen offset:1024 lds""")
    def opf():
        if MAP == 48: a(f"s_mov_b64 exec, 0x1ffff\nbuffer_load_dword v203, v202, {WS}, 0 offen {PFL.replace('_', ' ')}\ns_mov_b64 exec, -1"); seq.append("p")
    def younger(tag): return len(seq) - 1 - max(i for i, x in enumerate(seq) if x == tag)
    misc_addr()
    def mall_warm():
        a(f"""s_lshl2_add_u32 s22, s2, s58
        s_lshl_b32 s23, s22, 9
        s_lshr_b32 s5, s22, 1
        s_mulk_i32 s5, 3072
        s_and_b32 s22, s23, 512
        s_add_u32 s5, s5, s22
        s_mov_b64 exec, 15
        buffer_load_dword v198, v12, s[36:39], s23 offen
        {"buffer_load_dword v197, v12, s[32:35], s5 offen" if MWQ else ""}
        s_mov_b64 exec, -1"""); seq.extend(["m"]*(1+MWQ))
    def repack_all():
        a(f"""v_lshrrev_b32 v109, 5, v0
        v_lshlrev_b32 v108, 2, v2
        s_lshr_b32 s69, s49, 3
    v_and_b32 v100, 1, v3
    v_lshlrev_b32 v100, 18, v100
    v_lshl_add_u32 v100, v109, 14, v100
    v_lshl_add_u32 v100, v2, 4, v100
    s_lshl_b32 s14, s56, 11
    s_lshl_b32 s22, s69, 8
    s_add_u32 s14, s14, s22
    s_add_u32 s14, s14, {0x40000000 if XW else WP_OFF}
    s_lshl_b32 s15, s75, 19
    s_lshr_b32 s22, s59, 14
    s_add_u32 s15, s15, s22
    s_lshl_b32 s22, s58, 15
    s_add_u32 s15, s15, s22
    s_add_u32 s15, s15, s14
    s_lshr_b32 s22, s59, 24
    s_sub_u32 s14, s14, s22
    s_add_u32 s14, s14, {128*16384 + 128}
    s_lshl_b32 s23, s58, 6
    v_add_u32 v102, s23, v0
    v_sub_u32 v103, 0x100, v102
    s_cmp_ge_u32 s48, 4
    s_cselect_b64 vcc, -1, 0
    s_and_b32 s22, s68, 15
    s_add_u32 s22, s22, {WRB}
    v_cndmask_b32 v102, v102, v103, vcc
    v_lshlrev_b32 v102, 1, v102
    v_add_u32 v102, s22, v102
    s_lshr_b32 s23, s59, 22
    s_add_u32 s22, s22, s23
    v_and_b32 v103, 3, v0
    v_mul_u32_u24 v103, {4*576}, v103
    v_and_b32 v104, 1, v3
    v_mul_u32_u24 v104, {2*576}, v104
    v_add3_u32 v103, v103, v104, s22
    v_lshl_add_u32 v101, v3, 10, v108
    v_and_b32 v104, 3, v0
    v_and_b32 v105, 16, v0
    v_lshl_add_u32 v104, v104, 2, v105
    v_add_u32 v104, {SPB}, v104""")
        if RP >= 2: issue1(a, 1); seq.extend(["F1"]*6)
        a(f"s_waitcnt vmcnt({younger('w')})")
        lds_signal(a, 5)
        if RP == 1: issue1(a, 1); seq.extend(["F1"]*6)
        if RP >= 2: issue1(a, 2); seq.extend(["F2"]*6)
        if RP >= 3: issue1(a, 3); seq.extend(["F3"]*6)
        lds_wait(a, 5, "L_WRW")
        st.mark("lbar")
        for j in range(2):
            if j: a("s_waitcnt lgkmcnt(4)")
            for i in range(4):
                a(f"ds_read_u16 v{RWR+4*j+i}, v102 offset:{(i*4+j*2)*576}\nds_read_u16 v{RWI+4*j+i}, v102 offset:{(i*4+j*2+1)*576}")
        a(f"s_waitcnt lgkmcnt(8)\nds_read_u16 v{SPC}, v103\nds_read_u16 v{SPC+1}, v103 offset:576\nds_read_u16 v106, v104\nds_read_u16 v107, v104 offset:32")
        a("s_waitcnt lgkmcnt(0)")
        for k in range(8): a(f"v_lshl_or_b32 v{RWR+k}, v{RWI+k}, 16, v{RWR+k}\nv_xor_b32 v{RWR+k}, s59, v{RWR+k}")
        a(f"""s_cmp_eq_u32 s58, 0
        s_cbranch_scc0 L_NOSP2
        s_cmp_eq_u32 s75, 0
        s_cselect_b32 s22, 0, 1.0
        v_lshl_or_b32 v{SPC+4}, v107, 16, v106
        v_lshlrev_b32 v{SPC}, 16, v{SPC}
        v_lshlrev_b32 v{SPC+1}, 16, v{SPC+1}
        v_lshlrev_b32 v106, 16, v106
        v_lshlrev_b32 v107, 16, v107
        v_fma_f32 v{SPC}, v106, s22, v{SPC}
        v_fma_f32 v{SPC+1}, -v107, s22, v{SPC+1}
        v_mul_f32 v{SPC}, 0.5, v{SPC}
        v_mul_f32 v{SPC+1}, 0.5, v{SPC+1}
        v_cvt_pk_bf16_f32 v{SPC}, v{SPC}, v{SPC+1}
        v_xor_b32 v{SPC+4}, s59, v{SPC+4}
        v_xor_b32 v{SPC}, s59, v{SPC}""")
        for k in range(8): a(f"v_readlane_b32 s{4+k}, v{SPC}, {16*(k>>2) + (k&3)}")
        for k in range(8): a(f"v_writelane_b32 v{RWR+k}, s{4+k}, 0")
        a("L_NOSP2:")
        a(f"""s_or_b32 s22, s58, s75
        s_cbranch_scc1 L_NOSP3
        s_mov_b32 exec_hi, 0
        buffer_store_dword v{SPC+4}, v101, {WS}, s14 offen sc1
        s_mov_b32 exec_hi, -1
        L_NOSP3:
        buffer_store_dwordx4 {q(RWR)}, v100, {WS}, s15 offen sc1
        buffer_store_dwordx4 {q(RWR+4)}, v100, {WS}, s15 offen offset:1024 sc1""")
        seq.extend(["s"]*2)
    st.mark("lw")
    repack_all()
    st.mark("lwp")
    if RP == 0: issue1(a, 1); seq += ["F1"]*6
    if RP < 2: issue1(a, 2); seq += ["F2"]*6
    if F3E and RP < 3: issue1(a, 3); seq += ["F3"]*6
    if QPF:
        a("""s_and_b32 s22, s49, 3
        s_lshl2_add_u32 s22, s22, s58
        s_lshl_b32 s22, s22, 5
        v_add_u32 v110, s22, v0
        v_mul_u32_u24 v110, 3072, v110
        s_lshl_b32 s22, s51, 7
        s_mov_b32 exec_hi, 0
        buffer_load_dword v111, v110, s[32:35], s22 offen
        s_mov_b32 exec_hi, -1"""); seq.append("p")
    if B2POS == 0: b2_consts()
    st.mark("lconst")
    for c in range(8):
        n = younger(f"F{c}")
        if c == SIG1: n = min(n, younger("g"))
        a(f"s_waitcnt vmcnt({n})")
        if c == SIG1: a(f"s_cmp_eq_u32 s58, 0\ns_cbranch_scc0 L_GOD\ns_mov_b64 exec, 3\nL_GO:\nv_cmp_gt_u32 vcc, {nclr()//2}, v204\ns_cbranch_vccnz L_GORE\ns_mov_b64 exec, -1\nL_GOD:")
        a("s_barrier")
        st.mark(f"lf{c}")
        if c == GPOS: a("s_mov_b64 exec, 3\nbuffer_load_dword v204, v249, s[44:47], s17 offen sc1\ns_mov_b64 exec, -1"); seq += ["g"]
        if F3E <= c < 5: issue1(a, c+3); seq += [f"F{c+3}"]*6
        if c == 5: a("s_sub_u32 s61, s61, 1024")
        if c >= 5: issue2(a, c-5); seq += [f"F{c+3}"]*4
        if c == OPF: opf()
    def arrive(k):
        a(f"s_waitcnt vmcnt({younger('F%d' % k)})"); lds_signal(a, k); st.mark(f"la{k}")
    def h1(): a(f"s_mov_b64 exec, 0xffff\nbuffer_load_dword v205, v250, {WS}, s17 offen sc1\ns_mov_b64 exec, -1"); seq.append("h")
    def late_pf():
        if W67 and RCL:
            a("s_cmp_lt_u32 s13, 288\ns_cbranch_scc1 L_R67" if not TFIRST else "s_cmp_lt_u32 s56, 201\ns_cbranch_scc1 L_R67")
            wo_dma((6, 7)); seq.extend(["p"]*4)
            a("L_R68:")
        elif W67: wo_dma((6, 7)); seq.extend(["p"]*4)
        if OPF == 9: opf()
    def reducer():
        R0 = 160
        a("s_cmp_lt_u32 s13, 288\ns_cbranch_scc0 L_NORED\nL_RED:\ns_mov_b32 s22, s8")
        for t in range(8):
            a(f"buffer_load_dword v{R0+t}, v193, {WS}, s22 offen sc1")
            if t < 7: a("s_add_u32 s22, s22, s9")
        a(f"""s_waitcnt vmcnt(0)
        v_max3_u32 v1, v{R0}, v{R0+1}, v{R0+2}
        v_max3_u32 v{R0+8}, v{R0+3}, v{R0+4}, v{R0+5}
        v_max3_u32 v1, v1, v{R0+6}, v{R0+7}
        v_max_u32 v1, v1, v{R0+8}
        v_cmp_eq_u32 vcc, -1, v1
        s_cbranch_vccnz L_REDRE""")
        for t in range(8): a(f"v_lshlrev_b32 v{R0+8+2*t}, 16, v{R0+t}\nv_and_b32 v{R0+9+2*t}, s11, v{R0+t}")
        for st_ in (8, 4, 2):
            for t in range(0, st_, 2): a(f"v_pk_add_f32 {d(R0+8+t)}, {d(R0+8+t)}, {d(R0+8+t+st_)}")
        for sw in ("32", "16"):
            a(f"""v_mov_b32 v{R0+10}, v{R0+8}
            v_mov_b32 v{R0+11}, v{R0+9}
            v_permlane{sw}_swap_b32 v{R0+8}, v{R0+10}
            v_permlane{sw}_swap_b32 v{R0+9}, v{R0+11}
            v_pk_add_f32 {d(R0+8)}, {d(R0+8)}, {d(R0+10)}""")
        a(f"""v_cvt_pk_bf16_f32 v{R0+8}, v{R0+8}, v{R0+9}
        v_cndmask_b32 v{R0+8}, v{R0+9}, v{R0+8}, s[14:15]
        v_min_u32 v{R0+8}, -2, v{R0+8}
        s_mov_b64 exec, 0xffff
        buffer_store_dword v{R0+8}, v193, {WS}, s10 offen sc1
        s_mov_b64 exec, 1
        ds_add_u32 v254, v255 offset:{4*K_RD}
        s_mov_b64 exec, -1
        L_NORED:""")
        st.mark("lred")
    arrive(8)
    if PFB == 3: late_pf()
    lds_wait(a, K_C7, "L_C7A", LSLP)
    a(f"ds_read_b32 v1, v254 offset:{4*K_TASK}")
    issue2(a, 3); seq += ["F11"]*4
    a(f"""s_waitcnt lgkmcnt(0)
    v_readfirstlane_b32 s56, v1
    s_lshl_b32 s20, s56, 14
    s_add_u32 s20, s20, s64
    {'s_bitset1_b32 s20, 29' if XB_ else ''}
    s_sub_u32 s13, s56, 129
    s_lshl2_add_u32 s13, s13, s58
    s_mul_i32 s22, s13, 7282
    s_lshr_b32 s22, s22, 16
    s_mul_i32 s23, s22, 9
    s_sub_u32 s23, s13, s23
    s_lshl_b32 s8, s22, 14
    s_lshl_b32 s9, s23, 6
    s_add_u32 s8, s8, s9
    s_add_u32 s8, s8, {KVP_OFF}
    s_lshl_b32 s9, s22, 11
    s_lshl_b32 s10, s23, 7
    s_add_u32 s10, s10, s9
    s_add_u32 s10, s10, {KVF_OFF}
    s_add_u32 s9, s9, {ZP_OFF}
    s_cmp_lt_u32 s23, 8
    s_cselect_b32 s8, s8, s9
    s_cselect_b32 s11, 0xffff0000, -1
    s_cselect_b32 s12, 9, 6
    s_cselect_b64 s[14:15], -1, 0
    s_lshl_b32 s9, 4, s12
    v_lshlrev_b32 v193, s12, v3
    v_lshl_add_u32 v193, v2, 2, v193""")
    for k in (9, 10, 11):
        arrive(k)
        if HPOS == k - 9:
            h1()
            if not PFB: late_pf()
    st.mark("lq3")
    if PFB == 2: late_pf()
    if PFB == 1:
        a("s_cmp_gt_u32 s56, 128\ns_cbranch_scc0 L_NOPF2")
        sv = list(seq); late_pf(); seq[:] = sv
        a("L_NOPF2:")
    a(f"""s_cmp_eq_u32 s58, 0
    s_cbranch_scc0 L_H1OK
    s_waitcnt vmcnt({younger('h')})
    s_mov_b64 exec, 0xffff
    L_H1:
    v_and_b32 v1, 0xffff, v205
    v_cmp_ne_u32 vcc, 16, v1
    s_cbranch_vccnz L_H1RE
    v_cmp_ne_u32 vcc, 16, v205
    v_mov_b32 v1, vcc_lo
    s_mov_b64 exec, 1
    ds_write_b32 v254, v1 offset:{4*K_MODE}
    ds_add_u32 v254, v207 offset:{4*K_H1}
    s_mov_b64 exec, -1
    L_H1OK:
    s_setprio {LPRIO}""")
    if RPOS == 0: reducer()
    a("""s_cmp_gt_u32 s56, 128
    s_cbranch_scc1 L_NOT""")
    lds_wait(a, K_H1, "L_H1W", LSLP)
    st.mark("lh1")
    for j in range(4):
        for r in range(4): a(f"buffer_load_dword v{OP+j*4+r}, v248, {WS}, s20 offen offset:{j*1024+r*256} {TFL}")
    a(f"s_add_u32 s23, s20, {0x40000000 if XW else WP_OFF}")
    for j in range(4): a(f"buffer_load_dwordx4 {q(WPK+4*j)}, v7, {WS}, s23 offen offset:{j*1024} {TFL}")
    npf = 0
    if TFIRST: wo_dma((6, 7)); npf = 4
    if PFB == 1: n0 = len(seq); late_pf(); npf = len(seq) - n0
    if B2POS == 1: b2_consts()
    a("L_NOT:")
    if RPOS == 1: reducer()
    def b3blk():
        a(f"""s_setprio 0
        s_lshl_b32 s61, s58, 19
        s_add_u32 s61, s61, s53
        s_add_u32 s68, s61, 0x40000
        s_add_u32 s63, s53, {128*16384}
        v_lshrrev_b32 v249, 2, v0
        v_lshlrev_b32 v249, 14, v249
        v_and_b32 v250, 3, v0
        v_lshl_add_u32 v249, v250, 4, v249
        v_add_u32 v250, s62, v7
        v_add_u32 v250, {EB}, v250""")
        b3_consts()
        a("""s_lshl_b32 s65, s67, 11
        s_add_u32 s65, s65, 1024
        s_add_u32 s66, s65, 0x80000""")
        st.mark("lb3c")
        a(f"v_add_u32 v10, {EB}, v10")
    if B2POS == 0: b3blk()
    a("s_cmp_gt_u32 s56, 128")
    if W67:
        if TFIRST:
            a("s_cbranch_scc0 L_W67\ns_waitcnt vmcnt(0)")
            lds_signal(a, K_W67)
            a("L_W67:")
        else:
            a("s_cbranch_scc0 L_W67\ns_waitcnt vmcnt(0)\nL_W67:\ns_waitcnt vmcnt(20)")
            lds_signal(a, K_W67)
    if XB_: a("s_endpgm")
    a(f"s_cbranch_scc1 L_NOB2\ns_setprio {LPRIO}")
    def exchange(vw, vr, k, lbl):
        for j in range(4):
            for i in range(4): a(f"v_cvt_pk_bf16_f32 v{PK+4*i+j}, v{AC+j*8+i}, v{AC+j*8+4+i}")
        if k == K_E2: lds_wait(a, K_G0, "L_XW")
        for i in range(4):
            if k == K_E1 and i == 3: a("s_mov_b32 exec_hi, s16")
            a(f"ds_write_b128 {vw}, {q(PK+4*i)} offset:{i*1024}")
        lds_signal(a, k)
        if k == K_E1 and PREU:
            a(f"s_waitcnt vmcnt({npf})")
            for kk in range(16): a(f"v_lshlrev_b32 v{16+(kk>>2)*8+(kk&3)}, 16, v{WPK+kk}\nv_and_b32 v{20+(kk>>2)*8+(kk&3)}, s15, v{WPK+kk}")
        if k == K_E2 and TFIRST: a("s_waitcnt vmcnt(0)"); lds_signal(a, K_W67)
        lds_wait(a, k, lbl)
        for j in range(4):
            if k == K_E1 and j == 3:
                for r in range(4): a(f"v_mov_b32 v{OP+12+r}, v{PK+12+r}")
                a("s_mov_b32 exec_hi, s16")
            a(f"ds_read_b128 {q(OP+4*j)}, {vr} offset:{j*1024}")
        a("s_mov_b32 exec_hi, -1")
    def stage_w(consts):
        for j in range(4):
            a(f"s_waitcnt lgkmcnt({3-j})")
            for c in range(2): a(f"{MF} {q(AC+(j*2+c)*4)}, {q(consts(j)+4*c)}, {q(OP+4*j)}, 0")
    for j in range(4):
        a(f"s_waitcnt vmcnt({16-4*j+npf})")
        for c in range(2): a(f"{MF} {q(AC+(j*2+c)*4)}, {q(CA+8*j+4*c)}, {q(OP+4*j)}, 0")
    st.mark("lt")
    exchange("v251", "v252", K_E1, "L_E1")
    st.mark("b2x1")
    stage_w(lambda j: CB)
    a(f"s_waitcnt vmcnt({npf})\nL_WPOK:")
    for j in range(4):
        xr = AC + j*8; xi = xr + 4; t = T0 + (j & 1)*8; wr = WRI + (j & 1)*8; wi = wr + 4
        if PREU: wr = 16 + 8*j; wi = wr + 4
        else:
            for i in range(4): a(f"v_lshlrev_b32 v{wr+i}, 16, v{WPK+4*j+i}\nv_and_b32 v{wi+i}, 0xffff0000, v{WPK+4*j+i}")
        for h in (0, 2):
            a(f"v_pk_mul_f32 {d(t+h)}, {d(xr+h)}, {d(wr+h)}")
            a(f"v_pk_mul_f32 {d(t+4+h)}, {d(xi+h)}, {d(wr+h)}")
        for h in (0, 2):
            a(f"v_pk_fma_f32 {d(t+h)}, {d(xi+h)}, {d(wi+h)}, {d(t+h)} neg_lo:[1,0,0] neg_hi:[1,0,0]")
            a(f"v_pk_fma_f32 {d(t+4+h)}, {d(xr+h)}, {d(wi+h)}, {d(t+4+h)}")
        for i in range(4): a(f"v_cvt_pk_bf16_f32 v{OP+4*j+i}, v{t+i}, -v{t+4+i}")
        if j > 0:
            for c in range(2): a(f"{MF} {q(AC+((j-1)*2+c)*4)}, {q(CA+8*(j-1)+4*c)}, {q(OP+4*(j-1))}, 0")
    for c in range(2): a(f"{MF} {q(AC+(6+c)*4)}, {q(CA+24+4*c)}, {q(OP+12)}, 0")
    exchange("v200", "v201", K_E2, "L_E2")
    st.mark("b2x2")
    stage_w(lambda j: CB)
    for j in range(4):
        for i in range(4):
            a(f"v_cvt_pk_bf16_f32 v{PK+j*4+i}, v{AC+j*8+i}, -v{AC+j*8+4+i}")
            a(f"v_or_b32 v{PK+j*4+i}, 1, v{PK+j*4+i}")
            a(f"buffer_store_dword v{PK+j*4+i}, v248, {WS}, s20 offen offset:{j*1024+i*256} sc1")
    st.mark("lb2")
    a("L_NOB2:")
    if B2POS == 1: b3blk()
    a(f"s_setprio {UPRIO}")
    if UGATE == 1: lds_wait(a, K_OI, "L_H2G", 1)
    if UGATE >= 2: lds_wait(a, K_CO, "L_H2G", 1 if UGATE == 2 else 0)
    st.mark("lul")
    a(f"""L_UL:
    buffer_load_dwordx4 {q(AC1)}, v249, {WS}, s61 offen sc1
    buffer_load_dwordx4 {q(AC1+4)}, v249, {WS}, s68 offen sc1
    buffer_load_dword v9, v15, {WS}, s63 offen sc1
    buffer_load_dword v8, v15, {WS}, s63 offen offset:32 sc1
    s_waitcnt vmcnt(3)
    ds_write_b128 v250, {q(AC1)}
    v_and_b32 v1, v{AC1}, v{AC1+1}
    v_and_b32 v12, v{AC1+2}, v{AC1+3}
    s_waitcnt vmcnt(2)
    ds_write_b128 v250, {q(AC1+4)} offset:1024
    v_and_b32 v1, v1, v{AC1+4}
    v_and_b32 v12, v12, v{AC1+5}
    v_and_b32 v1, v1, v{AC1+6}
    v_and_b32 v12, v12, v{AC1+7}
    s_waitcnt vmcnt(0)
    v_and_b32 v1, v1, v8
    v_and_b32 v12, v12, v9
    v_and_b32 v1, v1, v12
    v_and_b32 v1, 1, v1
    v_cmp_eq_u32 vcc, 0, v1
    s_cbranch_vccnz L_URE""")
    st.mark("lua")
    lds_signal(a, K_U); lds_wait(a, K_U, "L_UW")
    for v in range(4):
        for t in range(2): a(f"ds_read_b128 {q(DAT+(v*2+t)*4)}, v10 offset:{t*4096+v*256}")
    a(f"""s_waitcnt vmcnt(0)
    v_lshlrev_b32 v8, 16, v8
    v_and_b32 v12, 0xffff0000, v9
    v_lshlrev_b32 v9, 16, v9
    v_mul_f32 v8, {fhex(2.0**-20)}, v8
    v_mul_f32 v9, v9, v13
    v_fma_f32 v9, -v12, v14, v9
    v_add_f32 v{INI}, v9, v8
    v_sub_f32 v{INI+1}, v9, v8
    v_add_f32 v{INI+2}, v9, v8
    v_sub_f32 v{INI+3}, v9, v8
    v_sub_f32 v{INI+4}, v8, v9
    v_sub_f32 v{INI+5}, -v9, v8
    v_sub_f32 v{INI+6}, v8, v9
    v_sub_f32 v{INI+7}, -v9, v8""")
    for v in range(4):
        for t in range(2):
            b = DAT + (v*2+t)*4
            a(f"s_waitcnt lgkmcnt({7-(v*2+t)})")
            cs = C1 + (16 if t else 8*(v >> 1))
            for c in range(2):
                acc = AC1 + (v*2+c)*4
                a(f"{MF} {q(acc)}, {q(b)}, {q(cs+4*c)}, {q(acc) if t else 0}")
    st.mark("luok")
    for v in range(4):
        for i in range(4): a(f"v_cvt_pk_bf16_f32 v{OP2+i*4+v}, v{AC1+v*8+i}, v{AC1+v*8+4+i}")
    for i in range(4):
        for c in range(2): a(f"{MF} {q(AC2+(i*2+c)*4)}, {q(OP2+i*4)}, {q(C2+4*c)}, 0")
    for i in range(4):
        xr = AC2 + i*8; xi = xr + 4; t0 = TMP + (i & 1)*8
        for ph in range(2):
            sel = "op_sel:[0,1] op_sel_hi:[1,1]" if ph else "op_sel_hi:[1,0]"
            a(f"v_pk_mul_f32 {d(t0+2*ph)}, {d(xr+2*ph)}, {d(TWC+2*i)} {sel}")
            a(f"v_pk_mul_f32 {d(t0+4+2*ph)}, {d(xi+2*ph)}, {d(TWC+2*i)} {sel}")
        for ph in range(2):
            sel = "op_sel:[0,1,0] op_sel_hi:[1,1,1]" if ph else "op_sel_hi:[1,0,1]"
            a(f"v_pk_fma_f32 {d(t0+2*ph)}, {d(xi+2*ph)}, {d(TWS+2*i)}, {d(t0+2*ph)} {sel} neg_lo:[1,0,0] neg_hi:[1,0,0]")
            a(f"v_pk_fma_f32 {d(t0+4+2*ph)}, {d(xr+2*ph)}, {d(TWS+2*i)}, {d(t0+4+2*ph)} {sel}")
        for ph in range(2):
            for rho in range(2):
                a(f"v_cvt_pk_bf16_f32 v{OP3+(rho*2+(i>>1))*4+(i&1)*2+ph}, v{t0+2*ph+rho}, v{t0+4+2*ph+rho}")
    for kap in range(2):
        for rho in range(2):
            for th in range(2):
                acc = AC3 + (rho*2+th)*4
                a(f"{MF} {q(acc)}, {q(OP3+(rho*2+kap)*4)}, {q(C3+kap*8+th*4)}, {q(acc) if kap else q(INI+4*rho)}")
    for rho in range(2):
        for th in range(2):
            acc = AC3 + (rho*2+th)*4; o = OUT + (rho*2+th)*2
            a(f"v_cvt_pk_bf16_f32 v{o}, v{acc}, v{acc+1}\nv_cvt_pk_bf16_f32 v{o+1}, v{acc+2}, v{acc+3}")
            a(f"buffer_store_dwordx2 {d(o)}, v11, s[40:43], s{65+rho} offen offset:{th*512} {YFL.replace('_', ' ')}")
    st.mark("lend")
    if DLE: a(f"s_sleep {DLE}")
    st.dump()
    a("s_endpgm")

def c_main(a, st):
    C1, C2, TWC, TWS, C3A, C3B, DAT, AC1, OP2, AC2 = 16, 48, 64, 80, 96, 104, 112, 144, 160, 168
    OP3, TMP, AC3, ACE, OUT, MSK = 112, 128, 144, 160, 200, 228
    a(f"C_MAIN:\ns_setprio {CPRIO}")
    common_setup(a, st, -1)
    if PT:
        a(f"""s_cmp_eq_u32 s3, 1
        s_cbranch_scc0 C_NOPT
        v_lshlrev_b32 v247, {PT}, v0
        s_lshl_b32 s22, s49, 7
        buffer_load_dword v245, v247, {WS}, s22 offen
        buffer_load_dword v246, v247, s[40:43], s22 offen
        s_load_dword s70, s[8:9], 0
        C_NOPT:""")
    a(f"""s_lshl_b32 s60, s3, 8
    s_mul_i32 s61, s2, s3
    s_add_u32 s59, s61, 512
    s_cmp_eq_u32 s3, 0
    s_cselect_b32 s62, 1024, s60
    s_cselect_b32 s59, 0, s59
    s_cselect_b32 s58, s2, 0
    s_cselect_b32 s65, 0, 0xbe800000
    s_cselect_b64 s[66:67], -1, 0
    v_and_b32 v14, 1, v0
    v_cmp_eq_u32 vcc, 1, v14
    v_mov_b32 v4, 0xffff
    v_mov_b32 v5, 0xffff0000
    v_cndmask_b32 v14, v4, v5, vcc""")
    for r in range(4): a(f"v_cmp_eq_u32 vcc, {r}, v15\nv_cndmask_b32 v{MSK+r}, 0, v14, vcc")
    a(f"""v_lshrrev_b32 v10, 5, v0
    v_mov_b32 v11, s61
    v_mov_b32 v12, s59
    v_mad_u32_u24 v11, v10, s60, v11
    v_mad_u32_u24 v12, v10, s62, v12
    v_cvt_f32_u32 v11, v11
    v_cvt_f32_u32 v12, v12
    v_cvt_f32_u32 v13, s60
    v_cvt_f32_u32 v14, s62
    v_mul_f32 v11, {fhex(1/2048)}, v11
    v_mul_f32 v12, {fhex(1/2048)}, v12
    v_mul_f32 v13, {fhex(2/2048)}, v13
    v_mul_f32 v14, {fhex(2/2048)}, v14""")
    for t in range(4):
        for c in range(2):
            b = C1 + (t*2 + c)*4
            a(f"v_cos_f32 v{b+3}, v{11+c}")
            if t < 3: a(f"v_add_f32 v{11+c}, v{11+c}, v{13+c}")
            a(f"v_cvt_pk_bf16_f32 v{b+3}, v{b+3}, v{b+3}")
            for r in range(4): a(f"v_and_b32 v{b+r}, v{b+3}, v{MSK+r}")
    a(f"v_mul_f32 v10, {fhex(1/32)}, v8\nv_mul_f32 v11, 4.0, v9\nv_mul_f32 v12, v11, v10")
    for i in range(4):
        a(f"v_cos_f32 v{TMP+i}, v12\nv_sin_f32 v{TMP+4+i}, v12")
        if i < 3: a("v_add_f32 v12, v12, v10")
    a("v_lshlrev_b32 v13, 31, v0\nv_lshrrev_b32 v14, 16, v13\nv_or_b32 v13, v13, v14")
    a(f"""v_cvt_pk_bf16_f32 v{C2}, v{TMP}, v{TMP+1}
    v_cvt_pk_bf16_f32 v{C2+1}, v{TMP+2}, v{TMP+3}
    v_cvt_pk_bf16_f32 v{C2+4}, -v{TMP+4}, -v{TMP+5}
    v_cvt_pk_bf16_f32 v{C2+5}, -v{TMP+6}, -v{TMP+7}
    s_brev_b32 s68, 1""")
    for c in range(2):
        b = C2 + 4*c
        a(f"v_xor_b32 v{b+2}, v{b}, v13\nv_xor_b32 v{b+3}, v{b+1}, v13")
        for r in range(4): a(f"v_xor_b32 v{b+8+r}, s68, v{b+r}")
    a("v_add_f32 v10, v10, v10\nv_mul_f32 v12, v11, v10")
    a("""v_cmp_gt_u32 vcc, 8, v2
    s_andn2_b64 s[22:23], s[66:67], vcc
    s_and_b64 s[66:67], s[66:67], vcc
    v_cndmask_b32 v13, -1, 0, s[22:23]
    v_cndmask_b32 v14, -1, 0, s[66:67]""")
    for i in range(4):
        a(f"""v_cos_f32 v{TMP}, v12
        v_sin_f32 v{TMP+1}, v12
        v_add_f32 v15, s65, v12
        v_cos_f32 v{TMP+2}, v15
        v_sin_f32 v{TMP+3}, v15""")
        if i < 3: a("v_add_f32 v12, v12, v10")
        a(f"""v_cvt_pk_bf16_f32 v{C3A+i}, v{TMP}, v{TMP+1}
        v_cvt_pk_bf16_f32 v{C3A+4+i}, -v{TMP+1}, v{TMP}
        v_cvt_pk_bf16_f32 v{C3B+i}, v{TMP+2}, v{TMP+3}
        v_cvt_pk_bf16_f32 v{C3B+4+i}, -v{TMP+3}, v{TMP+2}""")
    for r in range(8): a(f"v_and_b32 v{C3A+r}, v{C3A+r}, v13\nv_and_b32 v{C3B+r}, v{C3B+r}, v14")
    a(f"""s_cmp_lt_u32 s52, {nclr()}
    s_cbranch_scc0 C_NOGO
    s_and_b32 s22, s52, 1
    s_lshl_b32 s22, s22, 7
    s_mov_b64 exec, 1
    s_waitcnt vmcnt(2)
    buffer_atomic_add v255, v7, s[44:47], s22 offen sc1
    s_mov_b64 exec, -1
    s_waitcnt vmcnt(1)
    s_mov_b32 s52, 0
    C_NOGO:""")
    a(f"v_cvt_f32_u32 v14, s58\nv_mul_f32 v14, {fhex(1/512)}, v14")
    for tau in range(2):
        a(f"v_mul_f32 v10, {fhex(1/512)}, v8")
        if tau: a(f"v_add_f32 v10, {fhex(16/512)}, v10")
        a("v_mul_f32 v12, v11, v10")
        for i in range(4):
            k0 = tau*4 + i; k1 = 8 + k0
            a(f"""v_cos_f32 v{TWC+k0}, v12
            v_sin_f32 v{TWS+k0}, v12
            v_add_f32 v15, v12, v14
            v_cos_f32 v{TWC+k1}, v15
            v_sin_f32 v{TWS+k1}, v15""")
            if i < 3: a("v_add_f32 v12, v12, v10")
    a(f"""v_lshrrev_b32 v14, 5, v0
    v_lshlrev_b32 v10, 10, v14
    v_lshl_add_u32 v10, v2, 5, v10
    v_and_b32 v12, 16, v0
    v_add_u32 v10, v10, v12
    v_add_u32 v10, {BXB}, v10""")
    a(f"""v_lshlrev_b32 v11, 16, v3
    v_lshl_add_u32 v11, v2, 2, v11
    v_and_b32 v12, 6, v2
    v_xor_b32 v12, v12, v3
    v_lshlrev_b32 v12, 4, v12
    v_lshl_add_u32 v4, v2, 7, v12
    v_add_u32 v4, {XB}, v4
    v_xor_b32 v5, 64, v4
    v_bfe_u32 v12, v0, 2, 3
    v_bfe_u32 v13, v0, 1, 1
    v_and_b32 v15, 6, v12
    v_xor_b32 v13, v13, v15
    v_lshlrev_b32 v13, 4, v13
    v_lshl_add_u32 v13, v12, 7, v13
    v_and_b32 v15, 1, v0
    v_lshl_add_u32 v13, v15, 3, v13
    s_lshl_b32 s22, s3, 5
    v_xor_b32 v13, s22, v13
    v_lshl_add_u32 v6, v14, 12, v13
    v_lshl_add_u32 v8, v14, 11, v13
    v_lshlrev_b32 v9, 8, v14
    v_lshl_add_u32 v9, v2, 4, v9
    s_and_b32 s60, s2, 15
    s_lshl_b32 s60, s60, 4
    s_bfe_u32 s61, s2, 0x20004
    s_lshl2_add_u32 s60, s61, s60
    s_lshr_b32 s61, s2, 6
    s_add_u32 s60, s60, s61
    s_lshl_b32 s60, s60, 6
    s_lshl_b32 s61, s3, 19
    s_add_u32 s61, s61, s60
    {'s_bitset1_b32 s61, 30' if XB_ else ''}
    s_add_u32 s60, s60, {128*16384}
    s_lshl2_add_u32 s53, s51, s3
    s_lshl_b32 s58, s53, 14
    s_add_u32 s58, s58, {KVP_OFF}
    s_lshl_b32 s59, s53, 11
    s_add_u32 s59, s59, {ZP_OFF}
    s_lshl_b32 s63, s50, 9
    s_add_u32 s63, s63, s58
    s_lshl_b32 s64, s50, 6
    s_add_u32 s64, s64, s59
    s_getreg_b32 s23, hwreg(HW_REG_XCC_ID)
    s_and_b32 s23, s23, 15
    s_cmp_eq_u32 s23, {'s48' if not FORCESLOW else '15'}
    s_cselect_b32 s23, 1, 0x10001
    v_mov_b32 v240, s23
    s_cmp_eq_u32 s3, 0
    s_cselect_b32 s18, {SIG1-1}, -1
    v_lshlrev_b32 v241, 2, v2
    v_lshl_add_u32 v13, v14, 5, v241
    s_mov_b32 s22, 0x3f803f80
    v_mov_b32 v232, s22
    v_mov_b32 v233, s22
    v_mov_b32 v234, s22
    v_mov_b32 v235, s22
    s_mov_b32 s66, {fhex(1.4426950408889634)}
    s_mov_b32 s67, s66
    s_mov_b32 s65, {fhex(1e-6)}
    s_mov_b64 s[36:37], s[8:9]
    s_mov_b32 s38, 0x80000
    s_mov_b32 s39, s31
    s_lshl_b32 s21, s3, 14
    s_lshl_b32 s22, s55, 7
    s_add_u32 s21, s21, s22
    v_lshrrev_b32 v242, 3, v0
    v_and_b32 v243, 7, v0
    v_and_b32 v230, 6, v242
    v_xor_b32 v243, v243, v230
    v_lshlrev_b32 v243, 4, v243
    v_and_b32 v230, 4, v242
    v_add_u32 v242, v242, v230
    v_lshl_add_u32 v242, v242, 10, v243
    v_lshlrev_b32 v243, 4, v3
    v_lshrrev_b32 v231, 2, v2
    v_lshl_add_u32 v231, v14, 2, v231
    v_lshlrev_b32 v231, 7, v231
    v_and_b32 v230, 3, v2
    v_lshl_add_u32 v231, v230, 4, v231
    v_and_b32 v230, 1, v3
    v_lshl_add_u32 v231, v230, 3, v231""")
    st.mark("cconst")
    a("s_cmp_eq_u32 s52, 0\ns_cbranch_scc1 C_BXOK\ns_waitcnt vmcnt(0)\nC_BXOK:")
    lds_signal(a, K_BX)
    lds_wait(a, K_BX, "C_BXW")
    st.mark("cbx")
    for u in range(2):
        for t in range(4): a(f"ds_read_b128 {q(DAT+(u*4+t)*4)}, v10 offset:{t*2048+u*512}")
    for u in range(2):
        for t in range(4):
            a(f"s_waitcnt lgkmcnt({7-(u*4+t)})")
            for c in range(2):
                acc = AC1 + (u*2+c)*4
                a(f"{MF} {q(acc)}, {q(DAT+(u*4+t)*4)}, {q(C1+(t*2+c)*4)}, {q(acc) if t else 0}")
    for u in range(2):
        for rho in range(2):
            s = AC1 + (u*2+rho)*4
            a(f"v_cvt_pk_bf16_f32 v{OP2+rho*4+u*2}, v{s}, v{s+1}\nv_cvt_pk_bf16_f32 v{OP2+rho*4+u*2+1}, v{s+2}, v{s+3}")
    for rho in range(2):
        for tau in range(2):
            for c in range(2): a(f"{MF} {q(AC2+((rho*2+tau)*2+c)*4)}, {q(OP2+rho*4)}, {q(C2+(tau*2+c)*4)}, 0")
    def st3(rho, tau):
        for c in range(2):
            acc = AC3 + (tau*2+c)*4
            a(f"{MF} {q(acc)}, {q((C3B if rho else C3A)+4*c)}, {q(OP3+(rho*2+tau)*4)}, {q(acc) if rho else 0}")
        if tau == 0:
            for c in range(2):
                acc = ACE + 4*c
                a(f"{MF} {q(acc)}, {q((C3A if rho else C3B)+4*c)}, {q(OP3+(rho*2)*4)}, {q(acc) if rho else 0}")
    prev = None
    for rho in range(2):
        for tau in range(2):
            xr = AC2 + ((rho*2+tau)*2)*4; xi = xr + 4; k = rho*8 + tau*4
            t0 = TMP + ((rho*2+tau) & 1)*8
            for h in (0, 2):
                a(f"v_pk_mul_f32 {d(t0+h)}, {d(xr+h)}, {d(TWC+k+h)}")
                a(f"v_pk_mul_f32 {d(t0+4+h)}, {d(xi+h)}, {d(TWC+k+h)}")
            if prev: st3(*prev)
            for h in (0, 2):
                a(f"v_pk_fma_f32 {d(t0+h)}, {d(xi+h)}, {d(TWS+k+h)}, {d(t0+h)}")
                a(f"v_pk_fma_f32 {d(t0+4+h)}, {d(xr+h)}, {d(TWS+k+h)}, {d(t0+4+h)} neg_lo:[1,0,0] neg_hi:[1,0,0]")
            for i in range(4): a(f"v_cvt_pk_bf16_f32 v{OP3+(rho*2+tau)*4+i}, v{t0+i}, v{t0+4+i}")
            prev = (rho, tau)
    st3(*prev)
    st.mark("cb1")
    for tau in range(2):
        for i in range(4): a(f"v_cvt_pk_bf16_f32 v{OUT+tau*4+i}, v{AC3+tau*8+i}, v{AC3+tau*8+4+i}")
    a(f"v_cvt_pk_bf16_f32 v14, v{ACE}, v{ACE+4}")
    for k in range(8): a(f"v_and_b32 v{OUT+k}, -2, v{OUT+k}")
    a("v_and_b32 v14, -2, v14")
    AK, AV, AQ = 144, 160, 112
    for r in range(0, 32, 2): a(f"v_pk_mul_f32 {d(AK+r)}, {d(232)}, 0")
    if TPOS == 0: a("s_branch C_TST\nC_TRET:")
    st.mark("cst")
    SET = [0]
    XF = lambda ks, R: 16 + SET[0]*48 + (ks*4 + R)*4
    WF = lambda ks, p: 48 + SET[0]*48 + (ks*2 + p)*4
    def reads(ks):
        L = []
        o = SET[0]
        def w(p):
            for eta in range(2): L.append(f"ds_read_b64_tr_b16 {d(WF(ks,p)+2*eta)}, v6 offset:{o*16384 + (4*ks+eta)*2048 + p*1024}")
        w(0)
        for R in range(4): L.append(f"ds_read_b128 {q(XF(ks,R))}, v{4+ks} offset:{o*8192 + R*2048}")
        w(1)
        return L
    def mf(ks, p): return [f"{MF} {q(AK+(p*4+R)*4)}, {q(XF(ks,R))}, {q(WF(ks,p))}, {q(AK+(p*4+R)*4)}" for R in range(4)]
    def chunk(newset, extra=""):
        SET[0] = 1 - newset; M = mf(0, 0) + mf(0, 1) + mf(1, 0) + mf(1, 1)
        SET[0] = newset; Rd = reads(0) + reads(1)
        k = 0
        for i, m in enumerate(M):
            a(m)
            for _ in range(RPM):
                if Rd:
                    if k == 14: a("s_waitcnt lgkmcnt(8)")
                    a(Rd.pop(0)); k += 1
            if i == 11: a(extra)
        a("s_waitcnt lgkmcnt(0)")
    adv = "v_add_u32 v4, 0x4000, v4\nv_add_u32 v5, 0x4000, v5\nv_xor_b32 v6, 0x8000, v6"
    a("s_mov_b32 s68, 1\ns_barrier")
    st.mark("cf0")
    SET[0] = 0
    for k, r in enumerate(reads(0) + reads(1)):
        if k == 14: a("s_waitcnt lgkmcnt(8)")
        a(r)
    a("s_waitcnt lgkmcnt(0)\nC_LOOP:\ns_barrier")
    assert TPOS in (0, 1) and SIG1 in (4, 6)
    chunk(1, adv)
    if TPOS == 1: a("s_cmp_eq_u32 s68, 1\ns_cbranch_scc1 C_TST\nC_TRET:")
    a(f"""s_cmp_lg_u32 s68, {SIG1-1}
    s_cbranch_scc1 C_NOW
    s_waitcnt vmcnt(0)
    C_NOW:
    s_barrier
    s_cmp_eq_u32 s68, s18
    s_cbranch_scc1 C_SIG
    C_MID:""")
    chunk(0, "s_add_u32 s68, s68, 2\ns_cmp_lt_u32 s68, 7")
    a("s_cbranch_scc1 C_LOOP")
    SET[0] = 0
    for m in mf(0, 0) + mf(1, 0): a(m)
    V6 = mf(0, 1) + mf(1, 1)
    SET[0] = 1
    a(f"""s_cmp_eq_u32 s3, 0
    s_cbranch_scc0 C_NOTK
    s_waitcnt vmcnt(0)
    v_readfirstlane_b32 s22, v240
    s_and_b32 s22, s22, 0xffff
    s_and_b32 s23, s2, 15
    s_lshl4_add_u32 s22, s22, s23
    {"" if DYN else "s_mov_b32 s22, s2"}
    v_mov_b32 v240, s22
    ds_write_b32 v254, v240 offset:{4*K_TASK}
    C_NOTK:
    s_barrier""")
    st.mark("cl1")
    if DLM: a(f"s_sleep {DLM}")
    R0, R1 = reads(0), reads(1)
    RR = R0[:6] + R1[:6]
    for i, m in enumerate(V6):
        for r in RR[2*i:2*i+2]: a(r)
        a(m)
    M = mf(0, 0)
    for i in range(4): a(f"s_waitcnt lgkmcnt({9-i})"); a(M[i])
    for r in R0[6:] + R1[6:]: a(r)
    M = mf(1, 0)
    for i in range(4): a(f"s_waitcnt lgkmcnt({7-i})"); a(M[i])
    a("s_waitcnt lgkmcnt(0)")
    lds_signal(a, K_C7)
    KP, VP, KV, ZZ, KO = 208, 216, 236, 244, 248
    MV = mf(0, 1) + mf(1, 1)
    for m in MV[:2]: a(m)
    MV = MV[2:]
    def phi_list(src, dst, tmp):
        L = []
        for g4 in range(0, 16, 4):
            L += [f"v_pk_mul_f32 {d(tmp+g4+h)}, {d(src+g4+h)}, s[66:67]" for h in (0, 2)]
        for h in range(16):
            L += [f"v_exp_f32 v{tmp+h}, v{tmp+h} clamp", f"v_max_f32 v{src+h}, s65, v{src+h}"]
        for h in range(0, 16, 2): L += [f"v_pk_add_f32 {d(src+h)}, {d(src+h)}, {d(tmp+h)}"]
        for h in range(8): L += [f"v_cvt_pk_bf16_f32 v{dst+h}, v{src+2*h}, v{src+2*h+1}"]
        return L
    P = phi_list(AK, KP, 128)
    V = [f"v_cvt_pk_bf16_f32 v{VP+h}, v{AV+2*h}, v{AV+2*h+1}" for h in range(8)]
    P = P[:40] + V + P[40:]
    for i, x in enumerate(P):
        a(x)
        if i % 2 == 1 and MV: a(MV.pop(0))
        if i == len(P) - 3: a(f"{MF} {q(KV)}, {q(KP)}, {q(VP)}, 0")
    a(f"""{MF} {q(ZZ)}, v[232:235], {q(KP)}, 0
    {MF} {q(KV)}, {q(KP+4)}, {q(VP+4)}, {q(KV)}
    {MF} {q(ZZ)}, v[232:235], {q(KP+4)}, {q(ZZ)}
    v_subrev_u32 v4, 0xc000, v4
    v_subrev_u32 v5, 0xc000, v5
    v_mov_b32 v11, v231
    s_lshl_b32 s58, s53, 11
    s_add_u32 s58, s58, {KVF_OFF}
    v_cvt_pk_bf16_f32 v{KO}, v{KV}, v{KV+1}
    v_cvt_pk_bf16_f32 v{KO+1}, v{KV+2}, v{KV+3}
    v_min_u32 v{KO+2}, -2, v{KO}
    v_min_u32 v{KO+3}, -2, v{KO+1}
    v_min_u32 v{KO}, -2, v{KO}
    v_min_u32 v{KO+1}, -2, v{KO+1}
    v_min_u32 v{ZZ}, -2, v{ZZ}
    v_permlane16_swap_b32 v{KO+1}, v{KO+3}
    v_permlane16_swap_b32 v{KO}, v{KO+2}
    s_mov_b32 exec_lo, 0xffff
    s_mov_b32 exec_hi, 0xffff
    buffer_store_dwordx4 {q(KO)}, v9, {WS}, s63 offen sc1
    s_mov_b32 exec_hi, 0
    buffer_store_dword v{ZZ}, v241, {WS}, s64 offen sc1
    s_mov_b64 exec, -1""")
    st.mark("t0")
    class LQ:
        def __init__(self): self.o = []; self.seen = set()
        def issue(self, txt, tag):
            if len(self.o) >= 15: self.drain(10)
            a(txt); self.o.append(tag); self.seen.add(tag)
        def drain(self, n):
            if len(self.o) > n: a(f"s_waitcnt lgkmcnt({n})"); self.o = self.o[len(self.o)-n:] if n else []
        def need(self, *tags):
            idx = [i for i, t in enumerate(self.o) if t in tags]
            if idx: self.drain(len(self.o) - 1 - max(idx))
    lq = LQ()
    XS = [16 + 16*k for k in range(6)] + [144 + 16*k for k in range(4)]
    xs = lambda s_: XS[s_ % NPRE]
    wq = lambda s_: (128 if (s_ >> 2) % 2 == 0 else 208) + 4*(s_ & 3)
    def xr(s_): return [(f"ds_read_b128 {q(xs(s_)+4*R)}, v{4+(s_&1)} offset:{(s_>>1)*8192 + R*2048}", f"x{s_}") for R in range(4)]
    def wr_(g_): return [(f"ds_read_b64_tr_b16 {d(wq(s_)+2*eta)}, v8 offset:{g_*16384 + ((s_>>1)&1)*8192 + (4*(s_&1)+eta)*1024}", f"w{s_}") for s_ in range(4*g_, 4*g_+4) for eta in range(2)]
    lq.issue(f"ds_read_b32 v253, v254 offset:{4*K_Q}", "c")
    for s_ in range(2):
        for t in xr(s_): lq.issue(*t)
    lq.need("c")
    a("v_cmp_ne_u32 vcc, 4, v253\ns_cbranch_vccnz C_QS0\nC_QR0:")
    st.mark("cq0")
    for t in wr_(0): lq.issue(*t)
    pend = []
    for s_ in range(2, NPRE): pend += xr(s_)
    for g_ in range(4):
        if g_ < 3: lq.issue(f"ds_read_b32 v253, v254 offset:{4*(K_Q+1+g_)}", "c")
        for s_ in range(4*g_, 4*g_+4):
            if s_ & 3 == 1 and g_ < 3:
                lq.need("c")
                a(f"v_cmp_ne_u32 vcc, 4, v253\ns_cbranch_vccnz C_QS{g_+1}\nC_QR{g_+1}:")
                st.mark(f"cq{g_+1}")
                pend += wr_(g_+1)
            while any(t[1] in (f"x{s_}", f"w{s_}") for t in pend): lq.issue(*pend.pop(0))
            lq.need(f"x{s_}", f"w{s_}")
            if s_ == 4: lq.issue(f"s_mov_b64 exec, 1\nds_add_u32 v254, v255 offset:{4*K_G0}\ns_mov_b64 exec, -1", "a")
            if s_ >= 1 and s_ - 1 + NPRE < 16: pend += xr(s_ - 1 + NPRE)
            for R in range(4):
                a(f"{MF} {q(AQ+R*4)}, {q(wq(s_))}, {q(xs(s_)+4*R)}, {q(AQ+R*4) if s_ else 0}")
                for _ in range(2):
                    if pend: lq.issue(*pend.pop(0))
    assert not lq.o and not pend
    st.mark("cp2")
    QP, PP, ZL = 96, 16, 80
    def pl(p0, p1, fl):
        for p in range(p0, p1):
            if p % 2 == 0: a(f"s_add_u32 s22, s60, {p*1024}\ns_and_b32 s22, s22, 0x3fff\ns_add_u32 s22, s22, s58")
            a(f"buffer_load_dwordx4 {q(PP+4*p)}, v7, {WS}, s22 offen offset:{(p&1)*1024} {fl}")
    lds_signal(a, K_X)
    a(f"ds_read_b32 v1, v254 offset:{4*K_TASK}")
    for x in phi_list(AQ, QP, 128): a(x)
    lds_wait(a, K_X, "C_XW")
    def cwo(poss):
        for pos in poss:
            a(f"""s_add_u32 s5, s57, {(pos+2) & 7}
            s_and_b32 s5, s5, 7
            s_lshl_b32 s5, s5, 16
            s_add_u32 m0, s69, {XB + 16384 + pos*8192}
            s_add_u32 s5, s5, s21
            buffer_load_dwordx4 v242, s[36:39], s5 offen lds
            s_add_u32 s5, s5, 3072
            buffer_load_dwordx4 v242, s[36:39], s5 offen offset:1024 lds""")
    if RCL:
        a("v_readfirstlane_b32 s56, v1\ns_sub_u32 s22, s56, 129\ns_cmp_lt_u32 s22, 72\ns_cbranch_scc0 C_NORD")
        lds_wait(a, K_RD, "C_RDW", 1)
        cwo((6, 7))
        a("C_NORD:")
    cwo(range(6))
    st.mark("cpi")
    DEN, NUM = 112, 128
    a(f"v_and_b32 v12, 1, v3\nv_lshl_add_u32 v12, v12, 14, v9")
    FS = 2 if MAP == 48 else 7
    FO = F0_OFF + (OF_OFF if MAP == 48 else OF2_OFF)
    a(f"""s_lshl_b32 s61, s50, 16
    s_lshl_b32 s62, s53, 9
    s_add_u32 s61, s61, s62
    s_add_u32 s61, s61, {O_OFF}
    s_add_u32 s62, s61, 0x8000
    s_lshl_b32 s6, s54, {5+FS}
    s_add_u32 s6, s6, {FO}
    s_lshl_b32 s7, s50, 5
    s_add_u32 s7, s7, s53
    s_lshl_b32 s7, s7, {FS}
    s_add_u32 s7, s7, {FO}""")
    if MAP == 48: a(f"ds_read_b64 v[238:239], v254 offset:{4*K_MODE}")
    a(f"""C_PF:
    buffer_load_dwordx4 {q(ZL)}, v243, {WS}, s58 offen offset:1024 sc1
    buffer_load_dwordx2 {d(ZL+6)}, v11, {WS}, s58 offen sc1
    s_waitcnt vmcnt(0)
    v_max3_u32 v1, v{ZL}, v{ZL+1}, v{ZL+2}
    v_max3_u32 v14, v{ZL+3}, v{ZL+6}, v{ZL+7}
    v_cvt_pk_bf16_f32 v{ZL+4}, v{ZL}, v{ZL+1}
    v_max_u32 v1, v1, v14
    v_cvt_pk_bf16_f32 v{ZL+5}, v{ZL+2}, v{ZL+3}
    v_cmp_eq_u32 vcc, -1, v1
    s_cbranch_vccnz C_PFRE""")
    st.mark("ckv")
    for R in range(4): a(f"{M16} {q(DEN+4*R)}, {d(ZL+4)}, {d(QP+2*R)}, 0")
    for R in range(4): a(f"{M16} {q(NUM+4*R)}, {d(ZL+6)}, {d(QP+2*R)}, 0")
    lds_signal(a, K_WO)
    if MAP == 48: a("s_waitcnt lgkmcnt(1)\nv_readfirstlane_b32 s75, v238\nv_readfirstlane_b32 s73, v239")
    for R in range(4): a(f"v_add_f32 v{DEN+4*R}, s65, v{DEN+4*R}")
    for R in range(4): a(f"v_rcp_f32 v{DEN+4*R}, v{DEN+4*R}")
    if MAP == 48: a("s_cmp_eq_u32 s73, 4\ns_cbranch_scc0 C_MW\nC_MWR:\ns_nop 2")
    OO = 244
    for pr in range(2):
        for R in (2*pr, 2*pr+1):
            for h in (0, 2): a(f"v_pk_mul_f32 {d(NUM+4*R+h)}, {d(NUM+4*R+h)}, {d(DEN+4*R)} op_sel_hi:[1,0]")
            a(f"v_cvt_pk_bf16_f32 v{OO+2*R}, v{NUM+4*R}, v{NUM+4*R+1}\nv_cvt_pk_bf16_f32 v{OO+2*R+1}, v{NUM+4*R+2}, v{NUM+4*R+3}")
        o = OO + 4*pr
        a(f"v_permlane16_swap_b32 v{o}, v{o+2}\nv_permlane16_swap_b32 v{o+1}, v{o+3}")
        if MAP != 48: a(f"buffer_store_dwordx4 {q(o)}, v12, {WS}, s{61+pr} offen sc1")
    if MAP == 48:
        a(f"""s_cmp_eq_u32 s75, 0
        s_cbranch_scc0 C_OSLOW
        buffer_store_dwordx4 {q(OO)}, v12, {WS}, s61 offen
        buffer_store_dwordx4 {q(OO+4)}, v12, {WS}, s62 offen
        C_OST:""")
    st.mark("co")
    a(f"""s_lshl_b32 s22, s3, 5
    v_xor_b32 v8, s22, v8
    v_add_u32 v8, {XB + 16384}, v8
    v_xor_b32 v9, 32, v8
    v_xor_b32 v10, 64, v8
    v_xor_b32 v11, 96, v8
    v_lshlrev_b32 v13, {FS}, v0
    s_lshl2_add_u32 s58, s54, s3
    s_lshl_b32 s61, s58, 15
    s_lshl_b32 s58, s58, 14
    s_add_u32 s58, s58, {O_OFF}
    s_lshl_b32 s60, s57, 11
    s_add_u32 s60, s60, 4096
    s_lshl_b32 s22, s55, 7
    s_add_u32 s61, s61, s22
    v_lshlrev_b32 v12, 11, v2
    v_and_b32 v14, 1, v3
    v_lshl_add_u32 v12, v14, 5, v12
    v_lshrrev_b32 v14, 1, v3
    v_lshl_add_u32 v12, v14, 4, v12""")
    OF, ACC = 16, 128
    WB = [80, 96, 112, 160, 176, 192, 208, 224, 144]
    wb = lambda p: WB[p % NWO]
    def wreads(p): return [(f"ds_read_b64_tr_b16 {d(wb(p)+4*t+2*eta)}, v{8+t} offset:{p*4096 + eta*1024}", f"o{p}") for t in range(4) for eta in range(2)]
    a("s_cmp_eq_u32 s75, 0\ns_waitcnt vmcnt(0)")
    st.mark("cab")
    if MAP == 48:
        a(f"""s_mov_b64 exec, 1
        s_cbranch_scc0 C_FSLOW
        buffer_store_dword v255, v7, {WS}, s7 offen
        C_FST:
        s_mov_b64 exec, -1""")
    else: a(f"s_mov_b64 exec, 1\nbuffer_store_dword v255, v7, {WS}, s7 offen sc1\ns_mov_b64 exec, -1")
    if UGATE == 2: lds_signal(a, K_CO)
    lds_wait(a, K_WO, "C_WW")
    if W67: lds_wait(a, K_W67, "C_WW2")
    st.mark("cww")
    for p in range(0, 4):
        for t in wreads(p): lq.issue(*t)
    a(f"s_mov_b32 exec_hi, 0\nbuffer_load_dword v1, v13, {WS}, s6 offen sc1\ns_mov_b32 exec_hi, -1")
    for p in range(4, NWO):
        for t in wreads(p): lq.issue(*t)
    a(f"""s_mov_b32 exec_hi, 0
    C_OP:
    s_waitcnt vmcnt(0)
    v_cmp_ne_u32 vcc, 1, v1
    s_cbranch_vccnz C_OPRE
    s_mov_b64 exec, -1""")
    st.mark("cof")
    if UGATE == 3: lq.issue(f"s_mov_b64 exec, 1\nds_add_u32 v254, v255 offset:{4*K_CO}\ns_mov_b64 exec, -1", "a")
    pl(0, OIL, OFL)
    iss = OIL
    for p in range(16):
        if p >= 1 and iss < 16: pl(iss, iss+2, OFL); iss += 2
        if iss == 16:
            lq.issue(f"s_mov_b64 exec, 1\nds_add_u32 v254, v255 offset:{4*K_OI}\ns_mov_b64 exec, -1", "a")
            st.mark("coi"); iss = 17
        a(f"s_waitcnt vmcnt({min(iss, 16)-1-p})")
        lq.need(f"o{p}")
        if p == 0: st.mark("cg0")
        R = wreads(p-1+NWO) if p >= 1 and p-1+NWO < 16 else []
        for t in range(4):
            a(f"{MF} {q(ACC+4*t)}, {q(wb(p)+4*t)}, {q(OF+4*p)}, {q(ACC+4*t) if p else 0}")
            for r in R[2*t:2*t+2]: lq.issue(*r)
    st.mark("cg")
    for pr in range(2):
        o = 144 + pr*4
        for t in range(2):
            acc = ACC + (pr*2+t)*4
            a(f"v_cvt_pk_bf16_f32 v{o+2*t}, v{acc}, v{acc+1}\nv_cvt_pk_bf16_f32 v{o+2*t+1}, v{acc+2}, v{acc+3}")
        a(f"v_permlane16_swap_b32 v{o}, v{o+2}\nv_permlane16_swap_b32 v{o+1}, v{o+3}")
        a(f"buffer_store_dwordx4 {q(o)}, v12, s[40:43], s61 offen offset:{64*pr} {OUTFL.replace('_', ' ')}")
    st.dump()
    a("s_endpgm")
    a("C_TST:")
    for k in range(8): a(f"buffer_store_dword v{OUT+k}, v11, {WS}, s61 offen sc1\ns_add_u32 s61, s61, {0x4000 if k != 3 else 0x40000-3*0x4000}")
    a(f"""s_cmp_eq_u32 s3, 0
    s_cbranch_scc0 C_TRET
    s_mov_b32 exec_lo, 0xff
    s_mov_b32 exec_hi, 0xff
    buffer_store_dword v14, v13, {WS}, s60 offen sc1
    s_mov_b64 exec, -1
    s_branch C_TRET
    C_SIG:
    s_mov_b64 exec, 1
    buffer_atomic_add v240, v7, {WS}, s19 offen sc0 sc1
    s_mov_b64 exec, -1
    s_branch C_MID
    C_OPRE:""")
    spin_check(a, 0 if MAP == 48 else 2)
    a(f"buffer_load_dword v1, v13, {WS}, s6 offen sc1\ns_branch C_OP")
    for g_ in range(4):
        lds_wait(a, K_Q+g_, f"C_QS{g_}")
        a(f"s_branch C_QR{g_}")
    if RCL:
        a("L_R67:\ns_mov_b64 exec, 1\ns_brev_b32 s5, 2")
        for k in range(4): a(f"buffer_load_dword v203, v206, {WS}, s5 offen")
        a("s_mov_b64 exec, -1\ns_branch L_R68")
    a("L_REDRE:")
    spin_check(a, RSLP, 100)
    a("s_branch L_RED")
    a("L_URE:")
    if UGATE != 1: lds_wait(a, K_OI, "L_URG", 1)
    spin_check(a, USLP)
    a("s_waitcnt lgkmcnt(0)\ns_branch L_UL\nL_H1RE:")
    spin_check(a, PSLEEP)
    a(f"buffer_load_dword v205, v250, {WS}, 0 offen sc1\ns_waitcnt vmcnt(0)\ns_branch L_H1")
    a("C_PFRE:")
    spin_check(a, FSLP, 100)
    a("s_branch C_PF")
    if MAP == 48:
        lds_wait(a, K_H1, "C_MW")
        a(f"""ds_read_b32 v238, v254 offset:{4*K_MODE}
        s_waitcnt lgkmcnt(0)
        v_readfirstlane_b32 s75, v238
        s_branch C_MWR
        C_OSLOW:
        buffer_store_dwordx4 {q(OO)}, v12, {WS}, s61 offen sc1
        buffer_store_dwordx4 {q(OO+4)}, v12, {WS}, s62 offen sc1
        s_branch C_OST
        C_FSLOW:
        buffer_store_dword v255, v7, {WS}, s7 offen sc1
        s_branch C_FST""")
    a("L_GORE:")
    spin_check(a, RESLEEP)
    a("buffer_load_dword v204, v249, s[44:47], 0 offen sc1\ns_waitcnt vmcnt(0)\ns_branch L_GO\nL_END:\ns_endpgm")
    a(f".fill (33280-(.-{NAME}))/4, 4, 0xbf810000")

HEADER = open("concat_heads__linear_attn_block__spectral_gfnet__prompt.s.ref").read().split("; Override")[0]

def main(out):
    a = Asm(); st = Stamps(a)
    entry(a, st); l_main(a, st); c_main(a, st)
    txt = HEADER + f"""; @launch grid=(256,1,1) block=(512,1,1) lds={LDS_SIZE}
.amdgcn_target "amdgcn-amd-amdhsa--gfx950"
.text
""" + a.finalize() + f""".section .rodata,"a"
.p2align 6
.amdhsa_kernel {NAME}
  .amdhsa_next_free_vgpr 256
  .amdhsa_next_free_sgpr 102
  .amdhsa_accum_offset 256
  .amdhsa_group_segment_fixed_size 0
  .amdhsa_kernarg_size 72
  .amdhsa_user_sgpr_count 2
  .amdhsa_user_sgpr_kernarg_segment_ptr 1
  .amdhsa_system_sgpr_workgroup_id_x 1
.end_amdhsa_kernel
"""
    open(out, "w").write(txt)

if __name__ == "__main__":
    for arg in sys.argv[2:]:
        if arg == "stamp": STAMP = True
        elif "=" in arg:
            k, v = arg.split("=", 1)
            globals()[k] = int(v) if v.lstrip("-").isdigit() else v
    main(sys.argv[1])
```

```python
import sys, struct
from asm import Asm

T_OFF = 0; ROW = 8320; U_OFF = 0x240000; WP_OFF = 0x480000; KVP_OFF = 0x6C0000; ZP_OFF = 0x740000
KVF_OFF = 0x6B0000; F0_OFF = 0x750000; O_OFF = 0x800000; WS_SIZE = 0xA00000; DBG_OFF = 0xA00000
XB = 65536; BXB = 131072; EB = 147456; CNT = 163584; WRB = EB; SPB = WRB + 16*576; LDS_SIZE = 163840
OF_OFF = 4096; H2_OFF = 8192; OF2_OFF = 16384
STAMP = False
NAME = "concat_heads__linear_attn_block__spectral_gfnet__prompt_kernel"
SPIN = 0x40000
MAP = 48; GPOS = 1; SIG1 = 4; TPOS = 1; RCL = 1; TFIRST = 0; OIL = 10; PFS = 0; EXIT0 = 0; EARLY = 0; NOOUT = 0; PREU = 1; PSLEEP = 2; RESLEEP = 2; CPRIO = 2; LPRIO = 3; FORCESLOW = 0
OUTFL = ""; TFL = "sc1"; UFL = "sc1"; OFL = "sc1"; NPRE = 5; NWO = 9; PSPLIT = 8; HPOS = 0; XROT = 1; BNT = ""; XNT = ""; QPF = 0; RP = 2; PT = 0; DLY = 0; SPEC = 0; B3A = 1; B3B = 0; U4 = 0; TEX = 0; TD = 1; WA = 2; WPF = 0; W67E = 8; FF = 5; CS = 60; A8 = 0; XCL = 1; WLP = -1; TS = "0011"; K6 = 4; SB = "F10.o.a8.F11.67.A.a9.c60.a10.h.P.W0.a11.W1.c.H.T.W2.W3.R.s67"; SN = "F10.o.a8.F11.67.A.a9.h.a10.a11.H.P.D.s67"; NF = 3; PRE = 0; W67B = 0; RT = 0; RD1 = 1; SAFE = 1; B2E = 3; GSLP = 1; OSLP = 0; TKE = 0; OPRIO = 1; XW = 0; XB_ = 0; DLE = 0; DLM = 0; WSB = 0; ROTM = 7; F3E = 0; RPM = 2; B2POS = 1; WNT = ""; PFL = "sc1"; YFL = ""; SFL = "sc1"; LBAR = 0; WOX = 1; WOAT = 2; DYN = 1; PFB = 0; UGATE = 1; USLP = 4; PROT = 0; PEXP = 0; RPOS = 0; RSLP = 2; FSLP = 2; UPRIO = 3; MW = 0; MWQ = 0; OPF = 7; W67 = 1; B3LATE = 0; NOPF = 0; LSLP = 1; NBSLP = 0
MC = "cbx,cst,cf0,t0,cp2,ckv,co,cww,cof,coi,cg"; ML = "iss,lf0,lf7,lq3,lh1,lt,lb2,lack,lul,luok,lend"
K_BX, K_X, K_WO, K_E1, K_E2, K_MODE, K_H1, K_Q, K_H2, K_OI, K_C7, K_TASK, K_G0, K_U, K_CO, K_W67 = 0, 1, 2, 3, 4, 6, 7, 8, 12, 13, 14, 15, 16, 17, 18, 19
K_RD = 12; K_G1 = 20; K_TK = 21

def fhex(x): return "0x%08x" % struct.unpack("<I", struct.pack("<f", x))[0]
def q(b): return "v[%d:%d]" % (b, b + 3)
def d(b): return "v[%d:%d]" % (b, b + 1)
MF = "v_mfma_f32_16x16x32_bf16"
M16 = "v_mfma_f32_16x16x16_bf16"
WS = "s[24:27]"
def WREST(): return (6, 7, 0, 1, 2, 3, 4, 5) if PFB == 4 else (0, 1, 2, 3, 4, 5)
RETRY = []
DEC0 = """s_and_b32 s22, s56, 7
s_bfe_u32 s23, s56, 0x10003
s_lshl1_add_u32 s22, s22, s23
s_and_b32 s4, s56, 0xf0
s_add_u32 s4, s4, s22
s_lshl_b32 s22, s22, 5
s_and_b32 s23, s56, 16
s_add_u32 s22, s22, s23
s_bfe_u32 s23, s56, 0x20005"""
DEC1 = """s_bfe_u32 s22, s56, 0x40003
s_and_b32 s23, s56, 4
s_lshl2_add_u32 s22, s23, s22
s_lshr_b32 s4, s22, 1
s_and_b32 s23, s56, 8
s_lshl1_add_u32 s4, s23, s4
s_and_b32 s23, s56, 0x80
s_add_u32 s4, s4, s23
s_lshl_b32 s22, s22, 4
s_and_b32 s23, s56, 3
s_lshl_b32 s69, s23, 5
s_add_u32 s4, s4, s69"""
def nclr(): return 82 if MAP == 48 else 98

def srd_ptr(a, r, lo): a(f"s_mov_b32 s{r}, s{lo}\ns_mov_b32 s{r+1}, s{lo+1}")
def srd_const(a, r, size): a(f"s_mov_b32 s{r+2}, {size}\ns_mov_b32 s{r+3}, 0x20000")
def wsz(): return WS_SIZE + (0x100000 if STAMP else 0)

class Stamps:
    def __init__(self, a): self.a = a
    def start(self):
        if STAMP: self.a("s_memtime s[76:77]\ns_memrealtime s[78:79]")
    def clear(self, keep):
        if STAMP:
            for lst in (MC.split(","), ML.split(",")):
                pass
            for i in range(11):
                if i != keep and not (EARLY and i < 7): self.a(f"s_mov_b32 s{80+2*i}, 0")
    def idx(self, name):
        for lst in (MC.split(","), ML.split(",")):
            if name in lst: return lst.index(name)
        return -1
    def mark(self, name):
        if STAMP and self.idx(name) >= 0:
            i = self.idx(name); self.a(f"s_mem{'real' if RT else ''}time s[{80+2*i}:{81+2*i}]")
    def dump(self):
        if not STAMP: return
        a = self.a
        a("v_mov_b32 v28, s56\ns_memrealtime s[74:75]\ns_waitcnt vmcnt(0) lgkmcnt(0)\ns_mov_b64 exec, 1")
        for i in range(11): a(f"s_sub_u32 s73, s{80+2*i}, s{78 if RT else 76}\ns_cmp_eq_u32 s{80+2*i}, 0\ns_cselect_b32 s73, 0, s73\nv_mov_b32 v{16+i}, s73")
        a(f"s_sub_u32 s73, {SPIN}, s72\nv_mov_b32 v27, s73\nv_mov_b32 v29, 0\nv_mov_b32 v30, s78\nv_mov_b32 v31, s74")
        a(f"s_lshl_b32 s73, s2, 3\ns_add_u32 s73, s73, s3\ns_lshl_b32 s73, s73, 6\ns_add_u32 s73, s73, {DBG_OFF}\nv_mov_b32 v15, s73")
        for j in range(4): a(f"buffer_store_dwordx4 {q(16+4*j)}, v15, {WS}, 0 offen offset:{16*j}")

def spin_check(a, slp, w=1):
    a(f"s_sub_u32 s72, s72, {w if STAMP else 1}\ns_cbranch_scc1 L_END")
    if slp: a(f"s_sleep {slp}")

def lds_signal(a, k): a(f"s_mov_b64 exec, 1\nds_add_u32 v254, v255 offset:{4*k}\ns_mov_b64 exec, -1")
def lds_wait(a, k, lbl, slp=0):
    a(f"""{lbl}:
    {"s_sleep %d" % slp if slp else ""}
    ds_read_b32 v253, v254 offset:{4*k}
    s_sub_u32 s74, s74, 1
    s_cbranch_scc1 L_END
    s_waitcnt lgkmcnt(0)
    v_cmp_ne_u32 vcc, 4, v253
    s_cbranch_vccnz {lbl}""")

def issue1w(a, c):
    a(f"""s_mul_i32 s66, s52, 196608
    s_add_u32 m0, s64, {(c & 3)*16384}
    s_add_u32 s66, s66, s61
    buffer_load_dwordx4 v6, s[32:35], s66 offen {WNT} lds
    buffer_load_dwordx4 v6, s[32:35], s66 offen offset:1024 {WNT} lds
    s_add_u32 s66, s66, 10240
    buffer_load_dwordx4 v6, s[32:35], s66 offen offset:2048 {WNT} lds
    buffer_load_dwordx4 v6, s[32:35], s66 offen offset:3072 {WNT} lds""")
def issue1x(a, c):
    a(f"""s_lshl_b32 s65, s52, 7
    s_add_u32 m0, s62, {XB + c*8192}
    s_add_u32 s65, s65, s60
    buffer_load_dwordx4 v5, s[28:31], s65 offen {XNT} lds
    s_add_u32 s65, s65, 7168
    buffer_load_dwordx4 v5, s[28:31], s65 offen offset:1024 {XNT} lds""")
def issue1(a, c):
    if MAP == 48: issue1w(a, c); issue1x(a, c)
    else: issue1x(a, c); issue1w(a, c)
    a("s_add_u32 s52, s52, 1\ns_and_b32 s52, s52, 7")
def issue2(a, gam):
    for k2 in range(2):
        a(f"""s_mul_i32 s66, s52, 196608
        s_add_u32 m0, s62, {gam*16384 + k2*8192}
        s_add_u32 s66, s66, s61
        s_add_u32 s52, s52, 1
        buffer_load_dwordx4 v6, s[32:35], s66 offen {WNT} lds
        s_add_u32 s66, s66, 11264
        s_and_b32 s52, s52, 7
        buffer_load_dwordx4 v6, s[32:35], s66 offen offset:1024 {WNT} lds""")

def waddr(a, slot, conj, step, row0, wq_, gq_):
    a(f"""s_and_b32 {slot}, s48, 3
    s_cmp_eq_u32 s48, 4
    s_cselect_b32 {row0}, 4, {slot}
    s_and_b32 {wq_}, s49, 7
    s_lshl4_add_u32 {row0}, {wq_}, {row0}
    s_lshr_b32 {gq_}, s49, 3
    s_lshl_b32 s22, {gq_}, 9
    s_add_u32 {row0}, {row0}, s22
    s_sub_u32 s22, 2048, {row0}
    s_cmp_ge_u32 s48, 4
    s_cselect_b32 {row0}, s22, {row0}
    s_cselect_b32 {conj}, 0x80000000, 0
    s_movk_i32 {step}, {8*514}
    s_cmovk_i32 {step}, {-8*514}
    s_mulk_i32 {row0}, 514""")

def entry(a, st):
    a(f".globl {NAME}\n.p2align 8\n.type {NAME},@function\n{NAME}:")
    st.start()
    a(f"""s_cmp_ge_u32 s2, {0 if EXIT0 else 256}
    s_cbranch_scc1 L_END
    s_load_dwordx16 s[4:19], s[0:1], 0
    s_load_dwordx2 s[20:21], s[0:1], 64
    {"s_memtime s[80:81]" if EARLY else ""}
    v_lshrrev_b32 v4, 6, v0
    s_lshr_b32 s49, s2, 3
    v_readfirstlane_b32 s3, v4
    v_and_b32 v0, 63, v0
    {"s_memtime s[82:83]" if EARLY else ""}
    {"s_getpc_b64 s[60:61]" if PFS else ""}
    {"v_lshl_add_u32 v1, v4, 6, v0" if PFS else ""}
    {"v_mul_u32_u24 v1, %d, v1" % PFS if PFS else ""}
    {"global_load_dword v1, v1, s[60:61]" if PFS else ""}
    s_cmp_eq_u32 s3, 0
    s_cbranch_scc0 C_NOPF
    s_mov_b32 exec_lo, -1
    s_mov_b32 exec_hi, 0
    s_getpc_b64 s[60:61]
    L_PC:
    s_mul_i32 s62, s49, 768
    v_min_u32 v1, 5, v0
    v_lshlrev_b32 v1, 7, v1
    v_add_u32 v1, s62, v1
    v_min_u32 v1, L_END-L_PC, v1
    {"" if PFS else "global_load_dword v1, v1, s[60:61]"}
    v_lshlrev_b32 v2, 2, v0
    v_add_u32 v2, {CNT}, v2
    v_mov_b32 v3, 0
    ds_write_b32 v2, v3
    s_mov_b64 exec, -1
    C_NOPF:
    {"s_sleep %d" % DLY if DLY else ""}
    {"s_memtime s[84:85]" if EARLY else ""}
    s_and_b32 s48, s2, 7
    v_lshlrev_b32 v7, 4, v0
    s_mov_b32 s30, 0x200000
    s_mov_b32 s31, 0x20000""")
    if MAP == 48:
        a("""s_and_b32 s52, s49, 3
        s_lshl2_add_u32 s50, s48, s52
        s_lshr_b32 s51, s49, 2
        s_lshl1_add_u32 s52, s52, s51""")
    else:
        a("""s_and_b32 s52, s49, 7
        s_lshr_b32 s50, s48, 1
        s_lshl3_add_u32 s50, s50, s52
        s_lshr_b32 s22, s49, 3
        s_and_b32 s51, s48, 1
        s_lshl2_add_u32 s51, s51, s22
        s_lshl1_add_u32 s52, s22, s52""")
    a(f"""s_cmp_ge_u32 s3, 4
    s_cbranch_scc1 L_START
    s_lshl_b32 s69, s3, 11
    s_lshl_b32 s58, s3, 19
    s_lshl_b32 s59, s2, 10
    s_add_u32 s58, s58, s59
    {'s_bitset1_b32 s58, 30' if XB_ else ''}
    s_add_u32 s59, s58, {0x40000-1024}
    s_add_u32 m0, s69, {BXB}
    s_cmp_ge_u32 s2, 209
    s_cselect_b32 s22, 0, -1
    v_mov_b32 v208, s22
    v_mov_b32 v209, s22
    v_mov_b32 v210, s22
    v_mov_b32 v211, s22
    s_sub_u32 s52, s2, 129
    s_cmp_eq_u32 s3, 3
    s_cselect_b32 s52, s52, -1
    s_lshl_b32 s65, s52, 13
    s_add_u32 s65, s65, {KVF_OFF}
    s_mov_b32 s26, {wsz()}
    s_mov_b32 s27, s31
    s_cmp_lt_u32 s52, {nclr()}
    {"s_memtime s[86:87]" if EARLY else ""}
    s_waitcnt lgkmcnt(0)
    {"s_memtime s[88:89]" if EARLY else ""}
    s_mov_b64 s[28:29], s[10:11]
    s_cselect_b32 s23, 1, 0
    s_add_u32 s24, s20, {WSB << 20}
    s_addc_u32 s25, s21, 0
    s_cmp_eq_u32 s23, 1
    s_cbranch_scc1 C_CLR
    C_NOCLR:
    buffer_load_dwordx4 v7, s[28:31], s58 offen {BNT} lds
    buffer_load_dwordx4 v7, s[28:31], s59 offen offset:1024 {BNT} lds
    {"s_memtime s[90:91]" if EARLY else ""}
    s_barrier
    {"s_memtime s[92:93]" if EARLY else ""}
    s_branch C_MAIN
    C_CLR:
    buffer_store_dwordx4 v[208:211], v7, {WS}, s65 offen sc1
    buffer_store_dwordx4 v[208:211], v7, {WS}, s65 offen offset:1024 sc1
    buffer_store_dwordx4 v[208:211], v7, {WS}, s65 offen offset:2048 sc1
    buffer_store_dwordx4 v[208:211], v7, {WS}, s65 offen offset:3072 sc1
    s_bitset1_b32 s65, 12
    buffer_store_dwordx4 v[208:211], v7, {WS}, s65 offen sc1
    buffer_store_dwordx4 v[208:211], v7, {WS}, s65 offen offset:1024 sc1
    buffer_store_dwordx4 v[208:211], v7, {WS}, s65 offen offset:2048 sc1
    buffer_store_dwordx4 v[208:211], v7, {WS}, s65 offen offset:3072 sc1
    s_branch C_NOCLR
    L_START:
    {"s_memtime s[86:87]" if EARLY else ""}
    s_sub_u32 s58, s3, 4
    {"s_and_b32 s52, s52, %d" % ROTM if ROTM != 7 else ""}
    {"s_add_u32 s52, s52, s48" if XROT == 1 else ""}
    {"s_lshr_b32 s22, s48, 1" if XROT == 2 else ""}
    {"s_add_u32 s52, s52, s22" if XROT == 2 else ""}
    s_and_b32 s52, s52, 7
    v_lshrrev_b32 v8, 3, v0
    v_and_b32 v9, 7, v0
    v_and_b32 v10, 6, v8
    v_xor_b32 v9, v9, v10
    v_lshlrev_b32 v9, 4, v9
    v_lshl_add_u32 v5, v8, 10, v9
    v_and_b32 v10, 4, v8
    v_add_u32 v10, v10, v8
    v_mul_u32_u24 v6, 3072, v10
    v_add_u32 v6, v6, v9
    s_lshl2_add_u32 s60, s50, s58
    s_lshl_b32 s60, s60, 14
    s_lshl_b32 s61, s51, 7
    s_mul_i32 s62, s58, 49152
    s_add_u32 s61, s61, s62
    s_addk_i32 s61, 1024
    s_lshl_b32 s62, s58, 11
    s_lshl_b32 s64, s58, 12
    s_mov_b32 s34, 0x180000
    s_mov_b32 s35, s31
    s_mov_b32 s38, {0 if XW else 2048*514}
    s_mov_b32 s39, s31
    s_mov_b32 s42, s38
    s_mov_b32 s43, s31""")
    a("""s_waitcnt lgkmcnt(0)
    s_mov_b64 s[32:33], s[6:7]
    s_mov_b64 s[28:29], s[4:5]
    s_barrier""")
    issue1(a, 0)
    st.mark("iss")
    a("""s_mov_b64 s[0:1], s[12:13]
    s_mov_b64 s[70:71], s[14:15]
    s_cmp_eq_u32 s58, 0
    s_cbranch_scc0 L_NOSP
    s_mov_b64 s[36:37], s[12:13]
    s_mov_b64 s[40:41], s[14:15]""")
    waddr(a, "s75", "s59", "s67", "s68", "s56", "s69")
    a(f"""v_and_b32 v12, 3, v0
    v_lshlrev_b32 v12, 4, v12
    v_lshrrev_b32 v11, 4, v0
    v_add_u32 v12, v12, v11
    v_mul_i32_i24 v12, s67, v12
    v_add_u32 v12, s68, v12
    v_sub_u32 v11, {2048*514}, v12
    s_lshr_b32 s23, s59, 22
    s_sub_u32 s22, 512, s23
    s_cmp_eq_u32 s75, 0
    s_cselect_b64 vcc, -1, 0
    s_cselect_b32 s22, s22, s23
    v_cndmask_b32 v11, v11, v12, vcc
    s_mov_b32 exec_hi, 0
    buffer_load_ushort v{SPC}, v12, s[36:39], s23 offen
    buffer_load_ushort v{SPC+1}, v12, s[40:43], s23 offen
    buffer_load_ushort v106, v11, s[36:39], s22 offen
    buffer_load_ushort v107, v11, s[40:43], s22 offen
    s_mov_b32 exec_hi, -1
    L_NOSP:""")
    issue1(a, 1)

def common_setup(a, st, keep):
    st.clear(keep)
    a(f"s_add_u32 s24, s20, {WSB << 20}\ns_addc_u32 s25, s21, 0\ns_mov_b64 s[40:41], s[16:17]\ns_mov_b64 s[44:45], s[18:19]")
    srd_const(a, 24, wsz()); srd_const(a, 40, 0 if NOOUT else 0x400000); srd_const(a, 44, 256)
    a(f"""s_mov_b32 s72, {SPIN}
    s_mov_b32 s74, {SPIN*16}
    v_mov_b32 v254, {CNT}
    v_mov_b32 v255, 1
    v_and_b32 v2, 15, v0
    v_lshrrev_b32 v3, 4, v0
    v_cvt_f32_u32 v8, v2
    v_cvt_f32_u32 v9, v3
    v_lshrrev_b32 v12, 1, v0
    v_lshrrev_b32 v13, 2, v0
    v_and_b32 v13, 4, v13
    v_xor_b32 v12, v12, v13
    v_and_b32 v15, 7, v12
    s_and_b32 s57, s49, 3
    s_lshl2_add_u32 s54, s48, s57
    s_lshr_b32 s55, s49, 2
    s_lshl1_add_u32 s57, s57, s55
    s_and_b32 s19, s2, 15
    s_lshl_b32 s19, s19, 7
    s_add_u32 s19, s19, {F0_OFF}""")

RWR, RWI, SPC = 176, 184, 192

def l_main(a, st):
    C1, C2, TWC, TWS, C3, DAT, AC1, OP2, AC2, INI = 16, 40, 48, 56, 64, 80, 112, 144, 160, 192
    TMP, OP3, AC3, OUT = 80, 112, 128, 144
    CA, CB = 208, 240
    OP, WPK, AC, PK, WRI, T0 = 80, 96, 112, 144, 160, 176
    seq = ["F0"]*6 + ["F1"]*6
    a("v_lshl_add_u32 v4, v10, 10, v9\ns_mov_b64 s[36:37], s[8:9]")
    srd_const(a, 36, 0x80000)
    common_setup(a, st, st.idx("iss"))
    CT = 194
    def b3_consts():
        a(f"""s_lshl_b32 s67, s58, 9
        s_add_u32 s67, s67, s2
        v_and_b32 v10, 1, v0
        v_lshlrev_b32 v10, 8, v10
        v_add_u32 v10, s67, v10
        v_cvt_f32_u32 v10, v10
        v_mul_f32 v10, {fhex(1/2048)}, v10
        v_lshrrev_b32 v11, 5, v0
        v_cvt_f32_u32 v11, v11""")
        MK = 196
        for r in range(4): a(f"v_cmp_eq_u32 vcc, {r}, v15\nv_cndmask_b32 v{MK+r}, 0, -1, vcc")
        a(f"""v_mul_f32 v12, v11, v10
        v_mov_b32 v13, 0xc0400000
        v_fma_f32 v13, v13, v11, 4.0
        v_mul_f32 v13, v13, v10
        v_add_f32 v14, 2.0, v11
        v_mul_f32 v14, v14, v10""")
        for k in range(3):
            b = C1 + 8*k
            a(f"""v_cos_f32 v{CT}, v{12+k}
            v_sin_f32 v{CT+1}, v{12+k}
            v_mul_f32 v{CT}, {fhex(2.0**-19)}, v{CT}
            v_mul_f32 v{CT+1}, {fhex(2.0**-19)}, v{CT+1}
            v_cvt_pk_bf16_f32 v{b+3}, v{CT}, -v{CT+1}
            v_cvt_pk_bf16_f32 v{b+7}, v{CT+1}, v{CT}""")
            for c in range(2):
                for r in range(4): a(f"v_and_b32 v{b+4*c+r}, v{b+4*c+3}, v{MK+r}")
        a(f"v_mul_f32 v12, {fhex(1/16)}, v8\nv_mul_f32 v13, v9, v12\nv_mul_f32 v12, 4.0, v12")
        for v in range(4):
            a(f"v_cos_f32 v{CT}, v13\nv_sin_f32 v{CT+1}, v13")
            if v < 3: a("v_add_f32 v13, v13, v12")
            a(f"v_cvt_pk_bf16_f32 v{C2+v}, v{CT}, -v{CT+1}\nv_cvt_pk_bf16_f32 v{C2+4+v}, v{CT+1}, v{CT}")
        a(f"""v_bfe_u32 v12, v0, 4, 1
        v_cvt_f32_u32 v12, v12
        v_add_f32 v12, v12, v12
        v_mov_b32 v13, 0x41800000
        v_fma_f32 v12, v11, v13, v12
        v_mul_f32 v13, {fhex(1/512)}, v8
        v_mul_f32 v14, v12, v13
        v_mul_f32 v15, {fhex(3.0)}, v13""")
        for i in range(4):
            for ph in range(2):
                k = i*2 + ph; kap = i >> 1; r = (i & 1)*2 + ph
                a(f"""v_cos_f32 v{TWC+k}, v14
                v_sin_f32 v{TWS+k}, v14
                v_mul_f32 v12, 0x41800000, v14
                v_cos_f32 v{CT}, v12
                v_sin_f32 v{CT+1}, v12""")
                if k < 7: a(f"v_add_f32 v14, v14, v{15 if ph else 13}")
                a(f"v_cvt_pk_bf16_f32 v{C3+kap*8+r}, v{CT}, -v{CT+1}")
                if ph: a(f"v_cvt_pk_bf16_f32 v{C3+kap*8+4+r}, -v{CT}, v{CT+1}")
                else: a(f"v_cvt_pk_bf16_f32 v{C3+kap*8+4+r}, v{CT}, -v{CT+1}")
        a(f"""v_cvt_f32_u32 v12, s2
        v_mul_f32 v12, {fhex(1/512)}, v12
        v_cos_f32 v13, v12
        v_sin_f32 v14, v12
        v_lshlrev_b32 v10, 10, v3
        v_lshl_add_u32 v10, v2, 4, v10
        v_mul_f32 v13, {fhex(2.0**-20)}, v13
        v_mul_f32 v14, {fhex(2.0**-20)}, v14
        v_lshlrev_b32 v11, 5, v2
        v_lshl_add_u32 v11, v3, 3, v11
        v_mov_b32 v15, 0""")
    def b2_consts_raw(a):
        a(f"""s_lshl_b32 s22, s58, 2
        v_cvt_f32_u32 v146, s22
        v_mul_f32 v144, {fhex(1/16)}, v8
        v_mul_f32 v145, 4.0, v9
        v_mul_f32 v145, v145, v144
        v_mul_f32 v147, {fhex(1/16)}, v144
        v_mul_f32 v146, v146, v147""")
        for r in range(4):
            a(f"""v_cos_f32 v154, v145
            v_sin_f32 v155, v145
            v_add_f32 v148, v145, v146
            v_cvt_pk_bf16_f32 v{CB+r}, v154, v155
            v_cvt_pk_bf16_f32 v{CB+4+r}, -v155, v154""")
            for j in range(4):
                t = 150 + 2*(j & 1)
                a(f"v_cos_f32 v{t}, v148\nv_sin_f32 v{t+1}, v148")
                if j < 3: a("v_add_f32 v148, v148, v147")
                elif r < 3: a("v_add_f32 v145, v145, v144")
                a(f"v_cvt_pk_bf16_f32 v{CA+8*j+r}, v{t}, v{t+1}\nv_cvt_pk_bf16_f32 v{CA+8*j+4+r}, -v{t+1}, v{t}")
        a(f"""s_lshl_b32 s23, s58, 8
        v_lshlrev_b32 v200, 12, v3
        v_lshl_add_u32 v200, v2, 4, v200
        v_add_u32 v200, s23, v200
        v_add_u32 v201, s64, v7
        v_add_u32 v251, {EB}, v200
        v_add_u32 v252, {EB}, v201
        s_cmp_eq_u32 s58, 3
        s_cselect_b32 s16, 0xffff, -1
        s_mov_b32 s7, 0xffff0000""")
    _t = Asm(); b2_consts_raw(_t); B2L = list(_t.lines)
    def b2_consts(n=1000):
        for _ in range(n):
            if B2L: a(B2L.pop(0))
    def misc_addr():
        a(f"""s_and_b32 s53, s2, 15
        s_lshl_b32 s53, s53, 4
        s_bfe_u32 s22, s2, 0x20004
        s_lshl2_add_u32 s53, s22, s53
        s_lshr_b32 s22, s2, 6
        s_add_u32 s53, s53, s22
        s_lshl_b32 s53, s53, 6
        v_lshlrev_b32 v12, 7, v0
        v_add_u32 v250, {F0_OFF}, v12
        v_mov_b32 v207, 4
        s_getreg_b32 s23, hwreg(HW_REG_XCC_ID)
        s_and_b32 s23, s23, 15
        s_cmp_eq_u32 s23, {'s48' if not FORCESLOW else '15'}
        s_cselect_b32 s23, 1, 0x10001
        v_mov_b32 v108, s23
        v_and_b32 v199, 3, v2
        v_lshlrev_b32 v199, 8, v199
        v_and_b32 v198, 12, v2
        v_add_u32 v198, v198, v3
        v_lshl_add_u32 v199, v198, 4, v199
        v_lshlrev_b32 v248, 2, v0
        v_mov_b32 v206, 0
        s_lshl_b32 s22, s51, 11
        s_add_u32 s22, s22, s60
        s_add_u32 s22, s22, {O_OFF}
        v_add_u32 v202, s22, v12
        s_lshl_b32 s22, s50, 7
        s_add_u32 s22, s22, {F0_OFF + OF_OFF}
        v_writelane_b32 v202, s22, 16
        v_mov_b32 v249, v12
        s_lshl_b32 s21, s58, 14
        s_lshl_b32 s22, s55, 7
        s_add_u32 s21, s21, s22
        s_cmp_eq_u32 s58, 0
        s_cselect_b32 s17, 0, 0x40000000""")
    def wo_dma(poss):
        for pos in poss:
            a(f"""s_add_u32 s5, s57, {(pos+2) & 7}
            s_and_b32 s5, s5, 7
            s_lshl_b32 s5, s5, 16
            s_add_u32 m0, s62, {XB + 16384 + pos*8192}
            s_add_u32 s5, s5, s21
            buffer_load_dwordx4 v4, s[36:39], s5 offen lds
            s_add_u32 s5, s5, 3072
            buffer_load_dwordx4 v4, s[36:39], s5 offen offset:1024 lds""")
    def opf():
        if MAP == 48: a(f"s_mov_b64 exec, 0x1ffff\nbuffer_load_dword v203, v202, {WS}, 0 offen {PFL.replace('_', ' ')}\ns_mov_b64 exec, -1"); seq.append("p")
    def wlp():
        a(f"""s_mov_b64 s[28:29], s[0:1]
        s_mov_b64 s[44:45], s[70:71]
        s_mov_b32 s30, {2048*514}
        s_mov_b32 s46, {2048*514}
        s_mov_b64 exec, 0x1f1f
        buffer_load_ushort v195, v105, s[28:31], 0 offen
        buffer_load_ushort v194, v105, s[44:47], 0 offen
        s_mov_b64 exec, -1"""); seq.extend(["p"]*2)
    def younger(tag): return len(seq) - 1 - max(i for i, x in enumerate(seq) if x == tag)
    misc_addr()
    def mall_warm():
        a(f"""s_lshl2_add_u32 s22, s2, s58
        s_lshl_b32 s23, s22, 9
        s_lshr_b32 s5, s22, 1
        s_mulk_i32 s5, 3072
        s_and_b32 s22, s23, 512
        s_add_u32 s5, s5, s22
        s_mov_b64 exec, 15
        buffer_load_dword v198, v12, s[36:39], s23 offen
        {"buffer_load_dword v197, v12, s[32:35], s5 offen" if MWQ else ""}
        s_mov_b64 exec, -1"""); seq.extend(["m"]*(1+MWQ))
    def special():
        a(f"""s_cmp_eq_u32 s58, 0
        s_cbranch_scc0 L_NOSP2
        s_waitcnt vmcnt({12 if SIG1 == 2 else 63})
        s_lshl_b32 s14, s56, 11
        s_lshl_b32 s22, s69, 8
        s_add_u32 s14, s14, s22
        s_add_u32 s14, s14, {WP_OFF}
        s_lshl_b32 s15, s75, 19
        s_lshr_b32 s22, s59, 14
        s_add_u32 s15, s15, s22
        s_add_u32 s15, s15, s14
        s_lshr_b32 s22, s59, 24
        s_sub_u32 s14, s14, s22
        s_add_u32 s14, s14, {128*16384 + 128}
        s_cmp_eq_u32 s75, 0
        s_cselect_b32 s22, 0, 1.0
        v_lshl_or_b32 v{SPC+4}, v107, 16, v106
        v_lshlrev_b32 v{SPC}, 16, v{SPC}
        v_lshlrev_b32 v{SPC+1}, 16, v{SPC+1}
        v_lshlrev_b32 v106, 16, v106
        v_lshlrev_b32 v107, 16, v107
        v_fma_f32 v{SPC}, v106, s22, v{SPC}
        v_fma_f32 v{SPC+1}, -v107, s22, v{SPC+1}
        v_mul_f32 v{SPC}, 0.5, v{SPC}
        v_mul_f32 v{SPC+1}, 0.5, v{SPC+1}
        v_cvt_pk_bf16_f32 v{SPC}, v{SPC}, v{SPC+1}
        v_xor_b32 v{SPC+4}, s59, v{SPC+4}
        v_xor_b32 v{SPC}, s59, v{SPC}
        s_mov_b32 exec_hi, 0
        buffer_store_dword v{SPC}, v101, {WS}, s15 offen sc1
        s_cbranch_scc0 L_NOSP3
        buffer_store_dword v{SPC+4}, v101, {WS}, s14 offen sc1
        L_NOSP3:
        s_mov_b32 exec_hi, -1
        L_NOSP2:""")
    a("v_lshlrev_b32 v101, 2, v2\nv_lshl_add_u32 v101, v3, 10, v101")
    if WLP >= 0:
        a("""s_sub_u32 s22, 12, s48
        s_cmp_gt_u32 s48, 4
        s_cselect_b32 s22, s22, s48
        s_lshl2_add_u32 s23, s49, s58
        s_lshl4_add_u32 s22, s23, s22
        v_and_b32 v104, 8, v0
        v_add_u32 v104, s22, v104
        v_mul_u32_u24 v104, 514, v104
        v_and_b32 v105, 7, v0
        v_lshl_add_u32 v105, v105, 7, v104""")
    st.mark("lw")
    issue1(a, 2); seq += ["F2"]*6
    if F3E: issue1(a, 3); seq += ["F3"]*6
    if QPF:
        a("""s_and_b32 s22, s49, 3
        s_lshl2_add_u32 s22, s22, s58
        s_lshl_b32 s22, s22, 5
        v_add_u32 v110, s22, v0
        v_mul_u32_u24 v110, 3072, v110
        s_lshl_b32 s22, s51, 7
        s_mov_b32 exec_hi, 0
        buffer_load_dword v111, v110, s[32:35], s22 offen
        s_mov_b32 exec_hi, -1"""); seq.append("p")
    if B2POS == 0: b2_consts()
    st.mark("lconst")
    for c in range(8):
        n = younger(f"F{c}")
        if c == SIG1: n = min(n, younger("g"))
        a(f"s_waitcnt vmcnt({n})")
        if c == SIG1: a(f"s_cmp_eq_u32 s58, 0\ns_cbranch_scc0 L_GOD\ns_mov_b64 exec, 3\nL_GO:\nv_cmp_gt_u32 vcc, {nclr()//2}, v204\ns_cbranch_vccnz L_GORE\ns_mov_b64 exec, -1\nL_GOD:")
        if c == 7:
            a(f"""s_cmp_eq_u32 s58, 1
            s_cbranch_scc0 L_NOTK
            v_readfirstlane_b32 s22, v108
            s_and_b32 s22, s22, 0xffff
            s_and_b32 s23, s2, 15
            s_lshl4_add_u32 s22, s22, s23
            v_mov_b32 v108, s22
            s_barrier
            ds_write_b32 v254, v108 offset:{4*K_TASK}
            s_mov_b64 exec, 1
            ds_add_u32 v254, v207 offset:{4*K_TK}
            s_mov_b64 exec, -1
            s_branch L_TKD
            L_NOTK:
            s_barrier
            L_TKD:""")
        else: a("s_barrier")
        st.mark(f"lf{c}")
        if c == SIG1:
            a(f"""s_cmp_eq_u32 s58, 1
            s_cbranch_scc0 L_NOSG
            s_mov_b64 exec, 1
            buffer_atomic_add v108, v206, {WS}, s19 offen sc0 sc1
            s_mov_b64 exec, -1
            L_NOSG:""")
        if c == (1 if SIG1 == 4 else 0): special()
        if c == GPOS: a("s_mov_b64 exec, 3\nbuffer_load_dword v204, v249, s[44:47], s17 offen sc1\ns_mov_b64 exec, -1"); seq += ["g"]
        if F3E <= c < 5: issue1(a, c+3); seq += [f"F{c+3}"]*6
        if c == 5: a("s_sub_u32 s61, s61, 1024")
        if 5 <= c < 7: issue2(a, c-5); seq += [f"F{c+3}"]*4
        if c == OPF and c < 7: opf()
        if c == WLP: wlp()
        if c == W67E: wo_dma((6, 7)); seq += ["p"]*4
        if B2E == 1 and 2 <= c <= 6: b2_consts(27 if c < 6 else 1000)
        if B2E == 2 and c == 7: b2_consts()
    def arrive(k):
        a(f"s_waitcnt vmcnt({younger('F%d' % k)})"); lds_signal(a, k); st.mark(f"la{k}")
    def h1(): a(f"s_mov_b64 exec, 0xffff\nbuffer_load_dword v205, v250, {WS}, s17 offen sc1\ns_mov_b64 exec, -1"); seq.append("h")
    def late_pf():
        if W67E: pass
        elif W67 and RCL:
            a("s_cmp_lt_u32 s13, 288\ns_cbranch_scc1 L_R67" if not (TFIRST or TEX) else "s_cmp_lt_u32 s56, 201\ns_cbranch_scc1 L_R67")
            wo_dma((6, 7)); seq.extend(["p"]*4)
            a("L_R68:")
        elif W67: wo_dma((6, 7)); seq.extend(["p"]*4)
        if OPF == 9: opf()
    def reducer():
        R0 = 160
        a("s_cmp_lt_u32 s13, 288\ns_cbranch_scc0 L_NORED\ns_mov_b32 s12, %d\nL_RED:\ns_mov_b32 s22, s8" % RD1)
        for t in range(8):
            a(f"buffer_load_dword v{R0+t}, v193, {WS}, s22 offen sc1")
            if t < 7: a("s_add_u32 s22, s22, s9")
        a("s_waitcnt vmcnt(0)")
        if RD1:
            a(f"""s_sub_u32 s12, s12, 1
            s_cmp_eq_u32 s12, 0
            s_cbranch_scc0 L_RDS
            s_mov_b64 exec, 1
            ds_add_u32 v254, v255 offset:{4*K_RD}
            s_mov_b64 exec, -1
            L_RDS:""")
        a(f"""v_max3_u32 v1, v{R0}, v{R0+1}, v{R0+2}
        v_max3_u32 v{R0+8}, v{R0+3}, v{R0+4}, v{R0+5}
        v_max3_u32 v1, v1, v{R0+6}, v{R0+7}
        v_max_u32 v1, v1, v{R0+8}
        v_cmp_eq_u32 vcc, -1, v1
        s_cbranch_vccnz L_REDRE""")
        for t in range(8): a(f"v_lshlrev_b32 v{R0+8+2*t}, 16, v{R0+t}\nv_and_b32 v{R0+9+2*t}, s11, v{R0+t}")
        for st_ in (8, 4, 2):
            for t in range(0, st_, 2): a(f"v_pk_add_f32 {d(R0+8+t)}, {d(R0+8+t)}, {d(R0+8+t+st_)}")
        for sw in ("32", "16"):
            a(f"""v_mov_b32 v{R0+10}, v{R0+8}
            v_mov_b32 v{R0+11}, v{R0+9}
            v_permlane{sw}_swap_b32 v{R0+8}, v{R0+10}
            v_permlane{sw}_swap_b32 v{R0+9}, v{R0+11}
            v_pk_add_f32 {d(R0+8)}, {d(R0+8)}, {d(R0+10)}""")
        a(f"""v_cvt_pk_bf16_f32 v{R0+8}, v{R0+8}, v{R0+9}
        v_cndmask_b32 v{R0+8}, v{R0+9}, v{R0+8}, s[14:15]
        v_min_u32 v{R0+8}, -2, v{R0+8}
        s_mov_b64 exec, 0xffff
        buffer_store_dword v{R0+8}, v193, {WS}, s10 offen sc1
        s_mov_b64 exec, 1
        {"s_cmp_gt_i32 s12, 0" if RD1 else ""}
        {"s_cbranch_scc0 L_RDT" if RD1 else ""}
        ds_add_u32 v254, v255 offset:{4*K_RD}
        L_RDT:
        s_mov_b64 exec, -1
        L_NORED:""")
        st.mark("lred")
    def wloads(i):
        for j in range(4):
            a(f"buffer_load_short_d16_hi v{16+8*j+i}, v197, s[28:31], s68 offen\nbuffer_load_short_d16_hi v{20+8*j+i}, v197, s[44:47], s68 offen")
            if (i, j) != (3, 3): a(f"s_add_u32 s68, s68, {'s67' if j < 3 else 's69'}")
        seq.extend(["w"]*8)
    def run(sched, P):
        for x in sched.split("."):
            if x == "F10": issue2(a, 2); seq.extend(["F10"]*4)
            elif x == "F11": lds_wait(a, K_C7, f"L_C7{P}", LSLP); issue2(a, 3); seq.extend(["F11"]*4)
            elif x == "o": opf()
            elif x == "67": wo_dma((6, 7)); seq.extend(["67"]*4)
            elif x == "s67": a(f"s_waitcnt vmcnt({younger('67')})"); lds_signal(a, K_W67)
            elif x[0] == "a":
                arrive(int(x[1:]))
                if x == "a11": st.mark("lq3")
            elif x[0] == "W": wloads(int(x[1]))
            elif x == "h": h1()
            elif x == "P": a(f"s_setprio {LPRIO}")
            elif x[0] == "c": b2_consts(int(x[1:] or 1000))
            elif x == "R": lds_signal(a, K_RD); st.mark("lti")
            elif x == "D": reducer()
            elif x == "A" and P == "B":
                for r in range(16, 48, 2): a(f"v_pk_mul_f32 {d(r)}, {d(254)}, 0")
                a(f"""s_mov_b64 s[28:29], s[0:1]
            s_mov_b64 s[44:45], s[70:71]
            s_mov_b32 s30, {2048*514}
            s_mov_b32 s46, {2048*514}
            {DEC1 if XCL else DEC0}
            s_cmp_ge_u32 s22, 256
            s_cselect_b32 s69, 4, 0
            s_cselect_b32 s59, 0x80000000, 0
            s_cselect_b64 vcc, -1, 0
            s_cselect_b32 s68, {408*514}, 0
            s_movk_i32 s67, {8*514}
            s_cmovk_i32 s67, {-8*514}
            s_cmp_eq_u32 s23, 0
            s_cselect_b32 s23, s69, s23
            s_lshl_b32 s69, s58, 5
            s_add_u32 s69, s69, s23
            v_lshlrev_b32 v100, 9, v3
            v_add_u32 v100, s69, v100
            v_add_u32 v101, s22, v2
            v_sub_u32 v102, 1640, v100
            v_sub_u32 v103, 0x200, v101
            v_cndmask_b32 v100, v100, v102, vcc
            v_cndmask_b32 v101, v101, v103, vcc
            v_mul_u32_u24 v100, 514, v100
            v_lshl_add_u32 v197, v101, 1, v100
            s_and_b32 s22, s22, 0xff
            s_cmp_eq_u32 s22, 0
            s_cselect_b32 s75, {WP_OFF}, 2.0
            s_cselect_b32 s6, 0x10001, 0
            s_cmp_eq_u32 s56, 128
            s_cselect_b32 s6, -1, s6
            s_cselect_b32 s68, 2.0, s68
                s_mul_i32 s69, s67, 13
                s_lshl_b32 s20, s4, 14
                s_add_u32 s20, s20, s64""")
            elif x == "A": a(f"""s_sub_u32 s13, s56, 129
    s_lshl2_add_u32 s13, s13, s58
    s_mul_i32 s22, s13, 7282
    s_lshr_b32 s22, s22, 16
    s_mul_i32 s23, s22, 9
    s_sub_u32 s23, s13, s23
    s_lshl_b32 s8, s22, 14
    s_lshl_b32 s9, s23, 6
    s_add_u32 s8, s8, s9
    s_add_u32 s8, s8, {KVP_OFF}
    s_lshl_b32 s9, s22, 11
    s_lshl_b32 s10, s23, 7
    s_add_u32 s10, s10, s9
    s_add_u32 s10, s10, {KVF_OFF}
    s_add_u32 s9, s9, {ZP_OFF}
    s_cmp_lt_u32 s23, 8
    s_cselect_b32 s8, s8, s9
    s_cselect_b32 s11, 0xffff0000, -1
    s_cselect_b32 s12, 9, 6
    s_cselect_b64 s[14:15], -1, 0
    s_lshl_b32 s9, 4, s12
    v_lshlrev_b32 v193, s12, v3
    v_lshl_add_u32 v193, v2, 2, v193""")
            elif x == "H":
                a(f"""s_cmp_eq_u32 s58, 0
                s_cbranch_scc0 L_H1OK{P}
                s_waitcnt vmcnt({younger('h')})
                s_mov_b64 exec, 0xffff
                L_H1{P}:
                v_and_b32 v1, 0xffff, v205
                v_cmp_ne_u32 vcc, 16, v1
                s_cbranch_vccnz L_H1RE{P}
                v_cmp_ne_u32 vcc, 16, v205
                v_mov_b32 v1, vcc_lo
                s_mov_b64 exec, 1
                ds_write_b32 v254, v1 offset:{4*K_MODE}
                ds_add_u32 v254, v207 offset:{4*K_H1}
                s_mov_b64 exec, -1
                L_H1OK{P}:""")
            elif x == "T":
                lds_wait(a, K_G0, "L_G0W", LSLP)
                lds_wait(a, K_H1, "L_H1W", 0)
                st.mark("lh1")
                a("s_mov_b32 m0, s64\ns_nop 0")
                for j in range(4): a(f"buffer_load_dwordx4 v7, {WS}, s20 offen offset:{j*1024} {TFL} lds"); seq.append(f"T{j}")
                a(f"s_add_u32 s23, s20, s75")
                for j in range(4): a(f"buffer_load_dwordx4 {q(WPK+4*j)}, v7, {WS}, s23 offen offset:{j*1024} {TFL}")
                seq.extend(["w"]*4)
            else: raise ValueError(x)
    lds_wait(a, K_TK, "L_TKW")
    a(f"""ds_read_b32 v1, v254 offset:{4*K_TASK}
    s_waitcnt lgkmcnt(0)
    v_readfirstlane_b32 s56, v1
    s_cmp_gt_u32 s56, 128
    s_cbranch_scc0 L_B2P""")
    sv = list(seq)
    run(SN, "N")
    a("s_branch L_NOB2\nL_B2P:")
    seq[:] = sv
    SBp = SB.split("/") + ["", ""]
    run(SBp[0], "B")
    st.mark("lc2")
    def b3blk():
        a(f"""s_setprio 0
        s_lshl_b32 s61, s58, 19
        s_add_u32 s61, s61, s53
        s_add_u32 s68, s61, 0x40000
        s_add_u32 s63, s53, {128*16384}
        v_lshrrev_b32 v249, 2, v0
        v_lshlrev_b32 v249, 14, v249
        v_and_b32 v250, 3, v0
        v_lshl_add_u32 v249, v250, 4, v249
        v_add_u32 v250, s62, v7
        v_add_u32 v250, {EB}, v250""")
        b3_consts()
        a("""s_lshl_b32 s65, s67, 11
        s_add_u32 s65, s65, 1024
        s_add_u32 s66, s65, 0x80000""")
        st.mark("lb3c")
        a(f"v_add_u32 v10, {EB}, v10")
    def spec_wait(k, lbl, reads, n):
        if not SPEC:
            lds_wait(a, k, lbl); reads(); return
        a(f"{lbl}:\nds_read_b32 v253, v254 offset:{4*k}")
        reads()
        a(f"""s_sub_u32 s74, s74, 1
        s_cbranch_scc1 L_END
        s_waitcnt lgkmcnt({n})
        v_cmp_ne_u32 vcc, 4, v253
        s_cbranch_vccnz {lbl}R""")
        RETRY.append(lbl)
    def exchange(vw, vr, k, lbl):
        for j in range(4):
            for i in range(4): a(f"v_cvt_pk_bf16_f32 v{PK+4*i+j}, v{AC+j*8+i}, v{AC+j*8+4+i}")
        for i in range(4):
            if k == K_E1 and i == 3: a("s_mov_b32 exec_hi, s16")
            a(f"ds_write_b128 {vw}, {q(PK+4*i)} offset:{i*1024 + (16384 if TD and k == K_E2 else 0)}")
        if SAFE: a("s_waitcnt lgkmcnt(0)")
        lds_signal(a, k)
        st.mark("e1w" if k == K_E1 else "e2w")
        if k == K_E1:
            for r in range(4): a(f"v_mov_b32 v{OP+12+r}, v{PK+12+r}")
        if k == K_E1 and SBp[1]: run(SBp[1], "B")
        if k == K_E1: st.mark("e1u")
        def rd():
            for j in range(4):
                if k == K_E1 and j == 3: a("s_mov_b32 exec_hi, s16")
                a(f"ds_read_b128 {q(OP+4*j)}, {vr} offset:{j*1024 + (16384 if TD and k == K_E2 else 0)}")
            if k == K_E1: a("s_mov_b32 exec_hi, -1")
        spec_wait(k, lbl, rd, 4)
    def stage_w(consts):
        for j in range(4):
            a(f"s_waitcnt lgkmcnt({3-j})")
            for c in range(2): a(f"{MF} {q(AC+(j*2+c)*4)}, {q(consts(j)+4*c)}, {q(OP+4*j)}, 0")
    if TD:
        a("v_add_u32 v198, s64, v248")
        for j in range(4):
            a(f"s_waitcnt vmcnt({younger('T%d' % j)})")
            if j == 3: a("s_waitcnt lgkmcnt(8)")
            for r in range(4): a(f"ds_read_b32 v{OP+j*4+r}, v198 offset:{j*1024+r*256}")
    for j in range(4):
        if TD: a(f"s_waitcnt lgkmcnt({12-4*j})")
        for c in range(2): a(f"{MF} {q(AC+(j*2+c)*4)}, {q(CA+8*j+4*c)}, {q(OP+4*j)}, 0")
    st.mark("lt")
    exchange("v251", "v252", K_E1, "L_E1")
    st.mark("b2x1")
    stage_w(lambda j: CB)
    a(f"s_waitcnt vmcnt({younger('w')})")
    st.mark("lwl")
    for kk in range(16): a(f"v_xor_b32 v{20+(kk>>2)*8+(kk&3)}, s59, v{20+(kk>>2)*8+(kk&3)}")
    a("s_cmp_eq_u32 s6, 0\ns_cbranch_scc1 L_NOOV\ns_mov_b32 exec_lo, s6\ns_mov_b32 exec_hi, s6")
    for kk in range(16): a(f"v_lshlrev_b32 v{16+(kk>>2)*8+(kk&3)}, 16, v{WPK+kk}\nv_and_b32 v{20+(kk>>2)*8+(kk&3)}, s7, v{WPK+kk}")
    a("s_mov_b64 exec, -1\nL_NOOV:")
    for j in range(4):
        xr = AC + j*8; xi = xr + 4; t = T0 + (j & 1)*8; wr = WRI + (j & 1)*8; wi = wr + 4
        if PREU: wr = 16 + 8*j; wi = wr + 4
        else:
            for i in range(4): a(f"v_lshlrev_b32 v{wr+i}, 16, v{WPK+4*j+i}\nv_and_b32 v{wi+i}, 0xffff0000, v{WPK+4*j+i}")
        for h in (0, 2):
            a(f"v_pk_mul_f32 {d(t+h)}, {d(xr+h)}, {d(wr+h)}")
            a(f"v_pk_mul_f32 {d(t+4+h)}, {d(xi+h)}, {d(wr+h)}")
        for h in (0, 2):
            a(f"v_pk_fma_f32 {d(t+h)}, {d(xi+h)}, {d(wi+h)}, {d(t+h)} neg_lo:[1,0,0] neg_hi:[1,0,0]")
            a(f"v_pk_fma_f32 {d(t+4+h)}, {d(xr+h)}, {d(wi+h)}, {d(t+4+h)}")
        for i in range(4): a(f"v_cvt_pk_bf16_f32 v{OP+4*j+i}, v{t+i}, -v{t+4+i}")
        if j > 0:
            for c in range(2): a(f"{MF} {q(AC+((j-1)*2+c)*4)}, {q(CA+8*(j-1)+4*c)}, {q(OP+4*(j-1))}, 0")
    for c in range(2): a(f"{MF} {q(AC+(6+c)*4)}, {q(CA+24+4*c)}, {q(OP+12)}, 0")
    st.mark("fl")
    if SBp[2]: run(SBp[2], "B")
    lds_wait(a, K_G1, "L_XW")
    exchange("v200", "v201", K_E2, "L_E2")
    st.mark("b2x2")
    if U4:
        for j in range(4):
            a(f"s_waitcnt lgkmcnt({3-j})")
            for c in range(2): a(f"{MF} {q(AC+(j*2+c)*4)}, {q(OP+4*j)}, {q(CB+4*c)}, 0")
        for j in range(4):
            for i in range(4): a(f"v_cvt_pk_bf16_f32 v{PK+j*4+i}, v{AC+j*8+i}, -v{AC+j*8+4+i}")
            a(f"v_or_b32 v{PK+j*4}, 1, v{PK+j*4}")
            a(f"buffer_store_dwordx4 {q(PK+j*4)}, v199, {WS}, s20 offen offset:{j*1024} sc1")
    else: stage_w(lambda j: CB)
    for j in range(0 if U4 else 4):
        for i in range(4):
            a(f"v_cvt_pk_bf16_f32 v{PK+j*4+i}, v{AC+j*8+i}, -v{AC+j*8+4+i}")
            a(f"v_or_b32 v{PK+j*4+i}, 1, v{PK+j*4+i}")
            a(f"buffer_store_dword v{PK+j*4+i}, v248, {WS}, s20 offen offset:{j*1024+i*256} sc1")
    st.mark("lb2")
    a("L_NOB2:")
    if B2POS == 1: b3blk()
    a(f"s_setprio {UPRIO}")
    if UGATE == 1: lds_wait(a, K_OI, "L_H2G", GSLP)
    if UGATE >= 2: lds_wait(a, K_CO, "L_H2G", 1 if UGATE == 2 else 0)
    st.mark("lul")
    UCHK1 = f"""v_and_b32 v1, v{AC1}, v{AC1+1}
    v_and_b32 v12, v{AC1+2}, v{AC1+3}
    s_waitcnt vmcnt(2)
    ds_write_b128 v250, {q(AC1+4)} offset:1024
    v_and_b32 v1, v1, v{AC1+4}
    v_and_b32 v12, v12, v{AC1+5}
    v_and_b32 v1, v1, v{AC1+6}
    v_and_b32 v12, v12, v{AC1+7}
    s_waitcnt vmcnt(0)
    v_and_b32 v1, v1, v8
    v_and_b32 v12, v12, v9
    v_and_b32 v1, v1, v12"""
    UCHK4 = f"""s_waitcnt vmcnt(2)
    ds_write_b128 v250, {q(AC1+4)} offset:1024
    v_and_b32 v1, v{AC1}, v{AC1+4}
    s_waitcnt vmcnt(0)
    v_and_b32 v1, v1, v8
    v_and_b32 v1, v1, v9"""
    a(f"""L_UL:
    buffer_load_dwordx4 {q(AC1)}, v249, {WS}, s61 offen sc1
    buffer_load_dwordx4 {q(AC1+4)}, v249, {WS}, s68 offen sc1
    buffer_load_dword v9, v15, {WS}, s63 offen sc1
    buffer_load_dword v8, v15, {WS}, s63 offen offset:32 sc1
    s_waitcnt vmcnt(3)
    ds_write_b128 v250, {q(AC1)}
    {UCHK4 if U4 else UCHK1}
    v_and_b32 v1, 1, v1
    v_cmp_eq_u32 vcc, 0, v1
    s_cbranch_vccnz L_URE""")
    st.mark("lua")
    if SAFE: a("s_waitcnt lgkmcnt(0)")
    lds_signal(a, K_U)
    def rdu():
        for v in range(4):
            for t in range(2): a(f"ds_read_b128 {q(DAT+(v*2+t)*4)}, v10 offset:{t*4096+v*256}")
    spec_wait(K_U, "L_UW", rdu, 8)
    ini = f"""v_lshlrev_b32 v8, 16, v8
    v_and_b32 v12, 0xffff0000, v9
    v_lshlrev_b32 v9, 16, v9
    v_mul_f32 v8, {fhex(2.0**-20)}, v8
    v_mul_f32 v9, v9, v13
    v_fma_f32 v9, -v12, v14, v9
    v_add_f32 v{INI}, v9, v8
    v_sub_f32 v{INI+1}, v9, v8
    v_add_f32 v{INI+2}, v9, v8
    v_sub_f32 v{INI+3}, v9, v8
    v_sub_f32 v{INI+4}, v8, v9
    v_sub_f32 v{INI+5}, -v9, v8
    v_sub_f32 v{INI+6}, v8, v9
    v_sub_f32 v{INI+7}, -v9, v8""".split("\n")
    cv = lambda v: [f"v_cvt_pk_bf16_f32 v{OP2+i*4+v}, v{AC1+v*8+i}, v{AC1+v*8+4+i}" for i in range(4)]
    fillq = ini[:8]
    for v in range(4):
        if v >= 2: fillq += cv(v-2)
        for t in range(2):
            b = DAT + (v*2+t)*4
            a(f"s_waitcnt lgkmcnt({7-(v*2+t)})")
            cs = C1 + (16 if t else 8*(v >> 1))
            for c in range(2):
                acc = AC1 + (v*2+c)*4
                a(f"{MF} {q(acc)}, {q(b)}, {q(cs+4*c)}, {q(acc) if t else 0}")
                if fillq and B3A: a(fillq.pop(0))
    st.mark("luok")
    for x in fillq + cv(2) + ini[8:] + cv(3): a(x)
    for i in range(4):
        for c in range(2): a(f"{MF} {q(AC2+(i*2+c)*4)}, {q(OP2+i*4)}, {q(C2+4*c)}, 0")
    def s3(kap): return [f"{MF} {q(AC3+(rho*2+th)*4)}, {q(OP3+(rho*2+kap)*4)}, {q(C3+kap*8+th*4)}, {q(AC3+(rho*2+th)*4) if kap else q(INI+4*rho)}" for rho in range(2) for th in range(2)]
    for i in range(4):
        xr = AC2 + i*8; xi = xr + 4; t0 = TMP + (i & 1)*8
        M3 = s3(0)[2*(i-2):2*(i-2)+2] if i >= 2 and B3B else []
        for ph in range(2):
            sel = "op_sel:[0,1] op_sel_hi:[1,1]" if ph else "op_sel_hi:[1,0]"
            a(f"v_pk_mul_f32 {d(t0+2*ph)}, {d(xr+2*ph)}, {d(TWC+2*i)} {sel}")
            a(f"v_pk_mul_f32 {d(t0+4+2*ph)}, {d(xi+2*ph)}, {d(TWC+2*i)} {sel}")
        if M3: a(M3[0])
        for ph in range(2):
            sel = "op_sel:[0,1,0] op_sel_hi:[1,1,1]" if ph else "op_sel_hi:[1,0,1]"
            a(f"v_pk_fma_f32 {d(t0+2*ph)}, {d(xi+2*ph)}, {d(TWS+2*i)}, {d(t0+2*ph)} {sel} neg_lo:[1,0,0] neg_hi:[1,0,0]")
            a(f"v_pk_fma_f32 {d(t0+4+2*ph)}, {d(xr+2*ph)}, {d(TWS+2*i)}, {d(t0+4+2*ph)} {sel}")
        if M3: a(M3[1])
        for rho in range(2):
            for ph in range(2):
                a(f"v_cvt_pk_bf16_f32 v{OP3+(rho*2+(i>>1))*4+(i&1)*2+ph}, v{t0+2*ph+rho}, v{t0+4+2*ph+rho}")
    for m in ([] if B3B else s3(0)) + s3(1): a(m)
    for rho in range(2):
        for th in range(2):
            acc = AC3 + (rho*2+th)*4; o = OUT + (rho*2+th)*2
            a(f"v_cvt_pk_bf16_f32 v{o}, v{acc}, v{acc+1}\nv_cvt_pk_bf16_f32 v{o+1}, v{acc+2}, v{acc+3}")
            a(f"buffer_store_dwordx2 {d(o)}, v11, s[40:43], s{65+rho} offen offset:{th*512} {YFL.replace('_', ' ')}")
    st.mark("lend")
    if DLE: a(f"s_sleep {DLE}")
    st.dump()
    a("s_endpgm")

def c_main(a, st):
    C1, C2, TWC, TWS, C3A, C3B, DAT, AC1, OP2, AC2 = 16, 48, 64, 80, 96, 104, 112, 144, 160, 168
    OP3, TMP, AC3, ACE, OUT, MSK = 112, 128, 144, 160, 200, 228
    a(f"C_MAIN:\ns_setprio {CPRIO}")
    common_setup(a, st, -1)
    if PT:
        a(f"""s_cmp_eq_u32 s3, 1
        s_cbranch_scc0 C_NOPT
        v_lshlrev_b32 v247, {PT}, v0
        s_lshl_b32 s22, s49, 7
        buffer_load_dword v245, v247, {WS}, s22 offen
        buffer_load_dword v246, v247, s[40:43], s22 offen
        s_load_dword s70, s[8:9], 0
        C_NOPT:""")
    a(f"""s_lshl_b32 s60, s3, 8
    s_mul_i32 s61, s2, s3
    s_add_u32 s59, s61, 512
    s_cmp_eq_u32 s3, 0
    s_cselect_b32 s62, 1024, s60
    s_cselect_b32 s59, 0, s59
    s_cselect_b32 s58, s2, 0
    s_cselect_b32 s65, 0, 0xbe800000
    s_cselect_b64 s[66:67], -1, 0
    v_and_b32 v14, 1, v0
    v_cmp_eq_u32 vcc, 1, v14
    v_mov_b32 v4, 0xffff
    v_mov_b32 v5, 0xffff0000
    v_cndmask_b32 v14, v4, v5, vcc""")
    for r in range(4): a(f"v_cmp_eq_u32 vcc, {r}, v15\nv_cndmask_b32 v{MSK+r}, 0, v14, vcc")
    a(f"""v_lshrrev_b32 v10, 5, v0
    v_mov_b32 v11, s61
    v_mov_b32 v12, s59
    v_mad_u32_u24 v11, v10, s60, v11
    v_mad_u32_u24 v12, v10, s62, v12
    v_cvt_f32_u32 v11, v11
    v_cvt_f32_u32 v12, v12
    v_cvt_f32_u32 v13, s60
    v_cvt_f32_u32 v14, s62
    v_mul_f32 v11, {fhex(1/2048)}, v11
    v_mul_f32 v12, {fhex(1/2048)}, v12
    v_mul_f32 v13, {fhex(2/2048)}, v13
    v_mul_f32 v14, {fhex(2/2048)}, v14""")
    for t in range(4):
        for c in range(2):
            b = C1 + (t*2 + c)*4
            a(f"v_cos_f32 v{b+3}, v{11+c}")
            if t < 3: a(f"v_add_f32 v{11+c}, v{11+c}, v{13+c}")
            a(f"v_cvt_pk_bf16_f32 v{b+3}, v{b+3}, v{b+3}")
            for r in range(4): a(f"v_and_b32 v{b+r}, v{b+3}, v{MSK+r}")
    a(f"v_mul_f32 v10, {fhex(1/32)}, v8\nv_mul_f32 v11, 4.0, v9\nv_mul_f32 v12, v11, v10")
    for i in range(4):
        a(f"v_cos_f32 v{TMP+i}, v12\nv_sin_f32 v{TMP+4+i}, v12")
        if i < 3: a("v_add_f32 v12, v12, v10")
    a("v_lshlrev_b32 v13, 31, v0\nv_lshrrev_b32 v14, 16, v13\nv_or_b32 v13, v13, v14")
    a(f"""v_cvt_pk_bf16_f32 v{C2}, v{TMP}, v{TMP+1}
    v_cvt_pk_bf16_f32 v{C2+1}, v{TMP+2}, v{TMP+3}
    v_cvt_pk_bf16_f32 v{C2+4}, -v{TMP+4}, -v{TMP+5}
    v_cvt_pk_bf16_f32 v{C2+5}, -v{TMP+6}, -v{TMP+7}
    s_brev_b32 s68, 1""")
    for c in range(2):
        b = C2 + 4*c
        a(f"v_xor_b32 v{b+2}, v{b}, v13\nv_xor_b32 v{b+3}, v{b+1}, v13")
        for r in range(4): a(f"v_xor_b32 v{b+8+r}, s68, v{b+r}")
    f = Asm()
    CTM = 208
    f(f"v_cvt_f32_u32 v14, s58\nv_mul_f32 v14, {fhex(1/512)}, v14")
    for tau in range(2):
        f(f"v_mul_f32 v13, {fhex(1/512)}, v8")
        if tau: f(f"v_add_f32 v13, {fhex(16/512)}, v13")
        f("v_mul_f32 v12, v11, v13")
        for i in range(4):
            k0 = tau*4 + i; k1 = 8 + k0
            f(f"""v_cos_f32 v{TWC+k0}, v12
            v_sin_f32 v{TWS+k0}, v12
            v_add_f32 v15, v12, v14
            v_cos_f32 v{TWC+k1}, v15
            v_sin_f32 v{TWS+k1}, v15""")
            if i < 3: f("v_add_f32 v12, v12, v13")
    f("v_add_f32 v10, v10, v10\nv_mul_f32 v12, v11, v10")
    for i in range(4):
        f(f"""v_cos_f32 v{CTM}, v12
        v_sin_f32 v{CTM+1}, v12
        v_add_f32 v15, s65, v12
        v_cos_f32 v{CTM+2}, v15
        v_sin_f32 v{CTM+3}, v15""")
        if i < 3: f("v_add_f32 v12, v12, v10")
        f(f"""v_cvt_pk_bf16_f32 v{C3A+i}, v{CTM}, v{CTM+1}
        v_cvt_pk_bf16_f32 v{C3A+4+i}, -v{CTM+1}, v{CTM}
        v_cvt_pk_bf16_f32 v{C3B+i}, v{CTM+2}, v{CTM+3}
        v_cvt_pk_bf16_f32 v{C3B+4+i}, -v{CTM+3}, v{CTM+2}""")
    for r in range(8): f(f"v_and_b32 v{C3A+r}, v{C3A+r}, v212\nv_and_b32 v{C3B+r}, v{C3B+r}, v213")
    fill = list(f.lines)
    fill2 = f"""v_lshrrev_b32 v14, 5, v0
    v_lshlrev_b32 v11, 16, v3
    v_lshl_add_u32 v11, v2, 2, v11
    v_and_b32 v12, 6, v2
    v_xor_b32 v12, v12, v3
    v_lshlrev_b32 v12, 4, v12
    v_lshl_add_u32 v4, v2, 7, v12
    v_add_u32 v4, {XB}, v4
    v_xor_b32 v5, 64, v4
    v_bfe_u32 v12, v0, 2, 3
    v_bfe_u32 v13, v0, 1, 1
    v_and_b32 v15, 6, v12
    v_xor_b32 v13, v13, v15
    v_lshlrev_b32 v13, 4, v13
    v_lshl_add_u32 v13, v12, 7, v13
    v_and_b32 v15, 1, v0
    v_lshl_add_u32 v13, v15, 3, v13
    s_lshl_b32 s22, s3, 5
    v_xor_b32 v13, s22, v13
    v_lshl_add_u32 v6, v14, 12, v13
    v_lshl_add_u32 v8, v14, 11, v13
    s_and_b32 s60, s2, 15
    s_lshl_b32 s60, s60, 4
    s_bfe_u32 s61, s2, 0x20004
    s_lshl2_add_u32 s60, s61, s60
    s_lshr_b32 s61, s2, 6
    s_add_u32 s60, s60, s61
    s_lshl_b32 s60, s60, 6
    s_lshl_b32 s61, s3, 19
    s_add_u32 s61, s61, s60
    s_add_u32 s60, s60, {128*16384}
    v_lshlrev_b32 v241, 2, v2
    v_lshl_add_u32 v13, v14, 5, v241"""
    late = f"""v_lshlrev_b32 v9, 8, v14
    v_lshl_add_u32 v9, v2, 4, v9
    s_lshl2_add_u32 s53, s51, s3
    s_lshl_b32 s63, s53, 5
    s_add_u32 s63, s63, s50
    s_lshl_b32 s64, s63, 6
    s_add_u32 s64, s64, {ZP_OFF}
    s_lshl_b32 s63, s63, 9
    s_add_u32 s63, s63, {KVP_OFF}
    s_mov_b32 s22, 0x3f803f80
    v_mov_b32 v232, s22
    v_mov_b32 v233, s22
    v_mov_b32 v234, s22
    v_mov_b32 v235, s22
    s_mov_b32 s66, {fhex(1.4426950408889634)}
    s_mov_b32 s67, s66
    s_mov_b32 s65, {fhex(1e-6)}"""
    later = f"""s_mov_b64 s[36:37], s[8:9]
    s_mov_b32 s38, 0x80000
    s_mov_b32 s39, s31
    s_lshl_b32 s21, s3, 14
    s_lshl_b32 s22, s55, 7
    s_add_u32 s21, s21, s22
    v_lshrrev_b32 v242, 3, v0
    v_and_b32 v243, 7, v0
    v_and_b32 v230, 6, v242
    v_xor_b32 v243, v243, v230
    v_lshlrev_b32 v243, 4, v243
    v_and_b32 v230, 4, v242
    v_add_u32 v242, v242, v230
    v_lshl_add_u32 v242, v242, 10, v243
    v_lshlrev_b32 v243, 4, v3
    v_lshrrev_b32 v11, 2, v2
    v_lshl_add_u32 v11, v14, 2, v11
    v_lshlrev_b32 v11, 7, v11
    v_and_b32 v230, 3, v2
    v_lshl_add_u32 v11, v230, 4, v11
    v_and_b32 v230, 1, v3
    v_lshl_add_u32 v11, v230, 3, v11
    s_lshl_b32 s58, s53, 11
    s_add_u32 s58, s58, {KVF_OFF}"""
    def F(n):
        for _ in range(n):
            if fill: a(fill.pop(0))
    a(f"""v_cmp_gt_u32 vcc, 8, v2
    s_andn2_b64 s[22:23], s[66:67], vcc
    s_and_b64 s[66:67], s[66:67], vcc
    v_cndmask_b32 v212, -1, 0, s[22:23]
    v_cndmask_b32 v213, -1, 0, s[66:67]
    v_lshrrev_b32 v214, 5, v0
    v_lshlrev_b32 v214, 10, v214
    v_lshl_add_u32 v214, v2, 5, v214
    v_and_b32 v12, 16, v0
    v_add_u32 v214, v214, v12
    v_add_u32 v214, {BXB}, v214""")
    F(PRE)
    st.mark("cconst")
    a(f"""s_cmp_lt_u32 s52, {nclr()}
    s_cbranch_scc0 C_NOGO
    s_and_b32 s22, s52, 1
    s_lshl_b32 s22, s22, 7
    s_mov_b64 exec, 1
    s_waitcnt vmcnt(2)
    buffer_atomic_add v255, v7, s[44:47], s22 offen sc1
    s_mov_b64 exec, -1
    s_waitcnt vmcnt(1)
    s_branch C_BXOK
    C_NOGO:
    s_waitcnt vmcnt(0)
    C_BXOK:""")
    lds_signal(a, K_BX)
    F(12)
    lds_wait(a, K_BX, "C_BXW")
    st.mark("cbx")
    for u in range(2):
        for t in range(4): a(f"ds_read_b128 {q(DAT+(u*4+t)*4)}, v214 offset:{t*2048+u*512}")
    F(8)
    for u in range(2):
        for t in range(4):
            a(f"s_waitcnt lgkmcnt({7-(u*4+t)})")
            for c in range(2):
                acc = AC1 + (u*2+c)*4
                a(f"{MF} {q(acc)}, {q(DAT+(u*4+t)*4)}, {q(C1+(t*2+c)*4)}, {q(acc) if t else 0}")
                F(NF)
    F(6)
    for u in range(2):
        for rho in range(2):
            s = AC1 + (u*2+rho)*4
            a(f"v_cvt_pk_bf16_f32 v{OP2+rho*4+u*2}, v{s}, v{s+1}\nv_cvt_pk_bf16_f32 v{OP2+rho*4+u*2+1}, v{s+2}, v{s+3}")
    for rho in range(2):
        for tau in range(2):
            for c in range(2): a(f"{MF} {q(AC2+((rho*2+tau)*2+c)*4)}, {q(OP2+rho*4)}, {q(C2+(tau*2+c)*4)}, 0"); F(NF)
    F(1000)
    def st3(rho, tau):
        for c in range(2):
            acc = AC3 + (tau*2+c)*4
            a(f"{MF} {q(acc)}, {q((C3B if rho else C3A)+4*c)}, {q(OP3+(rho*2+tau)*4)}, {q(acc) if rho else 0}")
        if tau == 0:
            for c in range(2):
                acc = ACE + 4*c
                a(f"{MF} {q(acc)}, {q((C3A if rho else C3B)+4*c)}, {q(OP3+(rho*2)*4)}, {q(acc) if rho else 0}")
    prev = None
    for rho in range(2):
        for tau in range(2):
            xr = AC2 + ((rho*2+tau)*2)*4; xi = xr + 4; k = rho*8 + tau*4
            t0 = TMP + ((rho*2+tau) & 1)*8
            for h in (0, 2):
                a(f"v_pk_mul_f32 {d(t0+h)}, {d(xr+h)}, {d(TWC+k+h)}")
                a(f"v_pk_mul_f32 {d(t0+4+h)}, {d(xi+h)}, {d(TWC+k+h)}")
            if prev: st3(*prev)
            for h in (0, 2):
                a(f"v_pk_fma_f32 {d(t0+h)}, {d(xi+h)}, {d(TWS+k+h)}, {d(t0+h)}")
                a(f"v_pk_fma_f32 {d(t0+4+h)}, {d(xr+h)}, {d(TWS+k+h)}, {d(t0+4+h)} neg_lo:[1,0,0] neg_hi:[1,0,0]")
            for i in range(4): a(f"v_cvt_pk_bf16_f32 v{OP3+(rho*2+tau)*4+i}, v{t0+i}, v{t0+4+i}")
            prev = (rho, tau)
    st3(*prev)
    st.mark("cb1")
    a(fill2)
    for tau in range(2):
        for i in range(4): a(f"v_cvt_pk_bf16_f32 v{OUT+tau*4+i}, v{AC3+tau*8+i}, v{AC3+tau*8+4+i}")
    a(f"v_cvt_pk_bf16_f32 v215, v{ACE}, v{ACE+4}")
    for k in range(8): a(f"v_and_b32 v{OUT+k}, -2, v{OUT+k}")
    a("v_and_b32 v215, -2, v215")
    AK, AV, AQ = 144, 160, 112
    pos = [int(ch) for ch in str(TS).zfill(4)]
    a(f"s_mov_b32 s17, {pos[0] | pos[1] << 8 | pos[2] << 16 | pos[3] << 24}\ns_lshl_b32 s22, s3, 3\ns_lshr_b32 s17, s17, s22\ns_and_b32 s17, s17, 255")
    def thook(k, cond=None):
        if k in pos:
            a(f"s_cmp_eq_u32 s17, {k}\ns_cbranch_scc0 C_TN{k}\ns_mov_b32 s17, 99\ns_call_b64 s[70:71], C_TST\nC_TN{k}:")
    thook(0)
    st.mark("cst")
    SET = [0]
    XF = lambda ks, R: 16 + SET[0]*48 + (ks*4 + R)*4
    WF = lambda ks, p: 48 + SET[0]*48 + (ks*2 + p)*4
    def reads(ks):
        L = []
        o = SET[0]
        def w(p):
            for eta in range(2): L.append(f"ds_read_b64_tr_b16 {d(WF(ks,p)+2*eta)}, v6 offset:{o*16384 + (4*ks+eta)*2048 + p*1024}")
        w(0)
        for R in range(4): L.append(f"ds_read_b128 {q(XF(ks,R))}, v{4+ks} offset:{o*8192 + R*2048}")
        w(1)
        return L
    def mf(ks, p): return [f"{MF} {q(AK+(p*4+R)*4)}, {q(XF(ks,R))}, {q(WF(ks,p))}, {q(AK+(p*4+R)*4)}" for R in range(4)]
    def chunk(newset, extra=""):
        SET[0] = 1 - newset; M = mf(0, 0) + mf(0, 1) + mf(1, 0) + mf(1, 1)
        SET[0] = newset; Rd = reads(0) + reads(1)
        k = 0
        for i, m in enumerate(M):
            a(m)
            for _ in range(RPM):
                if Rd:
                    if k == 14: a("s_waitcnt lgkmcnt(8)")
                    a(Rd.pop(0)); k += 1
            if i == 11: a(extra)
        a("s_waitcnt lgkmcnt(0)")
    adv = "v_add_u32 v4, 0x4000, v4\nv_add_u32 v5, 0x4000, v5\nv_xor_b32 v6, 0x8000, v6"
    a("s_mov_b32 s68, 1\ns_barrier")
    st.mark("cf0")
    SET[0] = 0
    for k, r in enumerate(reads(0) + reads(1)):
        if k == 14: a("s_waitcnt lgkmcnt(8)")
        a(r)
    for r in range(0, 32, 2): a(f"v_pk_mul_f32 {d(AK+r)}, {d(254)}, 0")
    a(late)
    thook(5)
    a("s_waitcnt lgkmcnt(0)\nC_LOOP:\ns_barrier")
    assert TPOS in (0, 1) and SIG1 in (2, 4, 6)
    chunk(1, adv)
    thook(1)
    a(f"""s_cmp_lg_u32 s68, {SIG1-1}
    s_cbranch_scc1 C_NOW
    s_waitcnt vmcnt(0)
    C_NOW:
    s_barrier""")
    chunk(0, "s_add_u32 s68, s68, 2")
    thook(2)
    a("s_cmp_lt_u32 s68, 7\ns_cbranch_scc1 C_LOOP")
    SET[0] = 0
    KK = mf(0, 0) + mf(1, 0)
    for m in KK[:K6]: a(m)
    V6 = KK[K6:] + mf(0, 1) + mf(1, 1)
    VX = V6[8:]; V6 = V6[:8]
    SET[0] = 1
    a("s_barrier")
    st.mark("cl1")
    if DLM: a(f"s_sleep {DLM}")
    R0, R1 = reads(0), reads(1)
    RR = R0[:6] + R1[:6]
    for i, m in enumerate(V6):
        for r in RR[2*i:2*i+2]: a(r)
        a(m)
    M = mf(0, 0)
    for i in range(4): a(f"s_waitcnt lgkmcnt({9-i})"); a(M[i])
    for r in R0[6:] + R1[6:]: a(r)
    M = mf(1, 0)
    for i in range(4): a(f"s_waitcnt lgkmcnt({7-i})"); a(M[i])
    a("s_waitcnt lgkmcnt(0)")
    lds_signal(a, K_C7)
    KP, VP, KV, ZZ, KO = 208, 216, 236, 244, 248
    MV = VX + mf(0, 1) + mf(1, 1)
    for m in MV[:2]: a(m)
    MV = MV[2:]
    def phi_list(src, dst, tmp):
        L = []
        for g4 in range(0, 16, 4):
            L += [f"v_pk_mul_f32 {d(tmp+g4+h)}, {d(src+g4+h)}, s[66:67]" for h in (0, 2)]
        for h in range(16):
            L += [f"v_exp_f32 v{tmp+h}, v{tmp+h} clamp", f"v_max_f32 v{src+h}, s65, v{src+h}"]
        for h in range(0, 16, 2): L += [f"v_pk_add_f32 {d(src+h)}, {d(src+h)}, {d(tmp+h)}"]
        for h in range(8): L += [f"v_cvt_pk_bf16_f32 v{dst+h}, v{src+2*h}, v{src+2*h+1}"]
        return L
    P = phi_list(AK, KP, 128)
    V = [f"v_cvt_pk_bf16_f32 v{VP+h}, v{AV+2*h}, v{AV+2*h+1}" for h in range(8)]
    P = P[:40] + V + P[40:]
    for i, x in enumerate(P):
        a(x)
        if i % 2 == 1 and MV: a(MV.pop(0))
        if i == len(P) - 3: a(f"{MF} {q(KV)}, {q(KP)}, {q(VP)}, 0")
    a(f"""{MF} {q(ZZ)}, v[232:235], {q(KP)}, 0
    {MF} {q(KV)}, {q(KP+4)}, {q(VP+4)}, {q(KV)}
    {MF} {q(ZZ)}, v[232:235], {q(KP+4)}, {q(ZZ)}
    v_subrev_u32 v4, 0xc000, v4
    v_subrev_u32 v5, 0xc000, v5
    v_cvt_pk_bf16_f32 v{KO}, v{KV}, v{KV+1}
    v_cvt_pk_bf16_f32 v{KO+1}, v{KV+2}, v{KV+3}
    v_min_u32 v{KO+2}, -2, v{KO}
    v_min_u32 v{KO+3}, -2, v{KO+1}
    v_min_u32 v{KO}, -2, v{KO}
    v_min_u32 v{KO+1}, -2, v{KO+1}
    v_min_u32 v{ZZ}, -2, v{ZZ}
    v_permlane16_swap_b32 v{KO+1}, v{KO+3}
    v_permlane16_swap_b32 v{KO}, v{KO+2}
    s_mov_b32 exec_lo, 0xffff
    s_mov_b32 exec_hi, 0xffff
    buffer_store_dwordx4 {q(KO)}, v9, {WS}, s63 offen sc1
    s_mov_b32 exec_hi, 0
    buffer_store_dword v{ZZ}, v241, {WS}, s64 offen sc1
    s_mov_b64 exec, -1""")
    st.mark("t0")
    class LQ:
        def __init__(self): self.o = []; self.seen = set()
        def issue(self, txt, tag):
            if len(self.o) >= 15: self.drain(10)
            a(txt); self.o.append(tag); self.seen.add(tag)
        def drain(self, n):
            if len(self.o) > n: a(f"s_waitcnt lgkmcnt({n})"); self.o = self.o[len(self.o)-n:] if n else []
        def need(self, *tags):
            idx = [i for i, t in enumerate(self.o) if t in tags]
            if idx: self.drain(len(self.o) - 1 - max(idx))
    lq = LQ()
    XS = [16 + 16*k for k in range(6)] + [144 + 16*k for k in range(4)]
    xs = lambda s_: XS[s_ % NPRE]
    wq = lambda s_: (128 if (s_ >> 2) % 2 == 0 else 208) + 4*(s_ & 3)
    def xr(s_): return [(f"ds_read_b128 {q(xs(s_)+4*R)}, v{4+(s_&1)} offset:{(s_>>1)*8192 + R*2048}", f"x{s_}") for R in range(4)]
    def wr_(g_): return [(f"ds_read_b64_tr_b16 {d(wq(s_)+2*eta)}, v8 offset:{g_*16384 + ((s_>>1)&1)*8192 + (4*(s_&1)+eta)*1024}", f"w{s_}") for s_ in range(4*g_, 4*g_+4) for eta in range(2)]
    lq.issue(f"ds_read_b32 v253, v254 offset:{4*K_Q}", "c")
    for s_ in range(2):
        for t in xr(s_): lq.issue(*t)
    lq.need("c")
    a("v_cmp_ne_u32 vcc, 4, v253\ns_cbranch_vccnz C_QS0\nC_QR0:")
    st.mark("cq0")
    for t in wr_(0): lq.issue(*t)
    pend = []
    for s_ in range(2, NPRE): pend += xr(s_)
    for g_ in range(4):
        if g_ < 3: lq.issue(f"ds_read_b32 v253, v254 offset:{4*(K_Q+1+g_)}", "c")
        for s_ in range(4*g_, 4*g_+4):
            if s_ & 3 == 1 and g_ < 3:
                lq.need("c")
                a(f"v_cmp_ne_u32 vcc, 4, v253\ns_cbranch_vccnz C_QS{g_+1}\nC_QR{g_+1}:")
                st.mark(f"cq{g_+1}")
                pend += wr_(g_+1)
            while any(t[1] in (f"x{s_}", f"w{s_}") for t in pend): lq.issue(*pend.pop(0))
            lq.need(f"x{s_}", f"w{s_}")
            if s_ == 8: lq.issue(f"s_mov_b64 exec, 1\nds_add_u32 v254, v255 offset:{4*K_G1}\ns_mov_b64 exec, -1", "a")
            if s_ == 4: lq.issue(f"s_mov_b64 exec, 1\nds_add_u32 v254, v255 offset:{4*K_G0}\ns_mov_b64 exec, -1", "a")
            if s_ >= 1 and s_ - 1 + NPRE < 16: pend += xr(s_ - 1 + NPRE)
            for R in range(4):
                a(f"{MF} {q(AQ+R*4)}, {q(wq(s_))}, {q(xs(s_)+4*R)}, {q(AQ+R*4) if s_ else 0}")
                for _ in range(2):
                    if pend: lq.issue(*pend.pop(0))
    assert not lq.o and not pend
    st.mark("cp2")
    QP, PP, ZL = 96, 16, 80
    def pl(p0, p1, fl):
        for p in range(p0, p1):
            if p % 2 == 0: a(f"s_add_u32 s22, s60, {p*1024}\ns_and_b32 s22, s22, 0x3fff\ns_add_u32 s22, s22, s58")
            a(f"buffer_load_dwordx4 {q(PP+4*p)}, v7, {WS}, s22 offen offset:{(p&1)*1024} {fl}")
    lds_signal(a, K_X)
    a(later)
    a(f"ds_read_b32 v1, v254 offset:{4*K_TASK}")
    for x in phi_list(AQ, QP, 128): a(x)
    lds_wait(a, K_X, "C_XW")
    def cwo(poss):
        for pos in poss:
            a(f"""s_add_u32 s5, s57, {(pos+2) & 7}
            s_and_b32 s5, s5, 7
            s_lshl_b32 s5, s5, 16
            s_add_u32 m0, s69, {XB + 16384 + pos*8192}
            s_add_u32 s5, s5, s21
            buffer_load_dwordx4 v242, s[36:39], s5 offen lds
            s_add_u32 s5, s5, 3072
            buffer_load_dwordx4 v242, s[36:39], s5 offen offset:1024 lds""")
    if RCL:
        if TEX: a("v_readfirstlane_b32 s56, v1\ns_cmp_lt_u32 s56, 201\ns_cbranch_scc0 C_NORD")
        else: a("v_readfirstlane_b32 s56, v1\ns_cmp_lt_u32 s56, 201\ns_cbranch_scc0 C_NORD")
        lds_wait(a, K_RD, "C_RDW", 1)
        if not W67E: cwo((6, 7))
        a("C_NORD:")
    fin = f"""buffer_load_dwordx4 {q(ZL)}, v243, {WS}, s58 offen offset:1024 sc1
    buffer_load_dwordx2 {d(ZL+6)}, v11, {WS}, s58 offen sc1"""
    cwo(range(FF - 1 if FF else 6))
    if FF: a(fin); cwo(range(FF - 1, 6))
    st.mark("cpi")
    DEN, NUM = 112, 128
    a(f"v_and_b32 v12, 1, v3\nv_lshl_add_u32 v12, v12, 14, v9")
    FS = 2 if MAP == 48 else 7
    FO = F0_OFF + (OF_OFF if MAP == 48 else OF2_OFF)
    a(f"""s_lshl_b32 s61, s50, 16
    s_lshl_b32 s62, s53, 9
    s_add_u32 s61, s61, s62
    s_add_u32 s61, s61, {O_OFF}
    s_add_u32 s62, s61, 0x8000
    s_lshl_b32 s6, s54, {5+FS}
    s_add_u32 s6, s6, {FO}
    s_lshl_b32 s7, s50, 5
    s_add_u32 s7, s7, s53
    s_lshl_b32 s7, s7, {FS}
    s_add_u32 s7, s7, {FO}""")
    if MAP == 48: a(f"ds_read_b64 v[238:239], v254 offset:{4*K_MODE}")
    if FF: a(f"s_waitcnt vmcnt({2*(7-FF)})")
    else: a(fin + "\ns_waitcnt vmcnt(0)")
    a(f"""C_PF:
    v_max3_u32 v1, v{ZL}, v{ZL+1}, v{ZL+2}
    v_max3_u32 v14, v{ZL+3}, v{ZL+6}, v{ZL+7}
    v_cvt_pk_bf16_f32 v{ZL+4}, v{ZL}, v{ZL+1}
    v_max_u32 v1, v1, v14
    v_cvt_pk_bf16_f32 v{ZL+5}, v{ZL+2}, v{ZL+3}
    v_cmp_eq_u32 vcc, -1, v1
    s_cbranch_vccnz C_PFRE""")
    st.mark("ckv")
    if OPRIO: a("s_setprio 3")
    for R in range(4): a(f"{M16} {q(DEN+4*R)}, {d(ZL+4)}, {d(QP+2*R)}, 0")
    for R in range(4): a(f"{M16} {q(NUM+4*R)}, {d(ZL+6)}, {d(QP+2*R)}, 0")
    if MAP == 48: a("s_waitcnt lgkmcnt(0)\nv_readfirstlane_b32 s75, v238\nv_readfirstlane_b32 s73, v239")
    for R in range(4): a(f"v_add_f32 v{DEN+4*R}, s65, v{DEN+4*R}")
    for R in range(4): a(f"v_rcp_f32 v{DEN+4*R}, v{DEN+4*R}")
    if MAP == 48: a("s_cmp_eq_u32 s73, 4\ns_cbranch_scc0 C_MW\nC_MWR:\ns_nop 2")
    OO = 244
    for pr in range(2):
        for R in (2*pr, 2*pr+1):
            for h in (0, 2): a(f"v_pk_mul_f32 {d(NUM+4*R+h)}, {d(NUM+4*R+h)}, {d(DEN+4*R)} op_sel_hi:[1,0]")
            a(f"v_cvt_pk_bf16_f32 v{OO+2*R}, v{NUM+4*R}, v{NUM+4*R+1}\nv_cvt_pk_bf16_f32 v{OO+2*R+1}, v{NUM+4*R+2}, v{NUM+4*R+3}")
        o = OO + 4*pr
        a(f"v_permlane16_swap_b32 v{o}, v{o+2}\nv_permlane16_swap_b32 v{o+1}, v{o+3}")
        if MAP != 48: a(f"buffer_store_dwordx4 {q(o)}, v12, {WS}, s{61+pr} offen sc1")
    if MAP == 48:
        a(f"""s_cmp_eq_u32 s75, 0
        s_cbranch_scc0 C_OSLOW
        buffer_store_dwordx4 {q(OO)}, v12, {WS}, s61 offen
        buffer_store_dwordx4 {q(OO+4)}, v12, {WS}, s62 offen
        C_OST:""")
    st.mark("co")
    if OPRIO: a(f"s_setprio {CPRIO}")
    a(f"""s_lshl_b32 s22, s3, 5
    v_xor_b32 v8, s22, v8
    v_add_u32 v8, {XB + 16384}, v8
    v_xor_b32 v9, 32, v8
    v_xor_b32 v10, 64, v8
    v_xor_b32 v11, 96, v8
    v_lshlrev_b32 v13, {FS}, v0
    s_lshl2_add_u32 s58, s54, s3
    s_lshl_b32 s61, s58, 15
    s_lshl_b32 s58, s58, 14
    s_add_u32 s58, s58, {O_OFF}
    s_lshl_b32 s60, s57, 11
    s_add_u32 s60, s60, 4096
    s_lshl_b32 s22, s55, 7
    s_add_u32 s61, s61, s22
    v_lshlrev_b32 v12, 11, v2
    v_and_b32 v14, 1, v3
    v_lshl_add_u32 v12, v14, 5, v12
    v_lshrrev_b32 v14, 1, v3
    v_lshl_add_u32 v12, v14, 4, v12""")
    OF, ACC = 16, 128
    WB = [80, 96, 112, 160, 176, 192, 208, 224, 144]
    wb = lambda p: WB[p % NWO]
    def wreads(p): return [(f"ds_read_b64_tr_b16 {d(wb(p)+4*t+2*eta)}, v{8+t} offset:{p*4096 + eta*1024}", f"o{p}") for t in range(4) for eta in range(2)]
    a("s_cmp_eq_u32 s75, 0\ns_waitcnt vmcnt(0)")
    st.mark("cab")
    if MAP == 48:
        a(f"""s_mov_b64 exec, 1
        s_cbranch_scc0 C_FSLOW
        buffer_store_dword v255, v7, {WS}, s7 offen
        C_FST:
        s_mov_b64 exec, -1""")
    else: a(f"s_mov_b64 exec, 1\nbuffer_store_dword v255, v7, {WS}, s7 offen sc1\ns_mov_b64 exec, -1")
    if UGATE == 2: lds_signal(a, K_CO)
    lds_signal(a, K_WO)
    lds_wait(a, K_WO, "C_WW")
    if W67: lds_wait(a, K_W67, "C_WW2")
    st.mark("cww")
    for p in range(0, 4):
        for t in wreads(p): lq.issue(*t)
    a(f"s_mov_b32 exec_hi, 0\nbuffer_load_dword v1, v13, {WS}, s6 offen sc1\ns_mov_b32 exec_hi, -1")
    for p in range(4, NWO):
        for t in wreads(p): lq.issue(*t)
    a(f"""s_mov_b32 exec_hi, 0
    C_OP:
    s_waitcnt vmcnt(0)
    v_cmp_ne_u32 vcc, 1, v1
    s_cbranch_vccnz C_OPRE
    s_mov_b64 exec, -1""")
    st.mark("cof")
    if UGATE == 3: lq.issue(f"s_mov_b64 exec, 1\nds_add_u32 v254, v255 offset:{4*K_CO}\ns_mov_b64 exec, -1", "a")
    pl(0, OIL, OFL)
    iss = OIL
    for p in range(16):
        if p >= 1 and iss < 16: pl(iss, iss+2, OFL); iss += 2
        if iss == 16:
            lq.issue(f"s_mov_b64 exec, 1\nds_add_u32 v254, v255 offset:{4*K_OI}\ns_mov_b64 exec, -1", "a")
            st.mark("coi"); iss = 17
        a(f"s_waitcnt vmcnt({min(iss, 16)-1-p})")
        lq.need(f"o{p}")
        if p == 0: st.mark("cg0")
        R = wreads(p-1+NWO) if p >= 1 and p-1+NWO < 16 else []
        for t in range(4):
            a(f"{MF} {q(ACC+4*t)}, {q(wb(p)+4*t)}, {q(OF+4*p)}, {q(ACC+4*t) if p else 0}")
            for r in R[2*t:2*t+2]: lq.issue(*r)
    st.mark("cg")
    for pr in range(2):
        o = 144 + pr*4
        for t in range(2):
            acc = ACC + (pr*2+t)*4
            a(f"v_cvt_pk_bf16_f32 v{o+2*t}, v{acc}, v{acc+1}\nv_cvt_pk_bf16_f32 v{o+2*t+1}, v{acc+2}, v{acc+3}")
        a(f"v_permlane16_swap_b32 v{o}, v{o+2}\nv_permlane16_swap_b32 v{o+1}, v{o+3}")
        a(f"buffer_store_dwordx4 {q(o)}, v12, s[40:43], s61 offen offset:{64*pr} {OUTFL.replace('_', ' ')}")
    st.dump()
    a("s_endpgm")
    a("C_TST:")
    for k in range(8): a(f"buffer_store_dword v{OUT+k}, v11, {WS}, s61 offen sc1\ns_add_u32 s61, s61, {0x4000 if k != 3 else 0x40000-3*0x4000}")
    a(f"""s_cmp_eq_u32 s3, 0
    s_cbranch_scc0 C_TRET2
    s_mov_b32 exec_lo, 0xff
    s_mov_b32 exec_hi, 0xff
    buffer_store_dword v215, v13, {WS}, s60 offen sc1
    s_mov_b64 exec, -1
    C_TRET2:
    s_setpc_b64 s[70:71]
    C_OPRE:""")
    spin_check(a, OSLP if MAP == 48 else 2)
    a(f"buffer_load_dword v1, v13, {WS}, s6 offen sc1\ns_branch C_OP")
    for g_ in range(4):
        lds_wait(a, K_Q+g_, f"C_QS{g_}")
        a(f"s_branch C_QR{g_}")
    if RCL and not W67E:
        a("L_R67:\ns_mov_b64 exec, 1\ns_brev_b32 s5, 2")
        for k in range(4): a(f"buffer_load_dword v203, v206, {WS}, s5 offen")
        a("s_mov_b64 exec, -1\ns_branch L_R68")
    for lbl in RETRY: a(f"{lbl}R:\ns_waitcnt lgkmcnt(0)\ns_branch {lbl}")
    a("L_REDRE:")
    spin_check(a, RSLP, 100)
    a("s_branch L_RED")
    a("L_URE:")
    if UGATE != 1: lds_wait(a, K_OI, "L_URG", 1)
    spin_check(a, USLP)
    a("s_waitcnt lgkmcnt(0)\ns_branch L_UL")
    for P in "BN":
        a(f"L_H1RE{P}:")
        spin_check(a, PSLEEP)
        a(f"buffer_load_dword v205, v250, {WS}, 0 offen sc1\ns_waitcnt vmcnt(0)\ns_branch L_H1{P}")
    a("C_PFRE:")
    spin_check(a, FSLP, 100)
    a(fin + "\ns_waitcnt vmcnt(0)\ns_branch C_PF")
    if MAP == 48:
        lds_wait(a, K_H1, "C_MW")
        a(f"""ds_read_b32 v238, v254 offset:{4*K_MODE}
        s_waitcnt lgkmcnt(0)
        v_readfirstlane_b32 s75, v238
        s_branch C_MWR
        C_OSLOW:
        buffer_store_dwordx4 {q(OO)}, v12, {WS}, s61 offen sc1
        buffer_store_dwordx4 {q(OO+4)}, v12, {WS}, s62 offen sc1
        s_branch C_OST
        C_FSLOW:
        buffer_store_dword v255, v7, {WS}, s7 offen sc1
        s_branch C_FST""")
    a("L_GORE:")
    spin_check(a, RESLEEP)
    a("buffer_load_dword v204, v249, s[44:47], 0 offen sc1\ns_waitcnt vmcnt(0)\ns_branch L_GO\nL_END:\ns_endpgm")
    a(f".fill (33280-(.-{NAME}))/4, 4, 0xbf810000")

HEADER = open("concat_heads__linear_attn_block__spectral_gfnet__prompt.s.ref").read().split("; Override")[0]

def main(out):
    a = Asm(); st = Stamps(a)
    entry(a, st); l_main(a, st); c_main(a, st)
    txt = HEADER + f"""; @launch grid=(256,1,1) block=(512,1,1) lds={LDS_SIZE}
.amdgcn_target "amdgcn-amd-amdhsa--gfx950"
.text
""" + a.finalize() + f""".section .rodata,"a"
.p2align 6
.amdhsa_kernel {NAME}
  .amdhsa_next_free_vgpr 256
  .amdhsa_next_free_sgpr 102
  .amdhsa_accum_offset 256
  .amdhsa_group_segment_fixed_size 0
  .amdhsa_kernarg_size 72
  .amdhsa_user_sgpr_count 2
  .amdhsa_user_sgpr_kernarg_segment_ptr 1
  .amdhsa_system_sgpr_workgroup_id_x 1
.end_amdhsa_kernel
"""
    open(out, "w").write(txt)

if __name__ == "__main__":
    for arg in sys.argv[2:]:
        if arg == "stamp": STAMP = True
        elif "=" in arg:
            k, v = arg.split("=", 1)
            globals()[k] = int(v) if v.lstrip("-").isdigit() else v
    main(sys.argv[1])
```

```python
import sys, struct
from asm import Asm

T_OFF = 0; ROW = 8320; U_OFF = 0x240000; WP_OFF = 0x480000; KVP_OFF = 0x6C0000; ZP_OFF = 0x740000
KVF_OFF = 0x6B0000; F0_OFF = 0x750000; O_OFF = 0x800000; WS_SIZE = 0xA00000; DBG_OFF = 0xA00000
XB = 65536; BXB = 131072; EB = 147456; CNT = 163584; WRB = EB; SPB = WRB + 16*576; LDS_SIZE = 163840
OF_OFF = 4096; H2_OFF = 8192; OF2_OFF = 16384
STAMP = False
NAME = "concat_heads__linear_attn_block__spectral_gfnet__prompt_kernel"
SPIN = 0x40000
MAP = 48; GPOS = 1; SIG1 = 4; TPOS = 1; RCL = 1; TFIRST = 0; OIL = 10; PFS = 0; EXIT0 = 0; EARLY = 0; NOOUT = 0; PREU = 1; PSLEEP = 2; RESLEEP = 2; CPRIO = 2; LPRIO = 3; FORCESLOW = 0
OUTFL = ""; TFL = "sc1"; UFL = "sc1"; OFL = "sc1"; NPRE = 5; NWO = 9; PSPLIT = 8; HPOS = 0; XROT = 1; BNT = ""; XNT = ""; QPF = 0; RP = 2; PT = 0; DLY = 0; SPEC = 0; B3A = 1; B3B = 0; U4 = 0; TEX = 0; TD = 1; WA = 2; WPF = 0; W67E = 8; FF = 5; CS = 60; A8 = 0; XCL = 1; WLP = -1; TS = "0011"; K6 = 4; WL = 1; WLN = 0; SB = "F10.o.a8.F11.67.A.a9.c60.a10.h.P.W0.a11.W1.c.H.T.W2.W3.R.s67"; SN = "F10.o.a8.F11.67.A.a9.h.a10.a11.H.P.D.s67"; NF = 3; PRE = 0; W67B = 0; RT = 0; RD1 = 1; SAFE = 1; B2E = 3; GSLP = 1; OSLP = 0; TKE = 0; OPRIO = 1; XW = 0; XB_ = 0; DLE = 0; DLM = 0; WSB = 0; ROTM = 7; F3E = 0; RPM = 2; B2POS = 1; WNT = ""; PFL = "sc1"; YFL = ""; SFL = "sc1"; LBAR = 0; WOX = 1; WOAT = 2; DYN = 1; PFB = 0; UGATE = 1; USLP = 4; PROT = 0; PEXP = 0; RPOS = 0; RSLP = 2; FSLP = 2; UPRIO = 3; MW = 0; MWQ = 0; OPF = 7; W67 = 1; B3LATE = 0; NOPF = 0; LSLP = 1; NBSLP = 0
MC = "cbx,cst,cf0,t0,cp2,ckv,co,cww,cof,coi,cg"; ML = "iss,lf0,lf7,lq3,lh1,lt,lb2,lack,lul,luok,lend"
K_BX, K_X, K_WO, K_E1, K_E2, K_MODE, K_H1, K_Q, K_H2, K_OI, K_C7, K_TASK, K_G0, K_U, K_CO, K_W67 = 0, 1, 2, 3, 4, 6, 7, 8, 12, 13, 14, 15, 16, 17, 18, 19
K_RD = 12; K_G1 = 20; K_TK = 21

def fhex(x): return "0x%08x" % struct.unpack("<I", struct.pack("<f", x))[0]
def q(b): return "v[%d:%d]" % (b, b + 3)
def d(b): return "v[%d:%d]" % (b, b + 1)
MF = "v_mfma_f32_16x16x32_bf16"
M16 = "v_mfma_f32_16x16x16_bf16"
WS = "s[24:27]"
def WREST(): return (6, 7, 0, 1, 2, 3, 4, 5) if PFB == 4 else (0, 1, 2, 3, 4, 5)
RETRY = []
DEC0 = """s_and_b32 s22, s56, 7
s_bfe_u32 s23, s56, 0x10003
s_lshl1_add_u32 s22, s22, s23
s_and_b32 s4, s56, 0xf0
s_add_u32 s4, s4, s22
s_lshl_b32 s22, s22, 5
s_and_b32 s23, s56, 16
s_add_u32 s22, s22, s23
s_bfe_u32 s23, s56, 0x20005"""
DEC1 = """s_bfe_u32 s22, s56, 0x40003
s_and_b32 s23, s56, 4
s_lshl2_add_u32 s22, s23, s22
s_lshr_b32 s4, s22, 1
s_and_b32 s23, s56, 8
s_lshl1_add_u32 s4, s23, s4
s_and_b32 s23, s56, 0x80
s_add_u32 s4, s4, s23
s_lshl_b32 s22, s22, 4
s_and_b32 s23, s56, 3
s_lshl_b32 s69, s23, 5
s_add_u32 s4, s4, s69"""
def nclr(): return 82 if MAP == 48 else 98

def srd_ptr(a, r, lo): a(f"s_mov_b32 s{r}, s{lo}\ns_mov_b32 s{r+1}, s{lo+1}")
def srd_const(a, r, size): a(f"s_mov_b32 s{r+2}, {size}\ns_mov_b32 s{r+3}, 0x20000")
def wsz(): return WS_SIZE + (0x100000 if STAMP else 0)

class Stamps:
    def __init__(self, a): self.a = a
    def start(self):
        if STAMP: self.a("s_memtime s[76:77]\ns_memrealtime s[78:79]")
    def clear(self, keep):
        if STAMP:
            for lst in (MC.split(","), ML.split(",")):
                pass
            for i in range(11):
                if i != keep and not (EARLY and i < 7): self.a(f"s_mov_b32 s{80+2*i}, 0")
    def idx(self, name):
        for lst in (MC.split(","), ML.split(",")):
            if name in lst: return lst.index(name)
        return -1
    def mark(self, name):
        if STAMP and self.idx(name) >= 0:
            i = self.idx(name); self.a(f"s_mem{'real' if RT else ''}time s[{80+2*i}:{81+2*i}]")
    def dump(self):
        if not STAMP: return
        a = self.a
        a("v_mov_b32 v28, s56\ns_memrealtime s[74:75]\ns_waitcnt vmcnt(0) lgkmcnt(0)\ns_mov_b64 exec, 1")
        for i in range(11): a(f"s_sub_u32 s73, s{80+2*i}, s{78 if RT else 76}\ns_cmp_eq_u32 s{80+2*i}, 0\ns_cselect_b32 s73, 0, s73\nv_mov_b32 v{16+i}, s73")
        a(f"s_sub_u32 s73, {SPIN}, s72\nv_mov_b32 v27, s73\nv_mov_b32 v29, 0\nv_mov_b32 v30, s78\nv_mov_b32 v31, s74")
        a(f"s_lshl_b32 s73, s2, 3\ns_add_u32 s73, s73, s3\ns_lshl_b32 s73, s73, 6\ns_add_u32 s73, s73, {DBG_OFF}\nv_mov_b32 v15, s73")
        for j in range(4): a(f"buffer_store_dwordx4 {q(16+4*j)}, v15, {WS}, 0 offen offset:{16*j}")

def spin_check(a, slp, w=1):
    a(f"s_sub_u32 s72, s72, {w if STAMP else 1}\ns_cbranch_scc1 L_END")
    if slp: a(f"s_sleep {slp}")

def lds_signal(a, k): a(f"s_mov_b64 exec, 1\nds_add_u32 v254, v255 offset:{4*k}\ns_mov_b64 exec, -1")
def lds_wait(a, k, lbl, slp=0):
    a(f"""{lbl}:
    {"s_sleep %d" % slp if slp else ""}
    ds_read_b32 v253, v254 offset:{4*k}
    s_sub_u32 s74, s74, 1
    s_cbranch_scc1 L_END
    s_waitcnt lgkmcnt(0)
    v_cmp_ne_u32 vcc, 4, v253
    s_cbranch_vccnz {lbl}""")

def issue1w(a, c):
    a(f"""s_mul_i32 s66, s52, 196608
    s_add_u32 m0, s64, {(c & 3)*16384}
    s_add_u32 s66, s66, s61
    buffer_load_dwordx4 v6, s[32:35], s66 offen {WNT} lds
    buffer_load_dwordx4 v6, s[32:35], s66 offen offset:1024 {WNT} lds
    s_add_u32 s66, s66, 10240
    buffer_load_dwordx4 v6, s[32:35], s66 offen offset:2048 {WNT} lds
    buffer_load_dwordx4 v6, s[32:35], s66 offen offset:3072 {WNT} lds""")
def issue1x(a, c):
    a(f"""s_lshl_b32 s65, s52, 7
    s_add_u32 m0, s62, {XB + c*8192}
    s_add_u32 s65, s65, s60
    buffer_load_dwordx4 v5, s[28:31], s65 offen {XNT} lds
    s_add_u32 s65, s65, 7168
    buffer_load_dwordx4 v5, s[28:31], s65 offen offset:1024 {XNT} lds""")
def issue1(a, c):
    if MAP == 48: issue1w(a, c); issue1x(a, c)
    else: issue1x(a, c); issue1w(a, c)
    a("s_add_u32 s52, s52, 1\ns_and_b32 s52, s52, 7")
def issue2(a, gam):
    for k2 in range(2):
        a(f"""s_mul_i32 s66, s52, 196608
        s_add_u32 m0, s62, {gam*16384 + k2*8192}
        s_add_u32 s66, s66, s61
        s_add_u32 s52, s52, 1
        buffer_load_dwordx4 v6, s[32:35], s66 offen {WNT} lds
        s_add_u32 s66, s66, 11264
        s_and_b32 s52, s52, 7
        buffer_load_dwordx4 v6, s[32:35], s66 offen offset:1024 {WNT} lds""")

def waddr(a, slot, conj, step, row0, wq_, gq_):
    a(f"""s_and_b32 {slot}, s48, 3
    s_cmp_eq_u32 s48, 4
    s_cselect_b32 {row0}, 4, {slot}
    s_and_b32 {wq_}, s49, 7
    s_lshl4_add_u32 {row0}, {wq_}, {row0}
    s_lshr_b32 {gq_}, s49, 3
    s_lshl_b32 s22, {gq_}, 9
    s_add_u32 {row0}, {row0}, s22
    s_sub_u32 s22, 2048, {row0}
    s_cmp_ge_u32 s48, 4
    s_cselect_b32 {row0}, s22, {row0}
    s_cselect_b32 {conj}, 0x80000000, 0
    s_movk_i32 {step}, {8*514}
    s_cmovk_i32 {step}, {-8*514}
    s_mulk_i32 {row0}, 514""")

def entry(a, st):
    a(f".globl {NAME}\n.p2align 8\n.type {NAME},@function\n{NAME}:")
    st.start()
    a(f"""s_cmp_ge_u32 s2, {0 if EXIT0 else 256}
    s_cbranch_scc1 L_END
    s_load_dwordx16 s[4:19], s[0:1], 0
    s_load_dwordx2 s[20:21], s[0:1], 64
    {"s_memtime s[80:81]" if EARLY else ""}
    v_lshrrev_b32 v4, 6, v0
    s_lshr_b32 s49, s2, 3
    v_readfirstlane_b32 s3, v4
    v_and_b32 v0, 63, v0
    {"s_memtime s[82:83]" if EARLY else ""}
    {"s_getpc_b64 s[60:61]" if PFS else ""}
    {"v_lshl_add_u32 v1, v4, 6, v0" if PFS else ""}
    {"v_mul_u32_u24 v1, %d, v1" % PFS if PFS else ""}
    {"global_load_dword v1, v1, s[60:61]" if PFS else ""}
    s_cmp_eq_u32 s3, 0
    s_cbranch_scc0 C_NOPF
    s_mov_b32 exec_lo, -1
    s_mov_b32 exec_hi, 0
    s_getpc_b64 s[60:61]
    L_PC:
    s_mul_i32 s62, s49, 768
    v_min_u32 v1, 5, v0
    v_lshlrev_b32 v1, 7, v1
    v_add_u32 v1, s62, v1
    v_min_u32 v1, L_END-L_PC, v1
    {"" if PFS else "global_load_dword v1, v1, s[60:61]"}
    v_lshlrev_b32 v2, 2, v0
    v_add_u32 v2, {CNT}, v2
    v_mov_b32 v3, 0
    ds_write_b32 v2, v3
    s_mov_b64 exec, -1
    C_NOPF:
    {"s_sleep %d" % DLY if DLY else ""}
    {"s_memtime s[84:85]" if EARLY else ""}
    s_and_b32 s48, s2, 7
    v_lshlrev_b32 v7, 4, v0
    s_mov_b32 s30, 0x200000
    s_mov_b32 s31, 0x20000""")
    if MAP == 48:
        a("""s_and_b32 s52, s49, 3
        s_lshl2_add_u32 s50, s48, s52
        s_lshr_b32 s51, s49, 2
        s_lshl1_add_u32 s52, s52, s51""")
    else:
        a("""s_and_b32 s52, s49, 7
        s_lshr_b32 s50, s48, 1
        s_lshl3_add_u32 s50, s50, s52
        s_lshr_b32 s22, s49, 3
        s_and_b32 s51, s48, 1
        s_lshl2_add_u32 s51, s51, s22
        s_lshl1_add_u32 s52, s22, s52""")
    a(f"""s_cmp_ge_u32 s3, 4
    s_cbranch_scc1 L_START
    s_lshl_b32 s69, s3, 11
    s_lshl_b32 s58, s3, 19
    s_lshl_b32 s59, s2, 10
    s_add_u32 s58, s58, s59
    {'s_bitset1_b32 s58, 30' if XB_ else ''}
    s_add_u32 s59, s58, {0x40000-1024}
    s_add_u32 m0, s69, {BXB}
    s_cmp_ge_u32 s2, 209
    s_cselect_b32 s22, 0, -1
    v_mov_b32 v208, s22
    v_mov_b32 v209, s22
    v_mov_b32 v210, s22
    v_mov_b32 v211, s22
    s_sub_u32 s52, s2, 129
    s_cmp_eq_u32 s3, 3
    s_cselect_b32 s52, s52, -1
    s_lshl_b32 s65, s52, 13
    s_add_u32 s65, s65, {KVF_OFF}
    s_mov_b32 s26, {wsz()}
    s_mov_b32 s27, s31
    s_cmp_lt_u32 s52, {nclr()}
    {"s_memtime s[86:87]" if EARLY else ""}
    s_waitcnt lgkmcnt(0)
    {"s_memtime s[88:89]" if EARLY else ""}
    s_mov_b64 s[28:29], s[10:11]
    s_cselect_b32 s23, 1, 0
    s_add_u32 s24, s20, {WSB << 20}
    s_addc_u32 s25, s21, 0
    s_cmp_eq_u32 s23, 1
    s_cbranch_scc1 C_CLR
    C_NOCLR:
    buffer_load_dwordx4 v7, s[28:31], s58 offen {BNT} lds
    buffer_load_dwordx4 v7, s[28:31], s59 offen offset:1024 {BNT} lds
    {"s_memtime s[90:91]" if EARLY else ""}
    s_barrier
    {"s_memtime s[92:93]" if EARLY else ""}
    s_branch C_MAIN
    C_CLR:
    buffer_store_dwordx4 v[208:211], v7, {WS}, s65 offen sc1
    buffer_store_dwordx4 v[208:211], v7, {WS}, s65 offen offset:1024 sc1
    buffer_store_dwordx4 v[208:211], v7, {WS}, s65 offen offset:2048 sc1
    buffer_store_dwordx4 v[208:211], v7, {WS}, s65 offen offset:3072 sc1
    s_bitset1_b32 s65, 12
    buffer_store_dwordx4 v[208:211], v7, {WS}, s65 offen sc1
    buffer_store_dwordx4 v[208:211], v7, {WS}, s65 offen offset:1024 sc1
    buffer_store_dwordx4 v[208:211], v7, {WS}, s65 offen offset:2048 sc1
    buffer_store_dwordx4 v[208:211], v7, {WS}, s65 offen offset:3072 sc1
    s_branch C_NOCLR
    L_START:
    {"s_memtime s[86:87]" if EARLY else ""}
    s_sub_u32 s58, s3, 4
    {"s_and_b32 s52, s52, %d" % ROTM if ROTM != 7 else ""}
    {"s_add_u32 s52, s52, s48" if XROT == 1 else ""}
    {"s_lshr_b32 s22, s48, 1" if XROT == 2 else ""}
    {"s_add_u32 s52, s52, s22" if XROT == 2 else ""}
    s_and_b32 s52, s52, 7
    v_lshrrev_b32 v8, 3, v0
    v_and_b32 v9, 7, v0
    v_and_b32 v10, 6, v8
    v_xor_b32 v9, v9, v10
    v_lshlrev_b32 v9, 4, v9
    v_lshl_add_u32 v5, v8, 10, v9
    v_and_b32 v10, 4, v8
    v_add_u32 v10, v10, v8
    v_mul_u32_u24 v6, 3072, v10
    v_add_u32 v6, v6, v9
    s_lshl2_add_u32 s60, s50, s58
    s_lshl_b32 s60, s60, 14
    s_lshl_b32 s61, s51, 7
    s_mul_i32 s62, s58, 49152
    s_add_u32 s61, s61, s62
    s_addk_i32 s61, 1024
    s_lshl_b32 s62, s58, 11
    s_lshl_b32 s64, s58, 12
    s_mov_b32 s34, 0x180000
    s_mov_b32 s35, s31
    s_mov_b32 s38, {0 if XW else 2048*514}
    s_mov_b32 s39, s31
    s_mov_b32 s42, s38
    s_mov_b32 s43, s31""")
    a("""s_waitcnt lgkmcnt(0)
    s_mov_b64 s[32:33], s[6:7]
    s_mov_b64 s[28:29], s[4:5]
    s_barrier""")
    issue1(a, 0)
    st.mark("iss")
    a("""s_mov_b64 s[0:1], s[12:13]
    s_mov_b64 s[70:71], s[14:15]
    s_cmp_eq_u32 s58, 0
    s_cbranch_scc0 L_NOSP
    s_mov_b64 s[36:37], s[12:13]
    s_mov_b64 s[40:41], s[14:15]""")
    waddr(a, "s75", "s59", "s67", "s68", "s56", "s69")
    a(f"""v_and_b32 v12, 3, v0
    v_lshlrev_b32 v12, 4, v12
    v_lshrrev_b32 v11, 4, v0
    v_add_u32 v12, v12, v11
    v_mul_i32_i24 v12, s67, v12
    v_add_u32 v12, s68, v12
    v_sub_u32 v11, {2048*514}, v12
    s_lshr_b32 s23, s59, 22
    s_sub_u32 s22, 512, s23
    s_cmp_eq_u32 s75, 0
    s_cselect_b64 vcc, -1, 0
    s_cselect_b32 s22, s22, s23
    v_cndmask_b32 v11, v11, v12, vcc
    s_mov_b32 exec_hi, 0
    buffer_load_ushort v{SPC}, v12, s[36:39], s23 offen
    buffer_load_ushort v{SPC+1}, v12, s[40:43], s23 offen
    buffer_load_ushort v106, v11, s[36:39], s22 offen
    buffer_load_ushort v107, v11, s[40:43], s22 offen
    s_mov_b32 exec_hi, -1
    L_NOSP:""")
    issue1(a, 1)

def common_setup(a, st, keep):
    st.clear(keep)
    a(f"s_add_u32 s24, s20, {WSB << 20}\ns_addc_u32 s25, s21, 0\ns_mov_b64 s[40:41], s[16:17]\ns_mov_b64 s[44:45], s[18:19]")
    srd_const(a, 24, wsz()); srd_const(a, 40, 0 if NOOUT else 0x400000); srd_const(a, 44, 256)
    a(f"""s_mov_b32 s72, {SPIN}
    s_mov_b32 s74, {SPIN*16}
    v_mov_b32 v254, {CNT}
    v_mov_b32 v255, 1
    v_and_b32 v2, 15, v0
    v_lshrrev_b32 v3, 4, v0
    v_cvt_f32_u32 v8, v2
    v_cvt_f32_u32 v9, v3
    v_lshrrev_b32 v12, 1, v0
    v_lshrrev_b32 v13, 2, v0
    v_and_b32 v13, 4, v13
    v_xor_b32 v12, v12, v13
    v_and_b32 v15, 7, v12
    s_and_b32 s57, s49, 3
    s_lshl2_add_u32 s54, s48, s57
    s_lshr_b32 s55, s49, 2
    s_lshl1_add_u32 s57, s57, s55
    s_and_b32 s19, s2, 15
    s_lshl_b32 s19, s19, 7
    s_add_u32 s19, s19, {F0_OFF}""")

RWR, RWI, SPC = 176, 184, 192

def l_main(a, st):
    C1, C2, TWC, TWS, C3, DAT, AC1, OP2, AC2, INI = 16, 40, 48, 56, 64, 80, 112, 144, 160, 192
    TMP, OP3, AC3, OUT = 80, 112, 128, 144
    CA, CB = 208, 240
    OP, WPK, AC, PK, WRI, T0 = 80, 96, 112, 144, 160, 176
    seq = ["F0"]*6 + ["F1"]*6
    a("v_lshl_add_u32 v4, v10, 10, v9\ns_mov_b64 s[36:37], s[8:9]")
    srd_const(a, 36, 0x80000)
    common_setup(a, st, st.idx("iss"))
    CT = 194
    def b3_consts():
        a(f"""s_lshl_b32 s67, s58, 9
        s_add_u32 s67, s67, s2
        v_and_b32 v10, 1, v0
        v_lshlrev_b32 v10, 8, v10
        v_add_u32 v10, s67, v10
        v_cvt_f32_u32 v10, v10
        v_mul_f32 v10, {fhex(1/2048)}, v10
        v_lshrrev_b32 v11, 5, v0
        v_cvt_f32_u32 v11, v11""")
        MK = 196
        for r in range(4): a(f"v_cmp_eq_u32 vcc, {r}, v15\nv_cndmask_b32 v{MK+r}, 0, -1, vcc")
        a(f"""v_mul_f32 v12, v11, v10
        v_mov_b32 v13, 0xc0400000
        v_fma_f32 v13, v13, v11, 4.0
        v_mul_f32 v13, v13, v10
        v_add_f32 v14, 2.0, v11
        v_mul_f32 v14, v14, v10""")
        for k in range(3):
            b = C1 + 8*k
            a(f"""v_cos_f32 v{CT}, v{12+k}
            v_sin_f32 v{CT+1}, v{12+k}
            v_mul_f32 v{CT}, {fhex(2.0**-19)}, v{CT}
            v_mul_f32 v{CT+1}, {fhex(2.0**-19)}, v{CT+1}
            v_cvt_pk_bf16_f32 v{b+3}, v{CT}, -v{CT+1}
            v_cvt_pk_bf16_f32 v{b+7}, v{CT+1}, v{CT}""")
            for c in range(2):
                for r in range(4): a(f"v_and_b32 v{b+4*c+r}, v{b+4*c+3}, v{MK+r}")
        a(f"v_mul_f32 v12, {fhex(1/16)}, v8\nv_mul_f32 v13, v9, v12\nv_mul_f32 v12, 4.0, v12")
        for v in range(4):
            a(f"v_cos_f32 v{CT}, v13\nv_sin_f32 v{CT+1}, v13")
            if v < 3: a("v_add_f32 v13, v13, v12")
            a(f"v_cvt_pk_bf16_f32 v{C2+v}, v{CT}, -v{CT+1}\nv_cvt_pk_bf16_f32 v{C2+4+v}, v{CT+1}, v{CT}")
        a(f"""v_bfe_u32 v12, v0, 4, 1
        v_cvt_f32_u32 v12, v12
        v_add_f32 v12, v12, v12
        v_mov_b32 v13, 0x41800000
        v_fma_f32 v12, v11, v13, v12
        v_mul_f32 v13, {fhex(1/512)}, v8
        v_mul_f32 v14, v12, v13
        v_mul_f32 v15, {fhex(3.0)}, v13""")
        for i in range(4):
            for ph in range(2):
                k = i*2 + ph; kap = i >> 1; r = (i & 1)*2 + ph
                a(f"""v_cos_f32 v{TWC+k}, v14
                v_sin_f32 v{TWS+k}, v14
                v_mul_f32 v12, 0x41800000, v14
                v_cos_f32 v{CT}, v12
                v_sin_f32 v{CT+1}, v12""")
                if k < 7: a(f"v_add_f32 v14, v14, v{15 if ph else 13}")
                a(f"v_cvt_pk_bf16_f32 v{C3+kap*8+r}, v{CT}, -v{CT+1}")
                if ph: a(f"v_cvt_pk_bf16_f32 v{C3+kap*8+4+r}, -v{CT}, v{CT+1}")
                else: a(f"v_cvt_pk_bf16_f32 v{C3+kap*8+4+r}, v{CT}, -v{CT+1}")
        a(f"""v_cvt_f32_u32 v12, s2
        v_mul_f32 v12, {fhex(1/512)}, v12
        v_cos_f32 v13, v12
        v_sin_f32 v14, v12
        v_lshlrev_b32 v10, 10, v3
        v_lshl_add_u32 v10, v2, 4, v10
        v_mul_f32 v13, {fhex(2.0**-20)}, v13
        v_mul_f32 v14, {fhex(2.0**-20)}, v14
        v_lshlrev_b32 v11, 5, v2
        v_lshl_add_u32 v11, v3, 3, v11
        v_mov_b32 v15, 0""")
    def b2_consts_raw(a):
        a(f"""s_lshl_b32 s22, s58, 2
        v_cvt_f32_u32 v146, s22
        v_mul_f32 v144, {fhex(1/16)}, v8
        v_mul_f32 v145, 4.0, v9
        v_mul_f32 v145, v145, v144
        v_mul_f32 v147, {fhex(1/16)}, v144
        v_mul_f32 v146, v146, v147""")
        for r in range(4):
            a(f"""v_cos_f32 v154, v145
            v_sin_f32 v155, v145
            v_add_f32 v148, v145, v146
            v_cvt_pk_bf16_f32 v{CB+r}, v154, v155
            v_cvt_pk_bf16_f32 v{CB+4+r}, -v155, v154""")
            for j in range(4):
                t = 150 + 2*(j & 1)
                a(f"v_cos_f32 v{t}, v148\nv_sin_f32 v{t+1}, v148")
                if j < 3: a("v_add_f32 v148, v148, v147")
                elif r < 3: a("v_add_f32 v145, v145, v144")
                a(f"v_cvt_pk_bf16_f32 v{CA+8*j+r}, v{t}, v{t+1}\nv_cvt_pk_bf16_f32 v{CA+8*j+4+r}, -v{t+1}, v{t}")
        a(f"""s_lshl_b32 s23, s58, 8
        v_lshlrev_b32 v200, 12, v3
        v_lshl_add_u32 v200, v2, 4, v200
        v_add_u32 v200, s23, v200
        v_add_u32 v201, s64, v7
        v_add_u32 v251, {EB}, v200
        v_add_u32 v252, {EB}, v201
        s_cmp_eq_u32 s58, 3
        s_cselect_b32 s16, 0xffff, -1
        s_mov_b32 s7, 0xffff0000""")
    _t = Asm(); b2_consts_raw(_t); B2L = list(_t.lines)
    def b2_consts(n=1000):
        for _ in range(n):
            if B2L: a(B2L.pop(0))
    def misc_addr():
        a(f"""s_and_b32 s53, s2, 15
        s_lshl_b32 s53, s53, 4
        s_bfe_u32 s22, s2, 0x20004
        s_lshl2_add_u32 s53, s22, s53
        s_lshr_b32 s22, s2, 6
        s_add_u32 s53, s53, s22
        s_lshl_b32 s53, s53, 6
        v_lshlrev_b32 v12, 7, v0
        v_add_u32 v250, {F0_OFF}, v12
        v_mov_b32 v207, 4
        s_getreg_b32 s23, hwreg(HW_REG_XCC_ID)
        s_and_b32 s23, s23, 15
        s_cmp_eq_u32 s23, {'s48' if not FORCESLOW else '15'}
        s_cselect_b32 s23, 1, 0x10001
        v_mov_b32 v108, s23
        v_and_b32 v199, 3, v2
        v_lshlrev_b32 v199, 8, v199
        v_and_b32 v198, 12, v2
        v_add_u32 v198, v198, v3
        v_lshl_add_u32 v199, v198, 4, v199
        v_lshlrev_b32 v248, 2, v0
        v_mov_b32 v206, 0
        s_lshl_b32 s22, s51, 11
        s_add_u32 s22, s22, s60
        s_add_u32 s22, s22, {O_OFF}
        v_add_u32 v202, s22, v12
        s_lshl_b32 s22, s50, 7
        s_add_u32 s22, s22, {F0_OFF + OF_OFF}
        v_writelane_b32 v202, s22, 16
        v_mov_b32 v249, v12
        s_lshl_b32 s21, s58, 14
        s_lshl_b32 s22, s55, 7
        s_add_u32 s21, s21, s22
        s_cmp_eq_u32 s58, 0
        s_cselect_b32 s17, 0, 0x40000000""")
    def wo_dma(poss):
        for pos in poss:
            a(f"""s_add_u32 s5, s57, {(pos+2) & 7}
            s_and_b32 s5, s5, 7
            s_lshl_b32 s5, s5, 16
            s_add_u32 m0, s62, {XB + 16384 + pos*8192}
            s_add_u32 s5, s5, s21
            buffer_load_dwordx4 v4, s[36:39], s5 offen lds
            s_add_u32 s5, s5, 3072
            buffer_load_dwordx4 v4, s[36:39], s5 offen offset:1024 lds""")
    def opf():
        if MAP == 48: a(f"s_mov_b64 exec, 0x1ffff\nbuffer_load_dword v203, v202, {WS}, 0 offen {PFL.replace('_', ' ')}\ns_mov_b64 exec, -1"); seq.append("p")
    def wlp():
        a(f"""s_mov_b64 exec, 0x1f1f
        global_load_ushort v111, v105, s[0:1]
        global_load_ushort v110, v105, s[70:71]
        s_mov_b64 exec, -1"""); seq.extend(["p"]*2)
    def younger(tag): return len(seq) - 1 - max(i for i, x in enumerate(seq) if x == tag)
    misc_addr()
    def mall_warm():
        a(f"""s_lshl2_add_u32 s22, s2, s58
        s_lshl_b32 s23, s22, 9
        s_lshr_b32 s5, s22, 1
        s_mulk_i32 s5, 3072
        s_and_b32 s22, s23, 512
        s_add_u32 s5, s5, s22
        s_mov_b64 exec, 15
        buffer_load_dword v198, v12, s[36:39], s23 offen
        {"buffer_load_dword v197, v12, s[32:35], s5 offen" if MWQ else ""}
        s_mov_b64 exec, -1"""); seq.extend(["m"]*(1+MWQ))
    def special():
        a(f"""s_cmp_eq_u32 s58, 0
        s_cbranch_scc0 L_NOSP2
        s_waitcnt vmcnt({12 if SIG1 == 2 else 63})
        s_lshl_b32 s14, s56, 11
        s_lshl_b32 s22, s69, 8
        s_add_u32 s14, s14, s22
        s_add_u32 s14, s14, {WP_OFF}
        s_lshl_b32 s15, s75, 19
        s_lshr_b32 s22, s59, 14
        s_add_u32 s15, s15, s22
        s_add_u32 s15, s15, s14
        s_lshr_b32 s22, s59, 24
        s_sub_u32 s14, s14, s22
        s_add_u32 s14, s14, {128*16384 + 128}
        s_cmp_eq_u32 s75, 0
        s_cselect_b32 s22, 0, 1.0
        v_lshl_or_b32 v{SPC+4}, v107, 16, v106
        v_lshlrev_b32 v{SPC}, 16, v{SPC}
        v_lshlrev_b32 v{SPC+1}, 16, v{SPC+1}
        v_lshlrev_b32 v106, 16, v106
        v_lshlrev_b32 v107, 16, v107
        v_fma_f32 v{SPC}, v106, s22, v{SPC}
        v_fma_f32 v{SPC+1}, -v107, s22, v{SPC+1}
        v_mul_f32 v{SPC}, 0.5, v{SPC}
        v_mul_f32 v{SPC+1}, 0.5, v{SPC+1}
        v_cvt_pk_bf16_f32 v{SPC}, v{SPC}, v{SPC+1}
        v_xor_b32 v{SPC+4}, s59, v{SPC+4}
        v_xor_b32 v{SPC}, s59, v{SPC}
        s_mov_b32 exec_hi, 0
        buffer_store_dword v{SPC}, v101, {WS}, s15 offen sc1
        s_cbranch_scc0 L_NOSP3
        buffer_store_dword v{SPC+4}, v101, {WS}, s14 offen sc1
        L_NOSP3:
        s_mov_b32 exec_hi, -1
        L_NOSP2:""")
    a("v_lshlrev_b32 v101, 2, v2\nv_lshl_add_u32 v101, v3, 10, v101")
    if WLP >= 0:
        a("""s_sub_u32 s22, 12, s48
        s_cmp_gt_u32 s48, 4
        s_cselect_b32 s22, s22, s48
        s_lshl2_add_u32 s23, s49, s58
        s_lshl4_add_u32 s22, s23, s22
        v_and_b32 v104, 8, v0
        v_add_u32 v104, s22, v104
        v_mul_u32_u24 v104, 514, v104
        v_and_b32 v105, 7, v0
        v_lshl_add_u32 v105, v105, 7, v104""")
    st.mark("lw")
    issue1(a, 2); seq += ["F2"]*6
    if F3E: issue1(a, 3); seq += ["F3"]*6
    if QPF:
        a("""s_and_b32 s22, s49, 3
        s_lshl2_add_u32 s22, s22, s58
        s_lshl_b32 s22, s22, 5
        v_add_u32 v110, s22, v0
        v_mul_u32_u24 v110, 3072, v110
        s_lshl_b32 s22, s51, 7
        s_mov_b32 exec_hi, 0
        buffer_load_dword v111, v110, s[32:35], s22 offen
        s_mov_b32 exec_hi, -1"""); seq.append("p")
    if B2POS == 0: b2_consts()
    st.mark("lconst")
    for c in range(8):
        n = younger(f"F{c}")
        if c == SIG1: n = min(n, younger("g"))
        a(f"s_waitcnt vmcnt({n})")
        if c == SIG1: a(f"s_cmp_eq_u32 s58, 0\ns_cbranch_scc0 L_GOD\ns_mov_b64 exec, 3\nL_GO:\nv_cmp_gt_u32 vcc, {nclr()//2}, v204\ns_cbranch_vccnz L_GORE\ns_mov_b64 exec, -1\nL_GOD:")
        if c == 7:
            a(f"""s_cmp_eq_u32 s58, 1
            s_cbranch_scc0 L_NOTK
            v_readfirstlane_b32 s22, v108
            s_and_b32 s22, s22, 0xffff
            s_and_b32 s23, s2, 15
            s_lshl4_add_u32 s22, s22, s23
            v_mov_b32 v108, s22
            s_barrier
            ds_write_b32 v254, v108 offset:{4*K_TASK}
            s_waitcnt lgkmcnt(0)
            s_mov_b64 exec, 1
            ds_add_u32 v254, v207 offset:{4*K_TK}
            s_mov_b64 exec, -1
            s_branch L_TKD
            L_NOTK:
            s_barrier
            L_TKD:""")
        else: a("s_barrier")
        st.mark(f"lf{c}")
        if c == SIG1:
            a(f"""s_cmp_eq_u32 s58, 1
            s_cbranch_scc0 L_NOSG
            s_mov_b64 exec, 1
            buffer_atomic_add v108, v206, {WS}, s19 offen sc0 sc1
            s_mov_b64 exec, -1
            L_NOSG:""")
        if c == (1 if SIG1 == 4 else 0): special()
        if c == GPOS: a("s_mov_b64 exec, 3\nbuffer_load_dword v204, v249, s[44:47], s17 offen sc1\ns_mov_b64 exec, -1"); seq += ["g"]
        if c == WLP and c < 5: wlp()
        if F3E <= c < 5: issue1(a, c+3); seq += [f"F{c+3}"]*6
        if c == 5: a("s_sub_u32 s61, s61, 1024")
        if 5 <= c < 7: issue2(a, c-5); seq += [f"F{c+3}"]*4
        if c == WLP and c >= 5: wlp()
        if c == OPF and c < 7: opf()
        if c == W67E: wo_dma((6, 7)); seq += ["p"]*4
        if B2E == 1 and 2 <= c <= 6: b2_consts(27 if c < 6 else 1000)
        if B2E == 2 and c == 7: b2_consts()
    def arrive(k):
        a(f"s_waitcnt vmcnt({younger('F%d' % k)})"); lds_signal(a, k); st.mark(f"la{k}")
    def h1(): a(f"s_mov_b64 exec, 0xffff\nbuffer_load_dword v205, v250, {WS}, s17 offen sc1\ns_mov_b64 exec, -1"); seq.append("h")
    def late_pf():
        if W67E: pass
        elif W67 and RCL:
            a("s_cmp_lt_u32 s13, 288\ns_cbranch_scc1 L_R67" if not (TFIRST or TEX) else "s_cmp_lt_u32 s56, 201\ns_cbranch_scc1 L_R67")
            wo_dma((6, 7)); seq.extend(["p"]*4)
            a("L_R68:")
        elif W67: wo_dma((6, 7)); seq.extend(["p"]*4)
        if OPF == 9: opf()
    def reducer():
        R0 = 160
        a("s_cmp_lt_u32 s13, 288\ns_cbranch_scc0 L_NORED\ns_mov_b32 s12, %d\nL_RED:\ns_mov_b32 s22, s8" % RD1)
        for t in range(8):
            a(f"buffer_load_dword v{R0+t}, v193, {WS}, s22 offen sc1")
            if t < 7: a("s_add_u32 s22, s22, s9")
        a("s_waitcnt vmcnt(0)")
        if RD1:
            a(f"""s_sub_u32 s12, s12, 1
            s_cmp_eq_u32 s12, 0
            s_cbranch_scc0 L_RDS
            s_mov_b64 exec, 1
            ds_add_u32 v254, v255 offset:{4*K_RD}
            s_mov_b64 exec, -1
            L_RDS:""")
        a(f"""v_max3_u32 v1, v{R0}, v{R0+1}, v{R0+2}
        v_max3_u32 v{R0+8}, v{R0+3}, v{R0+4}, v{R0+5}
        v_max3_u32 v1, v1, v{R0+6}, v{R0+7}
        v_max_u32 v1, v1, v{R0+8}
        v_cmp_eq_u32 vcc, -1, v1
        s_cbranch_vccnz L_REDRE""")
        for t in range(8): a(f"v_lshlrev_b32 v{R0+8+2*t}, 16, v{R0+t}\nv_and_b32 v{R0+9+2*t}, s11, v{R0+t}")
        for st_ in (8, 4, 2):
            for t in range(0, st_, 2): a(f"v_pk_add_f32 {d(R0+8+t)}, {d(R0+8+t)}, {d(R0+8+t+st_)}")
        for sw in ("32", "16"):
            a(f"""v_mov_b32 v{R0+10}, v{R0+8}
            v_mov_b32 v{R0+11}, v{R0+9}
            v_permlane{sw}_swap_b32 v{R0+8}, v{R0+10}
            v_permlane{sw}_swap_b32 v{R0+9}, v{R0+11}
            v_pk_add_f32 {d(R0+8)}, {d(R0+8)}, {d(R0+10)}""")
        a(f"""v_cvt_pk_bf16_f32 v{R0+8}, v{R0+8}, v{R0+9}
        v_cndmask_b32 v{R0+8}, v{R0+9}, v{R0+8}, s[14:15]
        v_min_u32 v{R0+8}, -2, v{R0+8}
        s_mov_b64 exec, 0xffff
        buffer_store_dword v{R0+8}, v193, {WS}, s10 offen sc1
        s_mov_b64 exec, 1
        {"s_cmp_gt_i32 s12, 0" if RD1 else ""}
        {"s_cbranch_scc0 L_RDT" if RD1 else ""}
        ds_add_u32 v254, v255 offset:{4*K_RD}
        L_RDT:
        s_mov_b64 exec, -1
        L_NORED:""")
        st.mark("lred")
    def wloads(i):
        for j in range(4):
            a(f"buffer_load_short_d16_hi v{16+8*j+i}, v197, s[28:31], s68 offen\nbuffer_load_short_d16_hi v{20+8*j+i}, v197, s[44:47], s68 offen")
            if (i, j) != (3, 3): a(f"s_add_u32 s68, s68, {'s67' if j < 3 else 's69'}")
        seq.extend(["w"]*8)
    def run(sched, P):
        for x in sched.split("."):
            if x == "F10": issue2(a, 2); seq.extend(["F10"]*4)
            elif x == "F11": lds_wait(a, K_C7, f"L_C7{P}", LSLP); issue2(a, 3); seq.extend(["F11"]*4)
            elif x == "o":
                if OPF >= 7: opf()
            elif x == "67": wo_dma((6, 7)); seq.extend(["67"]*4)
            elif x == "s67": a(f"s_waitcnt vmcnt({younger('67')})"); lds_signal(a, K_W67)
            elif x[0] == "a":
                arrive(int(x[1:]))
                if x == "a11": st.mark("lq3")
            elif x[0] == "W": wloads(int(x[1]))
            elif x == "h": h1()
            elif x == "P": a(f"s_setprio {LPRIO}")
            elif x[0] == "c": b2_consts(int(x[1:] or 1000))
            elif x == "R": lds_signal(a, K_RD); st.mark("lti")
            elif x == "D": reducer()
            elif x == "A" and P == "B":
                for r in range(16, 48, 2): a(f"v_pk_mul_f32 {d(r)}, {d(254)}, 0")
                a(f"""s_mov_b64 s[28:29], s[0:1]
            s_mov_b64 s[44:45], s[70:71]
            s_mov_b32 s30, {2048*514}
            s_mov_b32 s46, {2048*514}
            {DEC1 if XCL else DEC0}
            s_cmp_ge_u32 s22, 256
            s_cselect_b32 s69, 4, 0
            s_cselect_b32 s59, 0x80000000, 0
            s_cselect_b64 vcc, -1, 0
            s_cselect_b32 s68, {408*514}, 0
            s_movk_i32 s67, {8*514}
            s_cmovk_i32 s67, {-8*514}
            s_cmp_eq_u32 s23, 0
            s_cselect_b32 s23, s69, s23
            s_lshl_b32 s69, s58, 5
            s_add_u32 s69, s69, s23
            v_lshlrev_b32 v100, 9, v3
            v_add_u32 v100, s69, v100
            v_add_u32 v101, s22, v2
            v_sub_u32 v102, 1640, v100
            v_sub_u32 v103, 0x200, v101
            v_cndmask_b32 v100, v100, v102, vcc
            v_cndmask_b32 v101, v101, v103, vcc
            v_mul_u32_u24 v100, 514, v100
            v_lshl_add_u32 v197, v101, 1, v100
            s_and_b32 s22, s22, 0xff
            s_cmp_eq_u32 s22, 0
            s_cselect_b32 s75, {WP_OFF}, 2.0
            s_cselect_b32 s6, 0x10001, 0
            s_cmp_eq_u32 s56, 128
            s_cselect_b32 s6, -1, s6
            s_cselect_b32 s68, 2.0, s68
                s_mul_i32 s69, s67, 13
                s_lshl_b32 s20, s4, 14
                s_add_u32 s20, s20, s64""")
            elif x == "A": a(f"""s_sub_u32 s13, s56, 129
    s_lshl2_add_u32 s13, s13, s58
    s_mul_i32 s22, s13, 7282
    s_lshr_b32 s22, s22, 16
    s_mul_i32 s23, s22, 9
    s_sub_u32 s23, s13, s23
    s_lshl_b32 s8, s22, 14
    s_lshl_b32 s9, s23, 6
    s_add_u32 s8, s8, s9
    s_add_u32 s8, s8, {KVP_OFF}
    s_lshl_b32 s9, s22, 11
    s_lshl_b32 s10, s23, 7
    s_add_u32 s10, s10, s9
    s_add_u32 s10, s10, {KVF_OFF}
    s_add_u32 s9, s9, {ZP_OFF}
    s_cmp_lt_u32 s23, 8
    s_cselect_b32 s8, s8, s9
    s_cselect_b32 s11, 0xffff0000, -1
    s_cselect_b32 s12, 9, 6
    s_cselect_b64 s[14:15], -1, 0
    s_lshl_b32 s9, 4, s12
    v_lshlrev_b32 v193, s12, v3
    v_lshl_add_u32 v193, v2, 2, v193""")
            elif x == "H":
                a(f"""s_cmp_eq_u32 s58, 0
                s_cbranch_scc0 L_H1OK{P}
                s_waitcnt vmcnt({younger('h')})
                s_mov_b64 exec, 0xffff
                L_H1{P}:
                v_and_b32 v1, 0xffff, v205
                v_cmp_ne_u32 vcc, 16, v1
                s_cbranch_vccnz L_H1RE{P}
                v_cmp_ne_u32 vcc, 16, v205
                v_mov_b32 v1, vcc_lo
                s_mov_b64 exec, 1
                ds_write_b32 v254, v1 offset:{4*K_MODE}
                s_waitcnt lgkmcnt(0)
                ds_add_u32 v254, v207 offset:{4*K_H1}
                s_mov_b64 exec, -1
                L_H1OK{P}:""")
            elif x == "T":
                lds_wait(a, K_G0, "L_G0W", LSLP)
                lds_wait(a, K_H1, "L_H1W", 0)
                st.mark("lh1")
                a("s_mov_b32 m0, s64\ns_nop 0")
                for j in range(4): a(f"buffer_load_dwordx4 v7, {WS}, s20 offen offset:{j*1024} {TFL} lds"); seq.append(f"T{j}")
                a(f"s_add_u32 s23, s20, s75")
                for j in range(4): a(f"buffer_load_dwordx4 {q(WPK+4*j)}, v7, {WS}, s23 offen offset:{j*1024} {TFL}")
                seq.extend(["w"]*4)
            else: raise ValueError(x)
    lds_wait(a, K_TK, "L_TKW")
    a(f"""ds_read_b32 v1, v254 offset:{4*K_TASK}
    s_waitcnt lgkmcnt(0)
    v_readfirstlane_b32 s56, v1
    s_cmp_gt_u32 s56, 128
    s_cbranch_scc0 L_B2P""")
    sv = list(seq)
    run(SN, "N")
    a("s_branch L_NOB2\nL_B2P:")
    seq[:] = sv
    SBp = SB.split("/") + ["", ""]
    run(SBp[0], "B")
    st.mark("lc2")
    def b3blk():
        a(f"""s_setprio 0
        s_lshl_b32 s61, s58, 19
        s_add_u32 s61, s61, s53
        s_add_u32 s68, s61, 0x40000
        s_add_u32 s63, s53, {128*16384}
        v_lshrrev_b32 v249, 2, v0
        v_lshlrev_b32 v249, 14, v249
        v_and_b32 v250, 3, v0
        v_lshl_add_u32 v249, v250, 4, v249
        v_add_u32 v250, s62, v7
        v_add_u32 v250, {EB}, v250""")
        b3_consts()
        a("""s_lshl_b32 s65, s67, 11
        s_add_u32 s65, s65, 1024
        s_add_u32 s66, s65, 0x80000""")
        st.mark("lb3c")
        a(f"v_add_u32 v10, {EB}, v10")
    def spec_wait(k, lbl, reads, n):
        if not SPEC:
            lds_wait(a, k, lbl); reads(); return
        a(f"{lbl}:\nds_read_b32 v253, v254 offset:{4*k}")
        reads()
        a(f"""s_sub_u32 s74, s74, 1
        s_cbranch_scc1 L_END
        s_waitcnt lgkmcnt({n})
        v_cmp_ne_u32 vcc, 4, v253
        s_cbranch_vccnz {lbl}R""")
        RETRY.append(lbl)
    def exchange(vw, vr, k, lbl):
        for j in range(4):
            for i in range(4): a(f"v_cvt_pk_bf16_f32 v{PK+4*i+j}, v{AC+j*8+i}, v{AC+j*8+4+i}")
        for i in range(4):
            if k == K_E1 and i == 3: a("s_mov_b32 exec_hi, s16")
            a(f"ds_write_b128 {vw}, {q(PK+4*i)} offset:{i*1024 + (16384 if TD and k == K_E2 else 0)}")
        if SAFE: a("s_waitcnt lgkmcnt(0)")
        lds_signal(a, k)
        st.mark("e1w" if k == K_E1 else "e2w")
        if k == K_E1:
            for r in range(4): a(f"v_mov_b32 v{OP+12+r}, v{PK+12+r}")
        if k == K_E1 and SBp[1]: run(SBp[1], "B")
        if k == K_E1: st.mark("e1u")
        def rd():
            for j in range(4):
                if k == K_E1 and j == 3: a("s_mov_b32 exec_hi, s16")
                a(f"ds_read_b128 {q(OP+4*j)}, {vr} offset:{j*1024 + (16384 if TD and k == K_E2 else 0)}")
            if k == K_E1: a("s_mov_b32 exec_hi, -1")
        spec_wait(k, lbl, rd, 4)
    def stage_w(consts):
        for j in range(4):
            a(f"s_waitcnt lgkmcnt({3-j})")
            for c in range(2): a(f"{MF} {q(AC+(j*2+c)*4)}, {q(consts(j)+4*c)}, {q(OP+4*j)}, 0")
    if TD:
        a("v_add_u32 v198, s64, v248")
        for j in range(4):
            a(f"s_waitcnt vmcnt({younger('T%d' % j)})")
            if j == 3: a("s_waitcnt lgkmcnt(8)")
            for r in range(4): a(f"ds_read_b32 v{OP+j*4+r}, v198 offset:{j*1024+r*256}")
    for j in range(4):
        if TD: a(f"s_waitcnt lgkmcnt({12-4*j})")
        for c in range(2): a(f"{MF} {q(AC+(j*2+c)*4)}, {q(CA+8*j+4*c)}, {q(OP+4*j)}, 0")
    st.mark("lt")
    exchange("v251", "v252", K_E1, "L_E1")
    st.mark("b2x1")
    stage_w(lambda j: CB)
    a(f"s_waitcnt vmcnt({younger('w')})")
    st.mark("lwl")
    for kk in range(16): a(f"v_xor_b32 v{20+(kk>>2)*8+(kk&3)}, s59, v{20+(kk>>2)*8+(kk&3)}")
    a("s_cmp_eq_u32 s6, 0\ns_cbranch_scc1 L_NOOV\ns_mov_b32 exec_lo, s6\ns_mov_b32 exec_hi, s6")
    for kk in range(16): a(f"v_lshlrev_b32 v{16+(kk>>2)*8+(kk&3)}, 16, v{WPK+kk}\nv_and_b32 v{20+(kk>>2)*8+(kk&3)}, s7, v{WPK+kk}")
    a("s_mov_b64 exec, -1\nL_NOOV:")
    for j in range(4):
        xr = AC + j*8; xi = xr + 4; t = T0 + (j & 1)*8; wr = WRI + (j & 1)*8; wi = wr + 4
        if PREU: wr = 16 + 8*j; wi = wr + 4
        else:
            for i in range(4): a(f"v_lshlrev_b32 v{wr+i}, 16, v{WPK+4*j+i}\nv_and_b32 v{wi+i}, 0xffff0000, v{WPK+4*j+i}")
        for h in (0, 2):
            a(f"v_pk_mul_f32 {d(t+h)}, {d(xr+h)}, {d(wr+h)}")
            a(f"v_pk_mul_f32 {d(t+4+h)}, {d(xi+h)}, {d(wr+h)}")
        for h in (0, 2):
            a(f"v_pk_fma_f32 {d(t+h)}, {d(xi+h)}, {d(wi+h)}, {d(t+h)} neg_lo:[1,0,0] neg_hi:[1,0,0]")
            a(f"v_pk_fma_f32 {d(t+4+h)}, {d(xr+h)}, {d(wi+h)}, {d(t+4+h)}")
        for i in range(4): a(f"v_cvt_pk_bf16_f32 v{OP+4*j+i}, v{t+i}, -v{t+4+i}")
        if j > 0:
            for c in range(2): a(f"{MF} {q(AC+((j-1)*2+c)*4)}, {q(CA+8*(j-1)+4*c)}, {q(OP+4*(j-1))}, 0")
    for c in range(2): a(f"{MF} {q(AC+(6+c)*4)}, {q(CA+24+4*c)}, {q(OP+12)}, 0")
    st.mark("fl")
    if SBp[2]: run(SBp[2], "B")
    lds_wait(a, K_G1, "L_XW")
    exchange("v200", "v201", K_E2, "L_E2")
    st.mark("b2x2")
    if U4:
        for j in range(4):
            a(f"s_waitcnt lgkmcnt({3-j})")
            for c in range(2): a(f"{MF} {q(AC+(j*2+c)*4)}, {q(OP+4*j)}, {q(CB+4*c)}, 0")
        for j in range(4):
            for i in range(4): a(f"v_cvt_pk_bf16_f32 v{PK+j*4+i}, v{AC+j*8+i}, -v{AC+j*8+4+i}")
            a(f"v_or_b32 v{PK+j*4}, 1, v{PK+j*4}")
            a(f"buffer_store_dwordx4 {q(PK+j*4)}, v199, {WS}, s20 offen offset:{j*1024} sc1")
    else: stage_w(lambda j: CB)
    for j in range(0 if U4 else 4):
        for i in range(4):
            a(f"v_cvt_pk_bf16_f32 v{PK+j*4+i}, v{AC+j*8+i}, -v{AC+j*8+4+i}")
            a(f"v_or_b32 v{PK+j*4+i}, 1, v{PK+j*4+i}")
            a(f"buffer_store_dword v{PK+j*4+i}, v248, {WS}, s20 offen offset:{j*1024+i*256} sc1")
    st.mark("lb2")
    a("L_NOB2:")
    if B2POS == 1: b3blk()
    a(f"s_setprio {UPRIO}")
    if UGATE == 1: lds_wait(a, K_OI, "L_H2G", GSLP)
    if UGATE >= 2: lds_wait(a, K_CO, "L_H2G", 1 if UGATE == 2 else 0)
    st.mark("lul")
    UCHK1 = f"""v_and_b32 v1, v{AC1}, v{AC1+1}
    v_and_b32 v12, v{AC1+2}, v{AC1+3}
    s_waitcnt vmcnt(2)
    ds_write_b128 v250, {q(AC1+4)} offset:1024
    v_and_b32 v1, v1, v{AC1+4}
    v_and_b32 v12, v12, v{AC1+5}
    v_and_b32 v1, v1, v{AC1+6}
    v_and_b32 v12, v12, v{AC1+7}
    s_waitcnt vmcnt(0)
    v_and_b32 v1, v1, v8
    v_and_b32 v12, v12, v9
    v_and_b32 v1, v1, v12"""
    UCHK4 = f"""s_waitcnt vmcnt(2)
    ds_write_b128 v250, {q(AC1+4)} offset:1024
    v_and_b32 v1, v{AC1}, v{AC1+4}
    s_waitcnt vmcnt(0)
    v_and_b32 v1, v1, v8
    v_and_b32 v1, v1, v9"""
    a(f"""L_UL:
    buffer_load_dwordx4 {q(AC1)}, v249, {WS}, s61 offen sc1
    buffer_load_dwordx4 {q(AC1+4)}, v249, {WS}, s68 offen sc1
    buffer_load_dword v9, v15, {WS}, s63 offen sc1
    buffer_load_dword v8, v15, {WS}, s63 offen offset:32 sc1
    s_waitcnt vmcnt(3)
    ds_write_b128 v250, {q(AC1)}
    {UCHK4 if U4 else UCHK1}
    v_and_b32 v1, 1, v1
    v_cmp_eq_u32 vcc, 0, v1
    s_cbranch_vccnz L_URE""")
    st.mark("lua")
    if SAFE: a("s_waitcnt lgkmcnt(0)")
    lds_signal(a, K_U)
    def rdu():
        for v in range(4):
            for t in range(2): a(f"ds_read_b128 {q(DAT+(v*2+t)*4)}, v10 offset:{t*4096+v*256}")
    spec_wait(K_U, "L_UW", rdu, 8)
    ini = f"""v_lshlrev_b32 v8, 16, v8
    v_and_b32 v12, 0xffff0000, v9
    v_lshlrev_b32 v9, 16, v9
    v_mul_f32 v8, {fhex(2.0**-20)}, v8
    v_mul_f32 v9, v9, v13
    v_fma_f32 v9, -v12, v14, v9
    v_add_f32 v{INI}, v9, v8
    v_sub_f32 v{INI+1}, v9, v8
    v_add_f32 v{INI+2}, v9, v8
    v_sub_f32 v{INI+3}, v9, v8
    v_sub_f32 v{INI+4}, v8, v9
    v_sub_f32 v{INI+5}, -v9, v8
    v_sub_f32 v{INI+6}, v8, v9
    v_sub_f32 v{INI+7}, -v9, v8""".split("\n")
    cv = lambda v: [f"v_cvt_pk_bf16_f32 v{OP2+i*4+v}, v{AC1+v*8+i}, v{AC1+v*8+4+i}" for i in range(4)]
    fillq = ini[:8]
    for v in range(4):
        if v >= 2: fillq += cv(v-2)
        for t in range(2):
            b = DAT + (v*2+t)*4
            a(f"s_waitcnt lgkmcnt({7-(v*2+t)})")
            cs = C1 + (16 if t else 8*(v >> 1))
            for c in range(2):
                acc = AC1 + (v*2+c)*4
                a(f"{MF} {q(acc)}, {q(b)}, {q(cs+4*c)}, {q(acc) if t else 0}")
                if fillq and B3A: a(fillq.pop(0))
    st.mark("luok")
    for x in fillq + cv(2) + ini[8:] + cv(3): a(x)
    for i in range(4):
        for c in range(2): a(f"{MF} {q(AC2+(i*2+c)*4)}, {q(OP2+i*4)}, {q(C2+4*c)}, 0")
    def s3(kap): return [f"{MF} {q(AC3+(rho*2+th)*4)}, {q(OP3+(rho*2+kap)*4)}, {q(C3+kap*8+th*4)}, {q(AC3+(rho*2+th)*4) if kap else q(INI+4*rho)}" for rho in range(2) for th in range(2)]
    for i in range(4):
        xr = AC2 + i*8; xi = xr + 4; t0 = TMP + (i & 1)*8
        M3 = s3(0)[2*(i-2):2*(i-2)+2] if i >= 2 and B3B else []
        for ph in range(2):
            sel = "op_sel:[0,1] op_sel_hi:[1,1]" if ph else "op_sel_hi:[1,0]"
            a(f"v_pk_mul_f32 {d(t0+2*ph)}, {d(xr+2*ph)}, {d(TWC+2*i)} {sel}")
            a(f"v_pk_mul_f32 {d(t0+4+2*ph)}, {d(xi+2*ph)}, {d(TWC+2*i)} {sel}")
        if M3 and B3B in (1, 4): a(M3[0])
        if M3 and B3B == 2: a(M3[0]); a(M3[1])
        for ph in range(2):
            sel = "op_sel:[0,1,0] op_sel_hi:[1,1,1]" if ph else "op_sel_hi:[1,0,1]"
            a(f"v_pk_fma_f32 {d(t0+2*ph)}, {d(xi+2*ph)}, {d(TWS+2*i)}, {d(t0+2*ph)} {sel} neg_lo:[1,0,0] neg_hi:[1,0,0]")
            a(f"v_pk_fma_f32 {d(t0+4+2*ph)}, {d(xr+2*ph)}, {d(TWS+2*i)}, {d(t0+4+2*ph)} {sel}")
        if M3 and B3B in (1, 4): a(M3[1])
        if M3 and B3B == 3: a(M3[0]); a(M3[1])
        for rho in range(2):
            for ph in range(2):
                a(f"v_cvt_pk_bf16_f32 v{OP3+(rho*2+(i>>1))*4+(i&1)*2+ph}, v{t0+2*ph+rho}, v{t0+4+2*ph+rho}")
    if B3B in (2, 3, 4): a('s_nop 7')
    for m in ([] if B3B else s3(0)) + s3(1): a(m)
    for rho in range(2):
        for th in range(2):
            acc = AC3 + (rho*2+th)*4; o = OUT + (rho*2+th)*2
            a(f"v_cvt_pk_bf16_f32 v{o}, v{acc}, v{acc+1}\nv_cvt_pk_bf16_f32 v{o+1}, v{acc+2}, v{acc+3}")
            a(f"buffer_store_dwordx2 {d(o)}, v11, s[40:43], s{65+rho} offen offset:{th*512} {YFL.replace('_', ' ')}")
    st.mark("lend")
    if DLE: a(f"s_sleep {DLE}")
    st.dump()
    a("s_endpgm")

def c_main(a, st):
    C1, C2, TWC, TWS, C3A, C3B, DAT, AC1, OP2, AC2 = 16, 48, 64, 80, 96, 104, 112, 144, 160, 168
    OP3, TMP, AC3, ACE, OUT, MSK = 112, 128, 144, 160, 200, 228
    a(f"C_MAIN:\ns_setprio {CPRIO}")
    common_setup(a, st, -1)
    if PT:
        a(f"""s_cmp_eq_u32 s3, 1
        s_cbranch_scc0 C_NOPT
        v_lshlrev_b32 v247, {PT}, v0
        s_lshl_b32 s22, s49, 7
        buffer_load_dword v245, v247, {WS}, s22 offen
        buffer_load_dword v246, v247, s[40:43], s22 offen
        s_load_dword s70, s[8:9], 0
        C_NOPT:""")
    a(f"""s_lshl_b32 s60, s3, 8
    s_mul_i32 s61, s2, s3
    s_add_u32 s59, s61, 512
    s_cmp_eq_u32 s3, 0
    s_cselect_b32 s62, 1024, s60
    s_cselect_b32 s59, 0, s59
    s_cselect_b32 s58, s2, 0
    s_cselect_b32 s65, 0, 0xbe800000
    s_cselect_b64 s[66:67], -1, 0
    v_and_b32 v14, 1, v0
    v_cmp_eq_u32 vcc, 1, v14
    v_mov_b32 v4, 0xffff
    v_mov_b32 v5, 0xffff0000
    v_cndmask_b32 v14, v4, v5, vcc""")
    for r in range(4): a(f"v_cmp_eq_u32 vcc, {r}, v15\nv_cndmask_b32 v{MSK+r}, 0, v14, vcc")
    a(f"""v_lshrrev_b32 v10, 5, v0
    v_mov_b32 v11, s61
    v_mov_b32 v12, s59
    v_mad_u32_u24 v11, v10, s60, v11
    v_mad_u32_u24 v12, v10, s62, v12
    v_cvt_f32_u32 v11, v11
    v_cvt_f32_u32 v12, v12
    v_cvt_f32_u32 v13, s60
    v_cvt_f32_u32 v14, s62
    v_mul_f32 v11, {fhex(1/2048)}, v11
    v_mul_f32 v12, {fhex(1/2048)}, v12
    v_mul_f32 v13, {fhex(2/2048)}, v13
    v_mul_f32 v14, {fhex(2/2048)}, v14""")
    for t in range(4):
        for c in range(2):
            b = C1 + (t*2 + c)*4
            a(f"v_cos_f32 v{b+3}, v{11+c}")
            if t < 3: a(f"v_add_f32 v{11+c}, v{11+c}, v{13+c}")
            a(f"v_cvt_pk_bf16_f32 v{b+3}, v{b+3}, v{b+3}")
            for r in range(4): a(f"v_and_b32 v{b+r}, v{b+3}, v{MSK+r}")
    a(f"v_mul_f32 v10, {fhex(1/32)}, v8\nv_mul_f32 v11, 4.0, v9\nv_mul_f32 v12, v11, v10")
    for i in range(4):
        a(f"v_cos_f32 v{TMP+i}, v12\nv_sin_f32 v{TMP+4+i}, v12")
        if i < 3: a("v_add_f32 v12, v12, v10")
    a("v_lshlrev_b32 v13, 31, v0\nv_lshrrev_b32 v14, 16, v13\nv_or_b32 v13, v13, v14")
    a(f"""v_cvt_pk_bf16_f32 v{C2}, v{TMP}, v{TMP+1}
    v_cvt_pk_bf16_f32 v{C2+1}, v{TMP+2}, v{TMP+3}
    v_cvt_pk_bf16_f32 v{C2+4}, -v{TMP+4}, -v{TMP+5}
    v_cvt_pk_bf16_f32 v{C2+5}, -v{TMP+6}, -v{TMP+7}
    s_brev_b32 s68, 1""")
    for c in range(2):
        b = C2 + 4*c
        a(f"v_xor_b32 v{b+2}, v{b}, v13\nv_xor_b32 v{b+3}, v{b+1}, v13")
        for r in range(4): a(f"v_xor_b32 v{b+8+r}, s68, v{b+r}")
    f = Asm()
    CTM = 208
    f(f"v_cvt_f32_u32 v14, s58\nv_mul_f32 v14, {fhex(1/512)}, v14")
    for tau in range(2):
        f(f"v_mul_f32 v13, {fhex(1/512)}, v8")
        if tau: f(f"v_add_f32 v13, {fhex(16/512)}, v13")
        f("v_mul_f32 v12, v11, v13")
        for i in range(4):
            k0 = tau*4 + i; k1 = 8 + k0
            f(f"""v_cos_f32 v{TWC+k0}, v12
            v_sin_f32 v{TWS+k0}, v12
            v_add_f32 v15, v12, v14
            v_cos_f32 v{TWC+k1}, v15
            v_sin_f32 v{TWS+k1}, v15""")
            if i < 3: f("v_add_f32 v12, v12, v13")
    f("v_add_f32 v10, v10, v10\nv_mul_f32 v12, v11, v10")
    for i in range(4):
        f(f"""v_cos_f32 v{CTM}, v12
        v_sin_f32 v{CTM+1}, v12
        v_add_f32 v15, s65, v12
        v_cos_f32 v{CTM+2}, v15
        v_sin_f32 v{CTM+3}, v15""")
        if i < 3: f("v_add_f32 v12, v12, v10")
        f(f"""v_cvt_pk_bf16_f32 v{C3A+i}, v{CTM}, v{CTM+1}
        v_cvt_pk_bf16_f32 v{C3A+4+i}, -v{CTM+1}, v{CTM}
        v_cvt_pk_bf16_f32 v{C3B+i}, v{CTM+2}, v{CTM+3}
        v_cvt_pk_bf16_f32 v{C3B+4+i}, -v{CTM+3}, v{CTM+2}""")
    for r in range(8): f(f"v_and_b32 v{C3A+r}, v{C3A+r}, v212\nv_and_b32 v{C3B+r}, v{C3B+r}, v213")
    fill = list(f.lines)
    fill2 = f"""v_lshrrev_b32 v14, 5, v0
    v_lshlrev_b32 v11, 16, v3
    v_lshl_add_u32 v11, v2, 2, v11
    v_and_b32 v12, 6, v2
    v_xor_b32 v12, v12, v3
    v_lshlrev_b32 v12, 4, v12
    v_lshl_add_u32 v4, v2, 7, v12
    v_add_u32 v4, {XB}, v4
    v_xor_b32 v5, 64, v4
    v_bfe_u32 v12, v0, 2, 3
    v_bfe_u32 v13, v0, 1, 1
    v_and_b32 v15, 6, v12
    v_xor_b32 v13, v13, v15
    v_lshlrev_b32 v13, 4, v13
    v_lshl_add_u32 v13, v12, 7, v13
    v_and_b32 v15, 1, v0
    v_lshl_add_u32 v13, v15, 3, v13
    s_lshl_b32 s22, s3, 5
    v_xor_b32 v13, s22, v13
    v_lshl_add_u32 v6, v14, 12, v13
    v_lshl_add_u32 v8, v14, 11, v13
    s_and_b32 s60, s2, 15
    s_lshl_b32 s60, s60, 4
    s_bfe_u32 s61, s2, 0x20004
    s_lshl2_add_u32 s60, s61, s60
    s_lshr_b32 s61, s2, 6
    s_add_u32 s60, s60, s61
    s_lshl_b32 s60, s60, 6
    s_lshl_b32 s61, s3, 19
    s_add_u32 s61, s61, s60
    s_add_u32 s60, s60, {128*16384}
    v_lshlrev_b32 v241, 2, v2
    v_lshl_add_u32 v13, v14, 5, v241"""
    late = f"""v_lshlrev_b32 v9, 8, v14
    v_lshl_add_u32 v9, v2, 4, v9
    s_lshl2_add_u32 s53, s51, s3
    s_lshl_b32 s63, s53, 5
    s_add_u32 s63, s63, s50
    s_lshl_b32 s64, s63, 6
    s_add_u32 s64, s64, {ZP_OFF}
    s_lshl_b32 s63, s63, 9
    s_add_u32 s63, s63, {KVP_OFF}
    s_mov_b32 s22, 0x3f803f80
    v_mov_b32 v232, s22
    v_mov_b32 v233, s22
    v_mov_b32 v234, s22
    v_mov_b32 v235, s22
    s_mov_b32 s66, {fhex(1.4426950408889634)}
    s_mov_b32 s67, s66
    s_mov_b32 s65, {fhex(1e-6)}"""
    later = f"""s_mov_b64 s[36:37], s[8:9]
    s_mov_b32 s38, 0x80000
    s_mov_b32 s39, s31
    s_lshl_b32 s21, s3, 14
    s_lshl_b32 s22, s55, 7
    s_add_u32 s21, s21, s22
    v_lshrrev_b32 v242, 3, v0
    v_and_b32 v243, 7, v0
    v_and_b32 v230, 6, v242
    v_xor_b32 v243, v243, v230
    v_lshlrev_b32 v243, 4, v243
    v_and_b32 v230, 4, v242
    v_add_u32 v242, v242, v230
    v_lshl_add_u32 v242, v242, 10, v243
    v_lshlrev_b32 v243, 4, v3
    v_lshrrev_b32 v11, 2, v2
    v_lshl_add_u32 v11, v14, 2, v11
    v_lshlrev_b32 v11, 7, v11
    v_and_b32 v230, 3, v2
    v_lshl_add_u32 v11, v230, 4, v11
    v_and_b32 v230, 1, v3
    v_lshl_add_u32 v11, v230, 3, v11
    s_lshl_b32 s58, s53, 11
    s_add_u32 s58, s58, {KVF_OFF}"""
    def F(n):
        for _ in range(n):
            if fill: a(fill.pop(0))
    a(f"""v_cmp_gt_u32 vcc, 8, v2
    s_andn2_b64 s[22:23], s[66:67], vcc
    s_and_b64 s[66:67], s[66:67], vcc
    v_cndmask_b32 v212, -1, 0, s[22:23]
    v_cndmask_b32 v213, -1, 0, s[66:67]
    v_lshrrev_b32 v214, 5, v0
    v_lshlrev_b32 v214, 10, v214
    v_lshl_add_u32 v214, v2, 5, v214
    v_and_b32 v12, 16, v0
    v_add_u32 v214, v214, v12
    v_add_u32 v214, {BXB}, v214""")
    F(PRE)
    st.mark("cconst")
    a(f"""s_cmp_lt_u32 s52, {nclr()}
    s_cbranch_scc0 C_NOGO
    s_and_b32 s22, s52, 1
    s_lshl_b32 s22, s22, 7
    s_mov_b64 exec, 1
    s_waitcnt vmcnt(2)
    buffer_atomic_add v255, v7, s[44:47], s22 offen sc1
    s_mov_b64 exec, -1
    s_waitcnt vmcnt(1)
    s_branch C_BXOK
    C_NOGO:
    s_waitcnt vmcnt(0)
    C_BXOK:""")
    lds_signal(a, K_BX)
    F(12)
    lds_wait(a, K_BX, "C_BXW")
    st.mark("cbx")
    for u in range(2):
        for t in range(4): a(f"ds_read_b128 {q(DAT+(u*4+t)*4)}, v214 offset:{t*2048+u*512}")
    F(8)
    for u in range(2):
        for t in range(4):
            a(f"s_waitcnt lgkmcnt({7-(u*4+t)})")
            for c in range(2):
                acc = AC1 + (u*2+c)*4
                a(f"{MF} {q(acc)}, {q(DAT+(u*4+t)*4)}, {q(C1+(t*2+c)*4)}, {q(acc) if t else 0}")
                F(NF)
    F(6)
    for u in range(2):
        for rho in range(2):
            s = AC1 + (u*2+rho)*4
            a(f"v_cvt_pk_bf16_f32 v{OP2+rho*4+u*2}, v{s}, v{s+1}\nv_cvt_pk_bf16_f32 v{OP2+rho*4+u*2+1}, v{s+2}, v{s+3}")
    for rho in range(2):
        for tau in range(2):
            for c in range(2): a(f"{MF} {q(AC2+((rho*2+tau)*2+c)*4)}, {q(OP2+rho*4)}, {q(C2+(tau*2+c)*4)}, 0"); F(NF)
    F(1000)
    def st3(rho, tau):
        for c in range(2):
            acc = AC3 + (tau*2+c)*4
            a(f"{MF} {q(acc)}, {q((C3B if rho else C3A)+4*c)}, {q(OP3+(rho*2+tau)*4)}, {q(acc) if rho else 0}")
        if tau == 0:
            for c in range(2):
                acc = ACE + 4*c
                a(f"{MF} {q(acc)}, {q((C3A if rho else C3B)+4*c)}, {q(OP3+(rho*2)*4)}, {q(acc) if rho else 0}")
    prev = None
    for rho in range(2):
        for tau in range(2):
            xr = AC2 + ((rho*2+tau)*2)*4; xi = xr + 4; k = rho*8 + tau*4
            t0 = TMP + ((rho*2+tau) & 1)*8
            for h in (0, 2):
                a(f"v_pk_mul_f32 {d(t0+h)}, {d(xr+h)}, {d(TWC+k+h)}")
                a(f"v_pk_mul_f32 {d(t0+4+h)}, {d(xi+h)}, {d(TWC+k+h)}")
            if prev: st3(*prev)
            for h in (0, 2):
                a(f"v_pk_fma_f32 {d(t0+h)}, {d(xi+h)}, {d(TWS+k+h)}, {d(t0+h)}")
                a(f"v_pk_fma_f32 {d(t0+4+h)}, {d(xr+h)}, {d(TWS+k+h)}, {d(t0+4+h)} neg_lo:[1,0,0] neg_hi:[1,0,0]")
            for i in range(4): a(f"v_cvt_pk_bf16_f32 v{OP3+(rho*2+tau)*4+i}, v{t0+i}, v{t0+4+i}")
            prev = (rho, tau)
    st3(*prev)
    st.mark("cb1")
    a(fill2)
    for tau in range(2):
        for i in range(4): a(f"v_cvt_pk_bf16_f32 v{OUT+tau*4+i}, v{AC3+tau*8+i}, v{AC3+tau*8+4+i}")
    a(f"v_cvt_pk_bf16_f32 v215, v{ACE}, v{ACE+4}")
    for k in range(8): a(f"v_and_b32 v{OUT+k}, -2, v{OUT+k}")
    a("v_and_b32 v215, -2, v215")
    AK, AV, AQ = 144, 160, 112
    pos = [int(ch) for ch in str(TS).zfill(4)]
    a(f"s_mov_b32 s17, {pos[0] | pos[1] << 8 | pos[2] << 16 | pos[3] << 24}\ns_lshl_b32 s22, s3, 3\ns_lshr_b32 s17, s17, s22\ns_and_b32 s17, s17, 255")
    def thook(k, cond=None):
        if k in pos:
            a(f"s_cmp_eq_u32 s17, {k}\ns_cbranch_scc0 C_TN{k}\ns_mov_b32 s17, 99\ns_call_b64 s[70:71], C_TST\nC_TN{k}:")
    thook(0)
    st.mark("cst")
    SET = [0]
    XF = lambda ks, R: 16 + SET[0]*48 + (ks*4 + R)*4
    WF = lambda ks, p: 48 + SET[0]*48 + (ks*2 + p)*4
    def reads(ks):
        L = []
        o = SET[0]
        def w(p):
            for eta in range(2): L.append(f"ds_read_b64_tr_b16 {d(WF(ks,p)+2*eta)}, v6 offset:{o*16384 + (4*ks+eta)*2048 + p*1024}")
        w(0)
        for R in range(4): L.append(f"ds_read_b128 {q(XF(ks,R))}, v{4+ks} offset:{o*8192 + R*2048}")
        w(1)
        return L
    def mf(ks, p): return [f"{MF} {q(AK+(p*4+R)*4)}, {q(XF(ks,R))}, {q(WF(ks,p))}, {q(AK+(p*4+R)*4)}" for R in range(4)]
    def chunk(newset, extra=""):
        SET[0] = 1 - newset; M = mf(0, 0) + mf(0, 1) + mf(1, 0) + mf(1, 1)
        SET[0] = newset; Rd = reads(0) + reads(1)
        k = 0
        for i, m in enumerate(M):
            a(m)
            for _ in range(RPM):
                if Rd:
                    if k == 14: a("s_waitcnt lgkmcnt(8)")
                    a(Rd.pop(0)); k += 1
            if i == 11: a(extra)
        a("s_waitcnt lgkmcnt(0)")
    adv = "v_add_u32 v4, 0x4000, v4\nv_add_u32 v5, 0x4000, v5\nv_xor_b32 v6, 0x8000, v6"
    a("s_mov_b32 s68, 1\ns_barrier")
    st.mark("cf0")
    SET[0] = 0
    for k, r in enumerate(reads(0) + reads(1)):
        if k == 14: a("s_waitcnt lgkmcnt(8)")
        a(r)
    for r in range(0, 32, 2): a(f"v_pk_mul_f32 {d(AK+r)}, {d(254)}, 0")
    a(late)
    thook(5)
    a("s_waitcnt lgkmcnt(0)\nC_LOOP:\ns_barrier")
    assert TPOS in (0, 1) and SIG1 in (2, 4, 6)
    chunk(1, adv)
    thook(1)
    a(f"""s_cmp_lg_u32 s68, {SIG1-1}
    s_cbranch_scc1 C_NOW
    s_waitcnt vmcnt(0)
    C_NOW:
    s_barrier""")
    chunk(0, "s_add_u32 s68, s68, 2")
    thook(2)
    a("s_cmp_lt_u32 s68, 7\ns_cbranch_scc1 C_LOOP")
    SET[0] = 0
    KK = mf(0, 0) + mf(1, 0)
    for m in KK[:K6]: a(m)
    V6 = KK[K6:] + mf(0, 1) + mf(1, 1)
    VX = V6[8:]; V6 = V6[:8]
    SET[0] = 1
    a("s_barrier")
    st.mark("cl1")
    if DLM: a(f"s_sleep {DLM}")
    R0, R1 = reads(0), reads(1)
    RR = R0[:6] + R1[:6]
    for i, m in enumerate(V6):
        for r in RR[2*i:2*i+2]: a(r)
        a(m)
    M = mf(0, 0)
    for i in range(4): a(f"s_waitcnt lgkmcnt({9-i})"); a(M[i])
    for r in R0[6:] + R1[6:]: a(r)
    M = mf(1, 0)
    for i in range(4): a(f"s_waitcnt lgkmcnt({7-i})"); a(M[i])
    a("s_waitcnt lgkmcnt(0)")
    lds_signal(a, K_C7)
    KP, VP, KV, ZZ, KO = 208, 216, 236, 244, 248
    MV = VX + mf(0, 1) + mf(1, 1)
    for m in MV[:2]: a(m)
    MV = MV[2:]
    def phi_list(src, dst, tmp):
        L = []
        for g4 in range(0, 16, 4):
            L += [f"v_pk_mul_f32 {d(tmp+g4+h)}, {d(src+g4+h)}, s[66:67]" for h in (0, 2)]
        for h in range(16):
            L += [f"v_exp_f32 v{tmp+h}, v{tmp+h} clamp", f"v_max_f32 v{src+h}, s65, v{src+h}"]
        for h in range(0, 16, 2): L += [f"v_pk_add_f32 {d(src+h)}, {d(src+h)}, {d(tmp+h)}"]
        for h in range(8): L += [f"v_cvt_pk_bf16_f32 v{dst+h}, v{src+2*h}, v{src+2*h+1}"]
        return L
    P = phi_list(AK, KP, 128)
    V = [f"v_cvt_pk_bf16_f32 v{VP+h}, v{AV+2*h}, v{AV+2*h+1}" for h in range(8)]
    P = P[:40] + V + P[40:]
    for i, x in enumerate(P):
        a(x)
        if i % 2 == 1 and MV: a(MV.pop(0))
        if i == len(P) - 3: a(f"{MF} {q(KV)}, {q(KP)}, {q(VP)}, 0")
    a(f"""{MF} {q(ZZ)}, v[232:235], {q(KP)}, 0
    {MF} {q(KV)}, {q(KP+4)}, {q(VP+4)}, {q(KV)}
    {MF} {q(ZZ)}, v[232:235], {q(KP+4)}, {q(ZZ)}
    v_subrev_u32 v4, 0xc000, v4
    v_subrev_u32 v5, 0xc000, v5
    v_cvt_pk_bf16_f32 v{KO}, v{KV}, v{KV+1}
    v_cvt_pk_bf16_f32 v{KO+1}, v{KV+2}, v{KV+3}
    v_min_u32 v{KO+2}, -2, v{KO}
    v_min_u32 v{KO+3}, -2, v{KO+1}
    v_min_u32 v{KO}, -2, v{KO}
    v_min_u32 v{KO+1}, -2, v{KO+1}
    v_min_u32 v{ZZ}, -2, v{ZZ}
    v_permlane16_swap_b32 v{KO+1}, v{KO+3}
    v_permlane16_swap_b32 v{KO}, v{KO+2}
    s_mov_b32 exec_lo, 0xffff
    s_mov_b32 exec_hi, 0xffff
    buffer_store_dwordx4 {q(KO)}, v9, {WS}, s63 offen sc1
    s_mov_b32 exec_hi, 0
    buffer_store_dword v{ZZ}, v241, {WS}, s64 offen sc1
    s_mov_b64 exec, -1""")
    st.mark("t0")
    class LQ:
        def __init__(self): self.o = []; self.seen = set()
        def issue(self, txt, tag):
            if len(self.o) >= 15: self.drain(10)
            a(txt); self.o.append(tag); self.seen.add(tag)
        def drain(self, n):
            if len(self.o) > n: a(f"s_waitcnt lgkmcnt({n})"); self.o = self.o[len(self.o)-n:] if n else []
        def need(self, *tags):
            idx = [i for i, t in enumerate(self.o) if t in tags]
            if idx: self.drain(len(self.o) - 1 - max(idx))
    lq = LQ()
    XS = [16 + 16*k for k in range(6)] + [144 + 16*k for k in range(4)]
    xs = lambda s_: XS[s_ % NPRE]
    wq = lambda s_: (128 if (s_ >> 2) % 2 == 0 else 208) + 4*(s_ & 3)
    def xr(s_): return [(f"ds_read_b128 {q(xs(s_)+4*R)}, v{4+(s_&1)} offset:{(s_>>1)*8192 + R*2048}", f"x{s_}") for R in range(4)]
    def wr_(g_): return [(f"ds_read_b64_tr_b16 {d(wq(s_)+2*eta)}, v8 offset:{g_*16384 + ((s_>>1)&1)*8192 + (4*(s_&1)+eta)*1024}", f"w{s_}") for s_ in range(4*g_, 4*g_+4) for eta in range(2)]
    lq.issue(f"ds_read_b32 v253, v254 offset:{4*K_Q}", "c")
    for s_ in range(2):
        for t in xr(s_): lq.issue(*t)
    lq.need("c")
    a("v_cmp_ne_u32 vcc, 4, v253\ns_cbranch_vccnz C_QS0\nC_QR0:")
    st.mark("cq0")
    for t in wr_(0): lq.issue(*t)
    pend = []
    for s_ in range(2, NPRE): pend += xr(s_)
    for g_ in range(4):
        if g_ < 3: lq.issue(f"ds_read_b32 v253, v254 offset:{4*(K_Q+1+g_)}", "c")
        for s_ in range(4*g_, 4*g_+4):
            if s_ & 3 == 1 and g_ < 3:
                lq.need("c")
                a(f"v_cmp_ne_u32 vcc, 4, v253\ns_cbranch_vccnz C_QS{g_+1}\nC_QR{g_+1}:")
                st.mark(f"cq{g_+1}")
                pend += wr_(g_+1)
            while any(t[1] in (f"x{s_}", f"w{s_}") for t in pend): lq.issue(*pend.pop(0))
            lq.need(f"x{s_}", f"w{s_}")
            if s_ == 8: lq.issue(f"s_mov_b64 exec, 1\nds_add_u32 v254, v255 offset:{4*K_G1}\ns_mov_b64 exec, -1", "a")
            if s_ == 4: lq.issue(f"s_mov_b64 exec, 1\nds_add_u32 v254, v255 offset:{4*K_G0}\ns_mov_b64 exec, -1", "a")
            if s_ >= 1 and s_ - 1 + NPRE < 16: pend += xr(s_ - 1 + NPRE)
            for R in range(4):
                a(f"{MF} {q(AQ+R*4)}, {q(wq(s_))}, {q(xs(s_)+4*R)}, {q(AQ+R*4) if s_ else 0}")
                for _ in range(2):
                    if pend: lq.issue(*pend.pop(0))
    assert not lq.o and not pend
    st.mark("cp2")
    QP, PP, ZL = 96, 16, 80
    def pl(p0, p1, fl):
        for p in range(p0, p1):
            if p % 2 == 0: a(f"s_add_u32 s22, s60, {p*1024}\ns_and_b32 s22, s22, 0x3fff\ns_add_u32 s22, s22, s58")
            a(f"buffer_load_dwordx4 {q(PP+4*p)}, v7, {WS}, s22 offen offset:{(p&1)*1024} {fl}")
    lds_signal(a, K_X)
    a(later)
    a(f"ds_read_b32 v1, v254 offset:{4*K_TASK}")
    for x in phi_list(AQ, QP, 128): a(x)
    lds_wait(a, K_X, "C_XW")
    def cwo(poss):
        for pos in poss:
            a(f"""s_add_u32 s5, s57, {(pos+2) & 7}
            s_and_b32 s5, s5, 7
            s_lshl_b32 s5, s5, 16
            s_add_u32 m0, s69, {XB + 16384 + pos*8192}
            s_add_u32 s5, s5, s21
            buffer_load_dwordx4 v242, s[36:39], s5 offen lds
            s_add_u32 s5, s5, 3072
            buffer_load_dwordx4 v242, s[36:39], s5 offen offset:1024 lds""")
    if RCL:
        if TEX: a("v_readfirstlane_b32 s56, v1\ns_cmp_lt_u32 s56, 201\ns_cbranch_scc0 C_NORD")
        else: a("v_readfirstlane_b32 s56, v1\ns_cmp_lt_u32 s56, 201\ns_cbranch_scc0 C_NORD")
        lds_wait(a, K_RD, "C_RDW", 1)
        if not W67E: cwo((6, 7))
        a("C_NORD:")
    fin = f"""buffer_load_dwordx4 {q(ZL)}, v243, {WS}, s58 offen offset:1024 sc1
    buffer_load_dwordx2 {d(ZL+6)}, v11, {WS}, s58 offen sc1"""
    if WL:
        a("s_cmp_gt_u32 s56, 128\ns_cbranch_scc1 C_WN")
        cwo(range(WLN))
        a(fin + "\ns_waitcnt vmcnt(0)\ns_branch C_WJ\nC_WN:")
    cwo(range(FF - 1 if FF else 6))
    if FF: a(fin); cwo(range(FF - 1, 6))
    a("C_WJ:")
    st.mark("cpi")
    DEN, NUM = 112, 128
    a(f"v_and_b32 v12, 1, v3\nv_lshl_add_u32 v12, v12, 14, v9")
    FS = 2 if MAP == 48 else 7
    FO = F0_OFF + (OF_OFF if MAP == 48 else OF2_OFF)
    a(f"""s_lshl_b32 s61, s50, 16
    s_lshl_b32 s62, s53, 9
    s_add_u32 s61, s61, s62
    s_add_u32 s61, s61, {O_OFF}
    s_add_u32 s62, s61, 0x8000
    s_lshl_b32 s6, s54, {5+FS}
    s_add_u32 s6, s6, {FO}
    s_lshl_b32 s7, s50, 5
    s_add_u32 s7, s7, s53
    s_lshl_b32 s7, s7, {FS}
    s_add_u32 s7, s7, {FO}""")
    if MAP == 48: a(f"ds_read_b64 v[238:239], v254 offset:{4*K_MODE}")
    if FF: a(f"s_waitcnt vmcnt({2*(7-FF)})")
    else: a(fin + "\ns_waitcnt vmcnt(0)")
    a(f"""C_PF:
    v_max3_u32 v1, v{ZL}, v{ZL+1}, v{ZL+2}
    v_max3_u32 v14, v{ZL+3}, v{ZL+6}, v{ZL+7}
    v_cvt_pk_bf16_f32 v{ZL+4}, v{ZL}, v{ZL+1}
    v_max_u32 v1, v1, v14
    v_cvt_pk_bf16_f32 v{ZL+5}, v{ZL+2}, v{ZL+3}
    v_cmp_eq_u32 vcc, -1, v1
    s_cbranch_vccnz C_PFRE""")
    st.mark("ckv")
    if OPRIO: a("s_setprio 3")
    for R in range(4): a(f"{M16} {q(DEN+4*R)}, {d(ZL+4)}, {d(QP+2*R)}, 0")
    for R in range(4): a(f"{M16} {q(NUM+4*R)}, {d(ZL+6)}, {d(QP+2*R)}, 0")
    if MAP == 48: a("s_waitcnt lgkmcnt(0)\nv_readfirstlane_b32 s75, v238\nv_readfirstlane_b32 s73, v239")
    for R in range(4): a(f"v_add_f32 v{DEN+4*R}, s65, v{DEN+4*R}")
    for R in range(4): a(f"v_rcp_f32 v{DEN+4*R}, v{DEN+4*R}")
    if MAP == 48: a("s_cmp_eq_u32 s73, 4\ns_cbranch_scc0 C_MW\nC_MWR:\ns_nop 2")
    OO = 244
    for pr in range(2):
        for R in (2*pr, 2*pr+1):
            for h in (0, 2): a(f"v_pk_mul_f32 {d(NUM+4*R+h)}, {d(NUM+4*R+h)}, {d(DEN+4*R)} op_sel_hi:[1,0]")
            a(f"v_cvt_pk_bf16_f32 v{OO+2*R}, v{NUM+4*R}, v{NUM+4*R+1}\nv_cvt_pk_bf16_f32 v{OO+2*R+1}, v{NUM+4*R+2}, v{NUM+4*R+3}")
        o = OO + 4*pr
        a(f"v_permlane16_swap_b32 v{o}, v{o+2}\nv_permlane16_swap_b32 v{o+1}, v{o+3}")
        if MAP != 48: a(f"buffer_store_dwordx4 {q(o)}, v12, {WS}, s{61+pr} offen sc1")
    if MAP == 48:
        a(f"""s_cmp_eq_u32 s75, 0
        s_cbranch_scc0 C_OSLOW
        buffer_store_dwordx4 {q(OO)}, v12, {WS}, s61 offen
        buffer_store_dwordx4 {q(OO+4)}, v12, {WS}, s62 offen
        C_OST:""")
    st.mark("co")
    if OPRIO: a(f"s_setprio {CPRIO}")
    a(f"""s_lshl_b32 s22, s3, 5
    v_xor_b32 v8, s22, v8
    v_add_u32 v8, {XB + 16384}, v8
    v_xor_b32 v9, 32, v8
    v_xor_b32 v10, 64, v8
    v_xor_b32 v11, 96, v8
    v_lshlrev_b32 v13, {FS}, v0
    s_lshl2_add_u32 s58, s54, s3
    s_lshl_b32 s61, s58, 15
    s_lshl_b32 s58, s58, 14
    s_add_u32 s58, s58, {O_OFF}
    s_lshl_b32 s60, s57, 11
    s_add_u32 s60, s60, 4096
    s_lshl_b32 s22, s55, 7
    s_add_u32 s61, s61, s22
    v_lshlrev_b32 v12, 11, v2
    v_and_b32 v14, 1, v3
    v_lshl_add_u32 v12, v14, 5, v12
    v_lshrrev_b32 v14, 1, v3
    v_lshl_add_u32 v12, v14, 4, v12""")
    OF, ACC = 16, 128
    WB = [80, 96, 112, 160, 176, 192, 208, 224, 144]
    wb = lambda p: WB[p % NWO]
    def wreads(p): return [(f"ds_read_b64_tr_b16 {d(wb(p)+4*t+2*eta)}, v{8+t} offset:{p*4096 + eta*1024}", f"o{p}") for t in range(4) for eta in range(2)]
    a("s_cmp_eq_u32 s75, 0\ns_waitcnt vmcnt(0)")
    st.mark("cab")
    if MAP == 48:
        a(f"""s_mov_b64 exec, 1
        s_cbranch_scc0 C_FSLOW
        buffer_store_dword v255, v7, {WS}, s7 offen
        C_FST:
        s_mov_b64 exec, -1""")
    else: a(f"s_mov_b64 exec, 1\nbuffer_store_dword v255, v7, {WS}, s7 offen sc1\ns_mov_b64 exec, -1")
    if UGATE == 2: lds_signal(a, K_CO)
    if WL:
        a("s_cmp_gt_u32 s56, 128\ns_cbranch_scc1 C_WN2")
        cwo(range(WLN, 6))
        a("s_waitcnt vmcnt(0)\nC_WN2:")
    lds_signal(a, K_WO)
    lds_wait(a, K_WO, "C_WW")
    if W67: lds_wait(a, K_W67, "C_WW2")
    st.mark("cww")
    for p in range(0, 4):
        for t in wreads(p): lq.issue(*t)
    a(f"s_mov_b32 exec_hi, 0\nbuffer_load_dword v1, v13, {WS}, s6 offen sc1\ns_mov_b32 exec_hi, -1")
    for p in range(4, NWO):
        for t in wreads(p): lq.issue(*t)
    a(f"""s_mov_b32 exec_hi, 0
    C_OP:
    s_waitcnt vmcnt(0)
    v_cmp_ne_u32 vcc, 1, v1
    s_cbranch_vccnz C_OPRE
    s_mov_b64 exec, -1""")
    st.mark("cof")
    if UGATE == 3: lq.issue(f"s_mov_b64 exec, 1\nds_add_u32 v254, v255 offset:{4*K_CO}\ns_mov_b64 exec, -1", "a")
    pl(0, OIL, OFL)
    iss = OIL
    for p in range(16):
        if p >= 1 and iss < 16: pl(iss, iss+2, OFL); iss += 2
        if iss == 16:
            lq.issue(f"s_mov_b64 exec, 1\nds_add_u32 v254, v255 offset:{4*K_OI}\ns_mov_b64 exec, -1", "a")
            st.mark("coi"); iss = 17
        a(f"s_waitcnt vmcnt({min(iss, 16)-1-p})")
        lq.need(f"o{p}")
        if p == 0: st.mark("cg0")
        R = wreads(p-1+NWO) if p >= 1 and p-1+NWO < 16 else []
        for t in range(4):
            a(f"{MF} {q(ACC+4*t)}, {q(wb(p)+4*t)}, {q(OF+4*p)}, {q(ACC+4*t) if p else 0}")
            for r in R[2*t:2*t+2]: lq.issue(*r)
    st.mark("cg")
    for pr in range(2):
        o = 144 + pr*4
        for t in range(2):
            acc = ACC + (pr*2+t)*4
            a(f"v_cvt_pk_bf16_f32 v{o+2*t}, v{acc}, v{acc+1}\nv_cvt_pk_bf16_f32 v{o+2*t+1}, v{acc+2}, v{acc+3}")
        a(f"v_permlane16_swap_b32 v{o}, v{o+2}\nv_permlane16_swap_b32 v{o+1}, v{o+3}")
        a(f"buffer_store_dwordx4 {q(o)}, v12, s[40:43], s61 offen offset:{64*pr} {OUTFL.replace('_', ' ')}")
    st.dump()
    a("s_endpgm")
    a("C_TST:")
    for k in range(8): a(f"buffer_store_dword v{OUT+k}, v11, {WS}, s61 offen sc1\ns_add_u32 s61, s61, {0x4000 if k != 3 else 0x40000-3*0x4000}")
    a(f"""s_cmp_eq_u32 s3, 0
    s_cbranch_scc0 C_TRET2
    s_mov_b32 exec_lo, 0xff
    s_mov_b32 exec_hi, 0xff
    buffer_store_dword v215, v13, {WS}, s60 offen sc1
    s_mov_b64 exec, -1
    C_TRET2:
    s_setpc_b64 s[70:71]
    C_OPRE:""")
    spin_check(a, OSLP if MAP == 48 else 2)
    a(f"buffer_load_dword v1, v13, {WS}, s6 offen sc1\ns_branch C_OP")
    for g_ in range(4):
        lds_wait(a, K_Q+g_, f"C_QS{g_}")
        a(f"s_branch C_QR{g_}")
    if RCL and not W67E:
        a("L_R67:\ns_mov_b64 exec, 1\ns_brev_b32 s5, 2")
        for k in range(4): a(f"buffer_load_dword v203, v206, {WS}, s5 offen")
        a("s_mov_b64 exec, -1\ns_branch L_R68")
    for lbl in RETRY: a(f"{lbl}R:\ns_waitcnt lgkmcnt(0)\ns_branch {lbl}")
    a("L_REDRE:")
    spin_check(a, RSLP, 100)
    a("s_branch L_RED")
    a("L_URE:")
    if UGATE != 1: lds_wait(a, K_OI, "L_URG", 1)
    spin_check(a, USLP)
    a("s_waitcnt lgkmcnt(0)\ns_branch L_UL")
    for P in "BN":
        a(f"L_H1RE{P}:")
        spin_check(a, PSLEEP)
        a(f"buffer_load_dword v205, v250, {WS}, 0 offen sc1\ns_waitcnt vmcnt(0)\ns_branch L_H1{P}")
    a("C_PFRE:")
    spin_check(a, FSLP, 100)
    a(fin + "\ns_waitcnt vmcnt(0)\ns_branch C_PF")
    if MAP == 48:
        lds_wait(a, K_H1, "C_MW")
        a(f"""ds_read_b32 v238, v254 offset:{4*K_MODE}
        s_waitcnt lgkmcnt(0)
        v_readfirstlane_b32 s75, v238
        s_branch C_MWR
        C_OSLOW:
        buffer_store_dwordx4 {q(OO)}, v12, {WS}, s61 offen sc1
        buffer_store_dwordx4 {q(OO+4)}, v12, {WS}, s62 offen sc1
        s_branch C_OST
        C_FSLOW:
        buffer_store_dword v255, v7, {WS}, s7 offen sc1
        s_branch C_FST""")
    a("L_GORE:")
    spin_check(a, RESLEEP)
    a("buffer_load_dword v204, v249, s[44:47], 0 offen sc1\ns_waitcnt vmcnt(0)\ns_branch L_GO\nL_END:\ns_endpgm")
    a(f".fill (33280-(.-{NAME}))/4, 4, 0xbf810000")

HEADER = open("concat_heads__linear_attn_block__spectral_gfnet__prompt.s.ref").read().split("; Override")[0]

def main(out):
    a = Asm(); st = Stamps(a)
    entry(a, st); l_main(a, st); c_main(a, st)
    txt = HEADER + f"""; @launch grid=(256,1,1) block=(512,1,1) lds={LDS_SIZE}
.amdgcn_target "amdgcn-amd-amdhsa--gfx950"
.text
""" + a.finalize() + f""".section .rodata,"a"
.p2align 6
.amdhsa_kernel {NAME}
  .amdhsa_next_free_vgpr 256
  .amdhsa_next_free_sgpr 102
  .amdhsa_accum_offset 256
  .amdhsa_group_segment_fixed_size 0
  .amdhsa_kernarg_size 72
  .amdhsa_user_sgpr_count 2
  .amdhsa_user_sgpr_kernarg_segment_ptr 1
  .amdhsa_system_sgpr_workgroup_id_x 1
.end_amdhsa_kernel
"""
    open(out, "w").write(txt)

if __name__ == "__main__":
    for arg in sys.argv[2:]:
        if arg == "stamp": STAMP = True
        elif "=" in arg:
            k, v = arg.split("=", 1)
            globals()[k] = int(v) if v.lstrip("-").isdigit() else v
    main(sys.argv[1])
```
